```python
import torch

def _softmax(x, axis=-1):
    return torch.softmax(x, dim=axis)
def _gelu(x):
    return torch.nn.functional.gelu(x, approximate="tanh")
def _silu(x):
    return torch.nn.functional.silu(x)
def _sigmoid(x):
    return torch.sigmoid(x)
def _layernorm(x, axis=-1, eps=1e-5):
    m = x.mean(dim=axis, keepdim=True)
    v = x.var(dim=axis, keepdim=True, unbiased=False)
    return (x - m) / torch.sqrt(v + eps)
def _scatter_add(tgt, idx, src, axis=0):
    return tgt.clone().index_add_(axis, idx, src)
def _segment_sum(src, seg, n):
    out = torch.zeros((n,) + src.shape[1:], dtype=src.dtype)
    return out.index_add_(0, seg, src)
def _pad(x, pw):
    flat = tuple(v for pair in reversed(pw) for v in pair)
    return torch.nn.functional.pad(x, flat)

kernel_name = 'gated_mix__ssm_conv_s5__softmax_full_mha__prompt'

def setup_inputs():

    _w = (lambda a: (lambda t: t.to(torch.bfloat16) if t.is_floating_point() else t)(torch.as_tensor(a)))
    def _A_setup():
        B, S, D = 1, 2048, 512
        P = D
        Lambda_re = -0.5 * (lambda _x: torch.exp(torch.as_tensor(_x)))((lambda *s: torch.randn(*s, dtype=torch.bfloat16) * 0.4)(P))
        Lambda_im = (lambda *s: torch.randn(*s, dtype=torch.bfloat16) * 0.8)(P) * 1.0
        B_re = (lambda *s: torch.randn(*s, dtype=torch.bfloat16) * 0.8)(P, D) * (D ** -0.5)
        B_im = (lambda *s: torch.randn(*s, dtype=torch.bfloat16) * 0.8)(P, D) * (D ** -0.5)
        C_re = (lambda *s: torch.randn(*s, dtype=torch.bfloat16) * 0.8)(D, P) * (P ** -0.5)
        C_im = (lambda *s: torch.randn(*s, dtype=torch.bfloat16) * 0.8)(D, P) * (P ** -0.5)
        log_dt = (lambda *s: torch.randn(*s, dtype=torch.bfloat16) * 0.4)(P) * 0.3 - 2.0
        Dskip = (lambda *s: torch.randn(*s, dtype=torch.bfloat16) * 0.1)(D)
        return {
            "x": _w((lambda *s: torch.randn(*s, dtype=torch.bfloat16) * 0.05)(B, S, D)),
            "Lambda_re": _w(Lambda_re),
            "Lambda_im": _w(Lambda_im),
            "B_re": _w(B_re),
            "B_im": _w(B_im),
            "C_re": _w(C_re),
            "C_im": _w(C_im),
            "log_dt": _w(log_dt),
            "Dskip": _w(Dskip),
        }
    _A_in = _A_setup()

    def _B_setup():
        B, S, D = 1, 2048, 512
        return {
            "x": _w((lambda *s: torch.randn(*s, dtype=torch.bfloat16) * 0.05)(B, S, D)),
            "wqkv": _w((lambda *s: torch.randn(*s, dtype=torch.bfloat16) * 0.8)(D, 3 * D)),
            "wo": _w((lambda *s: torch.randn(*s, dtype=torch.bfloat16) * 0.05)(D, D)),
        }
    _B_in = _B_setup()

    return {
        "A_x": _A_in["x"],
        "A_Lambda_re": _A_in["Lambda_re"],
        "A_Lambda_im": _A_in["Lambda_im"],
        "A_B_re": _A_in["B_re"],
        "A_B_im": _A_in["B_im"],
        "A_C_re": _A_in["C_re"],
        "A_C_im": _A_in["C_im"],
        "A_log_dt": _A_in["log_dt"],
        "A_Dskip": _A_in["Dskip"],
        "B_x": _B_in["x"],
        "B_wqkv": _B_in["wqkv"],
        "B_wo": _B_in["wo"],
        "gate_w": _w((lambda *s: torch.randn(*s, dtype=torch.bfloat16) * 0.05)(512) * 16.0),
    }

def reference(A_x, A_Lambda_re, A_Lambda_im, A_B_re, A_B_im, A_C_re, A_C_im, A_log_dt, A_Dskip, B_x, B_wqkv, B_wo, gate_w):
    def _A_ref(x, Lambda_re, Lambda_im, B_re, B_im, C_re, C_im, log_dt, Dskip):
        Bsz, L, H = x.shape
        Lam = Lambda_re + 1j * Lambda_im
        Bmat = B_re + 1j * B_im
        Cmat = C_re + 1j * C_im
        dt = torch.exp(log_dt)
        Lam_bar = torch.exp(dt * Lam)
        B_bar = ((Lam_bar - 1.0) / Lam)[:, None] * Bmat
        Bu = torch.einsum("bld,pd->blp", x + 0j, B_bar)
        h = torch.zeros_like(Bu[:, 0, :])
        hs = []
        for t in range(L):
            h = Lam_bar[None, :] * h + Bu[:, t, :]
            hs.append(h)
        hseq = torch.stack(hs, 1)
        y = 2.0 * torch.einsum("blp,dp->bld", hseq, Cmat).real + x * Dskip[None, None, :]
        return y

    def _B_ref(x, wqkv, wo):
        B, S, D = x.shape
        H = 32; Dh = D // H
        qkv = (lambda x, *d: x.permute(*d))((x @ wqkv).reshape(B, S, 3, H, Dh), 2, 0, 3, 1, 4)
        q, k, v = qkv[0], qkv[1], qkv[2]
        scale = Dh ** -0.5
        scores = torch.einsum("bhqd,bhkd->bhqk", q, k) * scale
        p = _softmax(scores, axis=-1)
        o = torch.einsum("bhqk,bhkd->bhqd", p, v)
        return (lambda x, *d: x.permute(*d))(o, 0, 2, 1, 3).reshape(B, S, D) @ wo

    x = A_x
    g = _sigmoid((x * gate_w).sum(-1, keepdims=True))
    a = _A_ref(x, A_Lambda_re, A_Lambda_im, A_B_re, A_B_im, A_C_re, A_C_im, A_log_dt, A_Dskip)
    b = _B_ref(x, B_wqkv, B_wo)
    return g * a + (1 - g) * b
```

```python
import re

TRANS = ("v_exp_f32", "v_log_f32", "v_rcp_f32", "v_rsq_f32", "v_sqrt_f32", "v_sin_f32", "v_cos_f32",
         "v_exp_f16", "v_rcp_iflag_f32")

def parse_reg(tok):
    tok = tok.strip()
    neg = tok.startswith("-")
    if neg: tok = tok[1:]
    m = re.fullmatch(r"abs\((.*)\)|\|(.*)\|", tok)
    if m: tok = m.group(1) or m.group(2)
    m = re.fullmatch(r"([vsa])(\d+)", tok)
    if m: return [(m.group(1), int(m.group(2)))]
    m = re.fullmatch(r"([vsa])\[(\d+):(\d+)\]", tok)
    if m: return [(m.group(1), i) for i in range(int(m.group(2)), int(m.group(3)) + 1)]
    if tok == "vcc": return [("x", "vcc")]
    if tok in ("vcc_lo", "vcc_hi"): return [("x", "vcc")]
    if tok in ("exec", "exec_lo", "exec_hi"): return [("x", "exec")]
    if tok == "m0": return [("x", "m0")]
    return []

class Ins:
    def __init__(self, text):
        self.text = text
        t = text.split(";")[0].strip()
        self.label = None
        self.op = None
        self.defs = set(); self.uses = set()
        self.kind = None
        self.passes = 0
        self.srcC = set(); self.srcAB = set()
        self.nop = 1
        self.target = None
        self.lds_dma = False
        self.wide_store = set()
        if not t:
            self.kind = "dir"; self.nop = 0; return
        if t.endswith(":"):
            self.kind = "label"; self.label = t[:-1]; self.nop = 0; return
        if t.startswith("."):
            self.kind = "dir"; self.nop = 0; return
        parts = t.split(None, 1)
        op = parts[0]; self.op = op
        rest = parts[1] if len(parts) > 1 else ""
        ops = [o.strip() for o in rest.split(",")] if rest else []
        mods = ""
        if ops:
            last = ops[-1]
            joined = rest
            mm = re.search(r"\s(op_sel|op_sel_hi|neg_lo|neg_hi|dst_sel|row_|quad_perm|offset|offen|idxen|lds\b|sc0|sc1|nt\b|cbsz|abid|blgp|clamp|mul:|div:|bitop3|wave_|bound_ctrl|off\b)", " " + joined)
            toks = []
            depth = 0; cur = ""
            for ch in rest:
                if ch == "[": depth += 1
                if ch == "]": depth -= 1
                if ch == "," and depth == 0:
                    toks.append(cur.strip()); cur = ""
                else: cur += ch
            toks.append(cur.strip())
            lastp = toks[-1].split(None, 1)
            toks[-1] = lastp[0] if lastp else ""
            mods = lastp[1] if len(lastp) > 1 else ""
            ops = toks
        self.ops = ops; self.mods = mods
        R = [parse_reg(o) for o in ops]
        base = re.sub(r"_(e32|e64|sdwa|dpp)$", "", op)
        self.base = base
        if op == "s_nop":
            self.kind = "other"; self.nop = int(ops[0], 0) + 1; return
        if op in ("s_waitcnt", "s_barrier", "s_endpgm", "s_setprio", "s_sleep", "s_sethalt"):
            self.kind = "other"; return
        if op.startswith("s_cbranch") or op == "s_branch":
            self.kind = "branch"; self.target = ops[0]
            if "vcc" in op: self.uses.add(("x", "vcc"))
            if "exec" in op: self.uses.add(("x", "exec"))
            return
        if op.startswith("s_load") or op.startswith("s_buffer_load") or op in ("s_memtime", "s_memrealtime"):
            self.kind = "smem"; self.defs.update(R[0])
            for r in R[1:]: self.uses.update(r)
            return
        if op.startswith("s_"):
            self.kind = "salu"
            if op.startswith("s_cmp") or op.startswith("s_bitcmp"):
                for r in R: self.uses.update(r)
            else:
                self.defs.update(R[0])
                for r in R[1:]: self.uses.update(r)
                if op in ("s_addk_i32", "s_mulk_i32"): self.uses.update(R[0])
                if "saveexec" in op:
                    self.defs.add(("x", "exec")); self.uses.add(("x", "exec"))
            return
        if op.startswith("v_mfma") or op.startswith("v_smfmac"):
            self.kind = "mfma"
            self.passes = 8 if "32x32" in op else 4
            self.defs.update(R[0])
            self.srcAB.update(R[1]); self.srcAB.update(R[2])
            if op.startswith("v_smfmac"):
                self.srcC.update(R[0]); self.srcAB.update(R[3])
            else:
                self.srcC.update(R[3])
            self.uses = self.srcAB | self.srcC
            return
        if op.startswith("v_"):
            self.kind = "valu"
            if base.startswith("v_cmp"):
                self.defs.update(R[0])
                for r in R[1:]: self.uses.update(r)
                if base.startswith("v_cmpx"): self.defs.add(("x", "exec"))
            elif base in ("v_add_co_u32", "v_sub_co_u32", "v_subrev_co_u32"):
                self.defs.update(R[0]); self.defs.update(R[1])
                for r in R[2:]: self.uses.update(r)
            elif base in ("v_addc_co_u32", "v_subb_co_u32"):
                self.defs.update(R[0]); self.defs.update(R[1])
                for r in R[2:]: self.uses.update(r)
            elif base.startswith("v_permlane") and "swap" in base:
                self.defs.update(R[0]); self.defs.update(R[1]); self.uses.update(R[0]); self.uses.update(R[1])
            elif base == "v_nop":
                pass
            else:
                self.defs.update(R[0])
                for r in R[1:]: self.uses.update(r)
                if base in ("v_fmac_f32", "v_dot2c_f32_bf16", "v_pk_fmac_f16", "v_writelane_b32") or "UNUSED_PRESERVE" in mods or op.endswith("_dpp"):
                    self.uses.update(R[0])
                if base == "v_cndmask_b32" and len(ops) == 3:
                    self.uses.add(("x", "vcc"))
            return
        if op.startswith("ds_"):
            self.kind = "ds"
            if op.startswith("ds_read") or op.startswith("ds_bpermute") or op.startswith("ds_permute") or op.startswith("ds_swizzle"):
                self.defs.update(R[0])
                for r in R[1:]: self.uses.update(r)
            elif "_rtn" in op:
                self.defs.update(R[0])
                for r in R[1:]: self.uses.update(r)
            else:
                for r in R: self.uses.update(r)
            return
        if op.startswith("buffer_") or op.startswith("global_"):
            self.kind = "vmem"
            islds = bool(re.search(r"\blds\b", mods)) or "load_lds" in op
            if op in ("buffer_wbl2", "buffer_inv"):
                return
            if islds:
                self.lds_dma = True
                for r in R: self.uses.update(r)
                self.uses.add(("x", "m0"))
            elif "_load" in op:
                self.defs.update(R[0])
                for r in R[1:]: self.uses.update(r)
                if "d16" in op: self.uses.update(R[0])
            elif "atomic" in op:
                for r in R: self.uses.update(r)
                if "sc0" in mods:
                    if op.startswith("buffer_"): self.defs.update(R[0])
                    else: self.defs.update(R[0]);
            else:
                for r in R: self.uses.update(r)
                if "x3" in op or "x4" in op:
                    self.wide_store.update(R[0] if op.startswith("buffer_") else R[1])
            return
        raise ValueError("unknown instruction: " + text)

    @property
    def is_trans(self): return self.kind == "valu" and self.base in TRANS

def vregs(s): return {r for r in s if r[0] in "va"}
def sregs(s): return {r for r in s if r[0] == "s" or r == ("x", "vcc")}

def required(p, c):
    need = 0
    if p.kind == "valu":
        pv = vregs(p.defs); ps = sregs(p.defs)
        if c.kind == "mfma" and pv & c.uses: need = max(need, 2)
        if c.kind == "valu":
            if p.is_trans and not c.is_trans and pv & c.uses: need = max(need, 1)
            if c.base in ("v_readfirstlane_b32", "v_readlane_b32") and pv & c.uses: need = max(need, 1)
            if c.base.startswith("v_permlane") and pv & c.uses: need = max(need, 2)
            if c.op.endswith("_dpp") and pv & c.uses: need = max(need, 2)
            if ps & c.uses:
                need = max(need, 4 if c.base in ("v_readlane_b32", "v_writelane_b32", "v_div_fmas_f32") else 2)
            if (p.op.endswith("_sdwa") or "op_sel" in p.mods) and not p.base.startswith("v_pk_") and pv & (c.uses | c.defs): need = max(need, 1)
        if p.base.startswith("v_dot") and c.kind in ("valu", "vmem", "ds", "mfma") and c.op != p.op and pv & (c.uses | c.defs): need = max(need, 3)
        if c.kind == "vmem" and ps & c.uses: need = max(need, 5)
        if c.kind == "salu" and ps & c.uses: need = max(need, 1)
        if c.kind == "branch" and ("x", "vcc") in p.defs and ("x", "vcc") in c.uses: need = max(need, 5)
        if ("x", "exec") in p.defs:
            if c.kind == "mfma": need = max(need, 4)
            if c.kind == "valu": need = max(need, 5)
    if p.kind == "mfma":
        big = p.passes == 8
        if c.kind == "mfma":
            if p.defs & c.srcAB: need = max(need, 12 if big else 8)
            if p.defs & c.srcC:
                if not (p.defs == c.srcC and p.passes == c.passes): need = max(need, 10 if big else 6)
        elif c.kind in ("valu",):
            if p.defs & (c.uses | c.defs): need = max(need, 12 if big else 8)
            if p.srcC & c.defs: need = max(need, 7 if big else 3)
        elif c.kind in ("vmem", "ds"):
            if p.defs & (c.uses | c.defs): need = max(need, 12 if big else 8)
    if p.kind == "salu":
        if ("x", "m0") in p.defs and c.kind == "vmem" and c.lds_dma: need = max(need, 1)
    if p.kind == "vmem" and p.wide_store:
        if c.kind == "valu" and p.wide_store & c.defs: need = max(need, 2)
        elif c.kind in ("ds", "vmem", "mfma") and p.wide_store & c.defs: need = max(need, 1)
    return need

class Prog:
    def __init__(self):
        self.ins = []
    def __call__(self, text, *a):
        for line in text.split("\n"):
            if line.strip() == "": continue
            self.ins.append(Ins(line.strip()))
    def label(self, name): self.ins.append(Ins(name + ":"))
    def comment(self, s): self.ins.append(Ins("; " + s))

    def succs(self, i, labels):
        x = self.ins[i]
        if x.op == "s_endpgm": return []
        if x.kind == "branch":
            t = labels[x.target]
            return [t] if x.op == "s_branch" else [i + 1, t]
        return [i + 1] if i + 1 < len(self.ins) else []

    def fix_hazards(self, verbose=True):
        ninserted = 0
        while True:
            labels = {x.label: i for i, x in enumerate(self.ins) if x.kind == "label"}
            viol = {}
            for i, p in enumerate(self.ins):
                if p.kind not in ("valu", "mfma", "salu", "vmem"): continue
                stack = [(j, 0) for j in self.succs(i, labels)]
                seen = {}
                while stack:
                    j, d = stack.pop()
                    if d >= 12 or j >= len(self.ins): continue
                    if seen.get(j, 99) <= d: continue
                    seen[j] = d
                    c = self.ins[j]
                    if c.kind not in ("label", "dir"):
                        n = required(p, c)
                        if n > d and viol.get(j, (0, 0))[0] < n - d:
                            viol[j] = (n - d, i)
                    for k in self.succs(j, labels): stack.append((k, d + c.nop))
            if not viol: break
            j = min(viol)
            miss, i = viol[j]
            if verbose:
                print(f"  [hazard] +{miss}: '{self.ins[i].text}' -> '{self.ins[j].text}'")
            self.ins.insert(j, Ins(f"s_nop {miss-1}"))
            ninserted += 1
        return ninserted

    def check_waits(self, start_label=None, maxsteps=200000, loop_iters=2):
        labels = {x.label: i for i, x in enumerate(self.ins) if x.kind == "label"}
        errs = []
        entries = [labels[start_label]] if start_label else [0]
        for e in entries:
            vm = []; lg = []
            taken = {}
            i = e; steps = 0
            while i < len(self.ins) and steps < maxsteps:
                steps += 1
                x = self.ins[i]
                if x.op == "s_endpgm": break
                if x.op == "s_waitcnt":
                    t = x.text
                    m = re.search(r"vmcnt\((\d+)\)", t)
                    if m:
                        n = int(m.group(1))
                        while len(vm) > n: vm.pop(0)
                    m = re.search(r"lgkmcnt\((\d+)\)", t)
                    if m:
                        n = int(m.group(1))
                        if n == 0: lg = []
                        else:
                            if any(s for _, _, s in lg): errs.append(f"counted lgkmcnt with smem outstanding at {x.text}")
                            while len(lg) > n: lg.pop(0)
                elif x.kind not in ("label", "dir"):
                    touched = x.uses | x.defs
                    for q in (vm, lg):
                        for d, t, _ in q:
                            if d & touched and not (x.kind in ("vmem", "ds") and q is (vm if x.kind == "vmem" else lg) and not (d & x.uses)):
                                errs.append(f"use of in-flight reg: '{x.text}' vs outstanding '{t}'")
                    if x.kind == "vmem":
                        vm.append((set(x.defs), x.text, False))
                        if len(vm) > 63: errs.append(f"vmcnt overflow at {x.text}")
                    if x.kind == "ds": lg.append((set(x.defs), x.text, False))
                    if x.kind == "smem": lg.append((set(x.defs), x.text, True))
                if x.kind == "branch":
                    t = labels[x.target]
                    if x.op == "s_branch": i = t; continue
                    if t <= i:
                        taken[i] = taken.get(i, 0) + 1
                        if taken[i] < loop_iters: i = t; continue
                i += 1
        out = []
        for e in errs:
            if e not in out: out.append(e)
        return out

    def text(self):
        lines = []
        for x in self.ins:
            if x.kind == "label": lines.append(x.text)
            elif x.kind == "dir": lines.append(x.text if x.text.startswith(".") and False else "    " + x.text)
            else: lines.append("    " + x.text)
        return "\n".join(lines) + "\n"

    def max_regs(self):
        mv = ms = -1
        for x in self.ins:
            for k, n in (x.defs | x.uses):
                if k == "v": mv = max(mv, n)
                if k == "s": ms = max(ms, n)
        return mv + 1, ms + 1
```

```python
from asmlib import Prog, Ins

QF = 0x000000
KF = 0x200000
VF = 0x400000
OF = 0x600000
HF = 0x800000
CF = 0xC00000
WOF = 0xD00000
GG = 0xD80000
EE = 0xD90000
WS_USED = 0xE00000

A_X, A_LRE, A_LIM, A_BRE, A_BIM, A_CRE, A_CIM, A_LOGDT, A_DSKIP, A_BX, A_WQKV, A_WO, A_GATE, A_OUT, A_DBG, A_WS = [8 * i for i in range(16)]

class VM:
    def __init__(self, p): self.p = p; self.q = []
    def issue(self, text, tag=None):
        self.p(text); self.q.append(tag)
    def N(self, tags):
        if not isinstance(tags, (list, set)): tags = [tags]
        last = -1
        for i, t in enumerate(self.q):
            if t in tags: last = i
        return len(self.q) - 1 - last if last >= 0 else None
    def wait(self, tags, extra=""):
        n = self.N(tags)
        if n is None:
            if extra: self.p(f"s_waitcnt {extra}")
            return
        assert n <= 63
        self.p(f"s_waitcnt vmcnt({n}) {extra}".strip())
        self.q = self.q[len(self.q) - n:] if n else []
    def drain(self):
        self.p("s_waitcnt vmcnt(0)"); self.q = []

def srd(p, d, base, nbytes):
    p(f"s_mov_b32 s{d}, s{base}")
    p(f"s_and_b32 s{d+1}, s{base+1}, 0xffff" if False else f"s_mov_b32 s{d+1}, s{base+1}")
    p(f"s_mov_b32 s{d+2}, {nbytes:#x}")
    p(f"s_mov_b32 s{d+3}, 0x00020000")

def vr(a, n=1): return f"v{a}" if n == 1 else f"v[{a}:{a+n-1}]"
def sr(a, n=1): return f"s{a}" if n == 1 else f"s[{a}:{a+n-1}]"

def kernel_text(name, prog, vgpr=None, sgpr=None):
    mv, ms = prog.max_regs()
    vg = vgpr or mv
    assert vg >= mv, (name, vg, mv)
    vg = max(vg, 8)
    acc = (vg + 3) // 4 * 4
    sg = max(sgpr or ms, 16)
    body = f""".globl {name}
.p2align 8
.type {name},@function
{name}:
{prog.text()}"""
    desc = f""".p2align 6
.amdhsa_kernel {name}
  .amdhsa_next_free_vgpr {vg}
  .amdhsa_next_free_sgpr {min(sg, 102)}
  .amdhsa_accum_offset {acc}
  .amdhsa_group_segment_fixed_size 0
  .amdhsa_kernarg_size 128
  .amdhsa_user_sgpr_count 2
  .amdhsa_user_sgpr_kernarg_segment_ptr 1
  .amdhsa_system_sgpr_workgroup_id_x 1
.end_amdhsa_kernel
"""
    print(f"{name}: vgpr={mv} sgpr={ms} ninstr={sum(1 for x in prog.ins if x.kind not in ('label','dir'))}")
    return body, desc

HEADER = open("gated_mix__ssm_conv_s5__softmax_full_mha__prompt.s.ref").read().split("; Override launch")[0]

def file_text(kernels):
    out = HEADER
    for (name, prog, grid, block, lds, vg) in kernels:
        out += f"; @launch kernel={name} grid=({grid},1,1) block=({block},1,1) lds={lds}\n"
    out += '.amdgcn_target "amdgcn-amd-amdhsa--gfx950"\n.text\n'
    descs = ""
    seen = set()
    for (name, prog, grid, block, lds, vg) in kernels:
        if name in seen: continue
        seen.add(name)
        b, d = kernel_text(name, prog, vg)
        out += b; descs += d
    out += '.section .rodata,"a"\n' + descs
    return out

def finish(p, name):
    n = p.fix_hazards()
    errs = p.check_waits()
    for e in errs: print(f"  [wait] {name}: {e}")
    return p
```

```python
from common import *
import math, struct
def f2u(x): return struct.unpack("<I", struct.pack("<f", x))[0]

def build_attn(force_fallback=False):
    p = Prog(); vm = VM(p)
    p("s_cmp_ge_u32 s2, 256")
    p("s_cbranch_scc1 LD_end")
    p(f"s_load_dwordx2 s[8:9], s[0:1], {A_WS}")
    p("v_lshrrev_b32 v1, 6, v0")
    p("v_and_b32 v0, 63, v0")
    p("s_and_b32 s53, s2, 7")
    p("v_readfirstlane_b32 s50, v1")
    p("s_lshr_b32 s54, s2, 3")
    p("s_lshl_b32 s55, s53, 2")
    p("s_lshr_b32 s56, s54, 3")
    p("s_add_u32 s51, s55, s56")
    p("s_and_b32 s52, s54, 7")
    p("s_and_b32 s57, s50, 1")
    p("s_lshr_b32 s58, s50, 1")
    p("s_lshl_b32 s59, s51, 16")
    p("s_lshl_b32 s60, s52, 13")
    p("s_lshl_b32 s61, s57, 12")
    p("s_add_u32 s60, s60, s61")
    p("s_add_u32 s60, s60, s59")
    p("s_lshl_b32 s61, s58, 14")
    p("s_add_u32 s61, s61, s59")
    VL = 1; VV = 2
    p("v_lshlrev_b32 v3, 4, v0")
    p(f"v_add_u32 v{VL}, {KF}, v3")
    p("v_lshrrev_b32 v4, 5, v0")
    p("v_and_b32 v5, 15, v0")
    p("v_lshlrev_b32 v5, 4, v5")
    p("v_lshl_add_u32 v5, v4, 8, v5")
    p(f"v_add_u32 v{VV}, {VF}, v5")
    S = [8, 24]; O = [40, 56, 72, 88]; Q = [104, 108, 112, 116]; K = [120, 124]; V = [128, 136]; IDX = 6
    p("s_mov_b32 s62, 0xffff")
    p("s_mov_b32 s63, 0xffff")
    for i in range(16): p(f"v_mov_b32 v{V[0]+i}, 0x3f803f80")
    p("s_waitcnt lgkmcnt(0)")
    srd(p, 28, 8, WS_USED)
    def loadK(b, so, extra=0):
        p(f"buffer_load_dwordx4 {vr(K[b],4)}, v{VL}, s[28:31], s{so} offen offset:{extra}")
    def loadV(b, so, extra=0):
        p("s_mov_b64 exec, s[62:63]")
        p(f"buffer_load_dwordx4 {vr(V[b],4)}, v{VV}, s[28:31], s{so} offen offset:{extra}")
        p(f"buffer_load_dwordx4 {vr(V[b]+4,4)}, v{VV}, s[28:31], s{so} offen offset:{extra+512}")
        p("s_mov_b64 exec, -1")
    loadK(0, 61)
    for c in range(4):
        p(f"buffer_load_dwordx4 {vr(Q[c],4)}, v3, s[28:31], s60 offen offset:{c*1024}")
    loadV(0, 61); loadK(1, 61, 1024)
    p(f"v_mov_b32 v{IDX}, 0xdddddddd")
    for c in range(4):
        for i in range(16): p(f"v_mov_b32 v{O[c]+i}, 0")
    for i in range(8, 16): p(f"v_mov_b32 v{S[1]+i}, 0")
    p("s_add_u32 s65, s61, 1024")
    p("s_add_u32 s61, s61, 2048")
    p("s_mov_b32 s64, 8")
    p("s_waitcnt vmcnt(3)")
    p(f"v_mfma_f32_32x32x16_bf16 {vr(S[0],16)}, {vr(K[0],4)}, {vr(Q[0],4)}, 0")
    p("s_nop 11")
    p(".p2align 6")
    p.label("LD_loop")
    for it in range(2):
        b = it; nb = 1 - it
        for c in range(4):
            s = S[c & 1]; sn = S[(c + 1) & 1]
            e = lambda i: p(f"v_exp_f32 v{s+i}, v{s+i}")
            e(0); e(1)
            pv = V[b] if c else V[nb]
            po = O[(c - 1) & 3]
            p(f"v_smfmac_f32_32x32x32_bf16 {vr(po,16)}, {vr(pv+4,4)}, {vr(sn+8,8)}, v{IDX}")
            e(2)
            if c == 3: p("s_waitcnt vmcnt(2)")
            e(3); e(4)
            kk = K[b] if c < 3 else K[nb]
            p(f"v_mfma_f32_32x32x16_bf16 {vr(sn,16)}, {vr(kk,4)}, {vr(Q[(c+1)&3],4)}, 0")
            e(5); e(6)
            if c == 1: loadV(nb, 65)
            if c == 3:
                loadK(b, 61)
                p("s_mov_b32 s65, s61")
                p("s_add_u32 s61, s61, 1024")
            e(7); e(8)
            if c == 0: p("s_waitcnt vmcnt(1)")
            e(9)
            p(f"v_smfmac_f32_32x32x32_bf16 {vr(O[c],16)}, {vr(V[b],4)}, {vr(s,8)}, v{IDX}")
            if it == 1 and c == 3:
                p("s_sub_u32 s64, s64, 1")
                p("s_cmp_lg_u32 s64, 0")
            for i in range(10, 16): e(i)
    p("s_cbranch_scc1 LD_loop")
    p(f"v_smfmac_f32_32x32x32_bf16 {vr(O[3],16)}, {vr(V[1]+4,4)}, {vr(S[1]+8,8)}, v{IDX}")
    p("s_mul_i32 s66, s50, 4*2304")
    p("v_add_u32 v4, s66, v3")
    p("v_lshlrev_b32 v5, 2, v0")
    p("v_add_u32 v5, s66, v5")
    for c in range(4):
        p(f"ds_write_b128 v4, {vr(O[c],4)} offset:{c*2304}")
        p(f"ds_write_b128 v4, {vr(O[c]+4,4)} offset:{c*2304+1024}")
        p(f"ds_write_b32 v5, v{O[c]+8} offset:{c*2304+2048}")
    p("s_lshl_b32 s66, s57, 2")
    p("s_add_u32 s66, s66, s58")
    p("s_mul_i32 s66, s66, 2304")
    p("v_add_u32 v4, s66, v3")
    p("v_lshlrev_b32 v5, 2, v0")
    p("v_add_u32 v5, s66, v5")
    p("s_waitcnt vmcnt(0) lgkmcnt(0)")
    p("s_barrier")
    R = 40
    for k in range(4):
        off = k * 8 * 2304
        p(f"ds_read_b128 {vr(R+12*k,4)}, v4 offset:{off}")
        p(f"ds_read_b128 {vr(R+12*k+4,4)}, v4 offset:{off+1024}")
        p(f"ds_read_b32 v{R+12*k+8}, v5 offset:{off+2048}")
    p("s_lshl_b32 s66, s52, 3")
    p("s_lshl_b32 s67, s57, 2")
    p("s_add_u32 s66, s66, s67")
    p("s_add_u32 s66, s66, s58")
    p("s_lshl_b32 s67, s66, 15")
    p("s_lshl_b32 s68, s51, 10")
    p("s_add_u32 s67, s67, s68")
    p(f"s_add_u32 s67, s67, {OF}")
    p("s_waitcnt lgkmcnt(0)")
    for i in range(9):
        p(f"v_add_f32 v{R+i}, v{R+i}, v{R+12+i}")
        p(f"v_add_f32 v{R+24+i}, v{R+24+i}, v{R+36+i}")
    for i in range(9):
        p(f"v_add_f32 v{R+i}, v{R+i}, v{R+24+i}")
    p(f"v_max3_f32 v7, |v{R}|, |v{R+1}|, |v{R+2}|")
    p(f"v_max3_f32 v7, v7, |v{R+3}|, |v{R+4}|")
    p(f"v_max3_f32 v7, v7, |v{R+5}|, |v{R+6}|")
    p(f"v_max_f32 v7, v7, |v{R+7}|")
    p(f"s_mov_b32 s70, {f2u(2.0**-40):#x}")
    p(f"s_mov_b32 s71, {f2u(2.0**40):#x}")
    p(f"s_mov_b32 s72, {f2u(2.0**120):#x}")
    p(f"v_cmp_le_f32 s[74:75], s70, v{R+8}")
    p(f"v_cmp_ge_f32 s[76:77], s71, v{R+8}")
    p(f"v_cmp_ge_f32 s[78:79], s72, v7")
    p("s_and_b64 s[74:75], s[74:75], s[76:77]")
    p("s_and_b64 s[74:75], s[74:75], s[78:79]")
    p("s_cmp_eq_u64 s[74:75], -1" if not force_fallback else "s_cmp_eq_u64 s[74:75], 1")
    p("s_cbranch_scc0 LD_slow")
    p.label("LD_fin")
    p(f"v_rcp_f32 v7, v{R+8}")
    for i in range(8): p(f"v_mul_f32 v{R+i}, v7, v{R+i}")
    for i in range(4): p(f"v_cvt_pk_bf16_f32 v{R+12+i}, v{R+2*i}, v{R+2*i+1}")
    p(f"buffer_store_dwordx4 {vr(R+12,4)}, v3, s[28:31], s67 offen")
    p.label("LD_end")
    p("s_endpgm")
    p.label("LD_slow")
    p("s_lshl_b32 s68, s66, 10")
    p("s_add_u32 s68, s68, s59")
    p(f"buffer_load_dwordx4 {vr(Q[0],4)}, v3, s[28:31], s68 offen")
    p("v_mov_b32 v7, 0xff800000")
    p("s_mov_b32 s61, s59")
    p("s_mov_b32 s64, 64")
    p.label("LD_slow1")
    loadK(0, 61)
    p("s_add_u32 s61, s61, 1024")
    p("s_sub_u32 s64, s64, 1")
    p("s_waitcnt vmcnt(0)")
    p(f"v_mfma_f32_32x32x16_bf16 {vr(S[0],16)}, {vr(K[0],4)}, {vr(Q[0],4)}, 0")
    for i in range(8): p(f"v_max3_f32 v7, v7, v{S[0]+2*i}, v{S[0]+2*i+1}")
    p("s_cmp_lg_u32 s64, 0")
    p("s_cbranch_scc1 LD_slow1")
    p("v_mov_b32 v4, v7")
    p("v_permlane32_swap_b32 v4, v7")
    p("v_max_f32 v7, v4, v7")
    for i in range(16): p(f"v_sub_f32 v{S[1]+i}, 0, v7")
    for i in range(16): p(f"v_mov_b32 v{R+i}, 0")
    p("s_mov_b32 s61, s59")
    p("s_mov_b32 s64, 64")
    p.label("LD_slow2")
    loadK(0, 61); loadV(0, 61)
    p("s_add_u32 s61, s61, 1024")
    p("s_sub_u32 s64, s64, 1")
    p("s_waitcnt vmcnt(0)")
    p(f"v_mfma_f32_32x32x16_bf16 {vr(S[0],16)}, {vr(K[0],4)}, {vr(Q[0],4)}, {vr(S[1],16)}")
    for i in range(16): p(f"v_exp_f32 v{S[0]+i}, v{S[0]+i}")
    p(f"v_smfmac_f32_32x32x32_bf16 {vr(R,16)}, {vr(V[0],4)}, {vr(S[0],8)}, v{IDX}")
    p(f"v_smfmac_f32_32x32x32_bf16 {vr(R,16)}, {vr(V[0]+4,4)}, {vr(S[0]+8,8)}, v{IDX}")
    p("s_cmp_lg_u32 s64, 0")
    p("s_cbranch_scc1 LD_slow2")
    p("s_nop 11")
    p("s_branch LD_fin")
    return finish(p, "attn")
```

```python
from common import *
import math, struct

def build_final():
    p = Prog(); vm = VM(p)
    p("s_cmp_ge_u32 s2, 256")
    p("s_cbranch_scc1 LE_end")
    p(f"s_load_dwordx2 s[4:5], s[0:1], {A_X}")
    p(f"s_load_dwordx2 s[6:7], s[0:1], {A_DSKIP}")
    p(f"s_load_dwordx2 s[8:9], s[0:1], {A_WS}")
    p(f"s_load_dwordx2 s[10:11], s[0:1], {A_OUT}")
    p("v_lshrrev_b32 v1, 6, v0")
    p("v_and_b32 v0, 63, v0")
    p("s_and_b32 s53, s2, 7")
    p("v_readfirstlane_b32 s50, v1")
    p("s_lshr_b32 s54, s2, 3")
    p("s_lshl_b32 s55, s53, 2")
    p("s_and_b32 s56, s54, 3")
    p("s_add_u32 s51, s55, s56")
    p("s_lshr_b32 s52, s54, 2")
    p("s_and_b32 s55, s50, 1")
    p("s_lshl_b32 s56, s51, 1")
    p("s_add_u32 s56, s56, s55")
    p("s_bfe_u32 s55, s50, 0x10001")
    p("s_lshl_b32 s57, s52, 1")
    p("s_add_u32 s57, s57, s55")
    p("s_lshr_b32 s58, s50, 2")
    p("v_lshlrev_b32 v3, 4, v0")
    p("s_waitcnt lgkmcnt(0)")
    srd(p, 20, 4, 2048*1024)
    srd(p, 24, 6, 1024)
    srd(p, 28, 8, WS_USED)
    srd(p, 32, 10, 2048*2048)
    p("s_lshl_b32 s60, s56, 16")
    p(f"s_add_u32 s60, s60, {HF}")
    p("s_lshl_b32 s61, s57, 16")
    p(f"s_add_u32 s61, s61, {CF}")
    ACC = 8; ACC2 = 24; BUF = 40; D = 8
    def gemm(n, acc, tag):
        def ld(k):
            b = BUF + 8 * (k % D)
            if k and k % 4 == 0:
                p("s_add_u32 s60, s60, 4096"); p("s_add_u32 s61, s61, 4096")
            vm.issue(f"buffer_load_dwordx4 {vr(b,4)}, v3, s[28:31], s60 offen offset:{(k%4)*1024}", (tag, k))
            vm.issue(f"buffer_load_dwordx4 {vr(b+4,4)}, v3, s[28:31], s61 offen offset:{(k%4)*1024}", (tag, k))
        for k in range(min(D, n)): ld(k)
        for k in range(n):
            b = BUF + 8 * (k % D)
            vm.wait((tag, k))
            p(f"v_mfma_f32_32x32x16_bf16 {vr(acc,16)}, {vr(b,4)}, {vr(b+4,4)}, {vr(acc,16) if k else 0}")
            if k + D < n: ld(k + D)
    p("s_cmp_eq_u32 s58, 0")
    p("s_cbranch_scc0 LE_second")
    gemm(48, ACC, "a")
    p("s_and_b32 s62, s50, 3")
    p("s_lshl_b32 s62, s62, 12")
    p("v_add_u32 v4, s62, v3")
    for i in range(4):
        p(f"ds_write_b128 v4, {vr(ACC+4*i,4)} offset:{i*1024}")
    p("s_waitcnt lgkmcnt(0)")
    p("s_barrier")
    p("s_endpgm")
    p.label("LE_second")
    vm.q = []
    G = 104; X = 120; DS = 136
    p("v_lshrrev_b32 v5, 5, v0")
    p("v_and_b32 v6, 31, v0")
    p("v_lshlrev_b32 v7, 4, v5")
    p("s_lshl_b32 s62, s56, 7")
    p(f"s_add_u32 s62, s62, {GG}")
    for q in range(4):
        vm.issue(f"buffer_load_dwordx4 {vr(G+4*q,4)}, v7, s[28:31], s62 offen offset:{q*32}", "e")
    p("v_lshlrev_b32 v7, 1, v6")
    p("s_lshl_b32 s63, s57, 6")
    vm.issue(f"buffer_load_ushort v{DS}, v7, s[24:27], s63 offen", "e")
    p("v_lshl_add_u32 v7, v5, 12, v7")
    p("s_lshl_b32 s64, s56, 15")
    p("s_add_u32 s64, s64, s63")
    for q in range(4):
        for r in range(4):
            vm.issue(f"buffer_load_ushort v{X+4*q+r}, v7, s[20:23], s64 offen offset:{r*1024}", "e")
        if q < 3: p("s_add_u32 s64, s64, 8192")
    p(f"s_add_u32 s60, s60, {48*1024}")
    p(f"s_add_u32 s61, s61, {48*1024}")
    gemm(16, ACC, "a")
    p("s_lshl_b32 s60, s56, 15")
    p(f"s_add_u32 s60, s60, {OF}")
    p("s_lshl_b32 s61, s57, 15")
    p(f"s_add_u32 s61, s61, {WOF}")
    gemm(32, ACC2, "b")
    p("s_and_b32 s62, s50, 3")
    p("s_lshl_b32 s62, s62, 12")
    p("v_add_u32 v4, s62, v3")
    p("s_barrier")
    for i in range(4):
        p(f"ds_read_b128 {vr(BUF+4*i,4)}, v4 offset:{i*1024}")
    p("v_lshlrev_b32 v7, 2, v6")
    p("v_lshl_add_u32 v7, v5, 13, v7")
    p("v_add_u32 v2, 4096, v7")
    p("s_lshl_b32 s64, s56, 16")
    p("s_lshl_b32 s63, s57, 7")
    p("s_add_u32 s64, s64, s63")
    p(f"v_lshlrev_b32 v{DS}, 16, v{DS}")
    T = 60
    for i in range(16):
        p(f"v_lshlrev_b32 v{X+i}, 16, v{X+i}")
        p(f"v_mul_f32 v{X+i}, v{DS}, v{X+i}")
        p(f"v_sub_f32 v{T+i}, 1.0, v{G+i}")
    for i in range(8):
        p(f"v_cvt_pk_bf16_f32 v{T+16+i}, v{X+2*i}, v{X+2*i+1}")
        p(f"v_cvt_pk_bf16_f32 v{T+24+i}, v{T+2*i}, v{T+2*i+1}")
        p(f"v_cvt_pk_bf16_f32 v{T+32+i}, v{ACC2+2*i}, v{ACC2+2*i+1}")
    for i in range(8):
        p(f"v_lshlrev_b32 v{X+2*i}, 16, v{T+16+i}")
        p(f"v_and_b32 v{X+2*i+1}, 0xffff0000, v{T+16+i}")
        p(f"v_lshlrev_b32 v{T+2*i}, 16, v{T+24+i}")
        p(f"v_and_b32 v{T+2*i+1}, 0xffff0000, v{T+24+i}")
        p(f"v_lshlrev_b32 v{ACC2+2*i}, 16, v{T+32+i}")
        p(f"v_and_b32 v{ACC2+2*i+1}, 0xffff0000, v{T+32+i}")
    for i in range(16):
        p(f"v_mul_f32 v{T+i}, v{T+i}, v{ACC2+i}")
    for i in range(8):
        p(f"v_cvt_pk_bf16_f32 v{T+16+i}, v{T+2*i}, v{T+2*i+1}")
    for i in range(8):
        p(f"v_lshlrev_b32 v{T+2*i}, 16, v{T+16+i}")
        p(f"v_and_b32 v{T+2*i+1}, 0xffff0000, v{T+16+i}")
    p("s_waitcnt lgkmcnt(0)")
    for i in range(16):
        p(f"v_add_f32 v{ACC+i}, v{ACC+i}, v{BUF+i}")
        p(f"v_add_f32 v{ACC+i}, v{ACC+i}, v{X+i}")
        p(f"v_fmac_f32 v{T+i}, v{G+i}, v{ACC+i}")
        r = i & 3
        p(f"buffer_store_dword v{T+i}, v{7 if r < 2 else 2}, s[32:35], s64 offen offset:{(r & 1)*2048}")
        if r == 3 and i < 15: p("s_add_u32 s64, s64, 16384")
    p.label("LE_end")
    p("s_endpgm")
    return finish(p, "final")
```

```python
from common import *
import math

QSCALE = 0.25 * math.log2(math.e)
import struct
def f2u(x): return struct.unpack("<I", struct.pack("<f", x))[0]

def build_qkv():
    p = Prog(); vm = VM(p)
    p("s_cmp_ge_u32 s2, 256")
    p("s_cbranch_scc1 LA_end")
    p(f"s_load_dwordx2 s[4:5], s[0:1], {A_X}")
    p(f"s_load_dwordx2 s[6:7], s[0:1], {A_WQKV}")
    p(f"s_load_dwordx2 s[8:9], s[0:1], {A_WS}")
    p(f"s_load_dwordx2 s[10:11], s[0:1], {A_GATE}")
    p(f"s_load_dwordx4 s[12:15], s[0:1], {A_CRE}")
    p(f"s_load_dwordx2 s[16:17], s[0:1], {A_WO}")
    p("v_lshrrev_b32 v1, 6, v0")
    p("v_and_b32 v0, 63, v0")
    p("s_and_b32 s53, s2, 7")
    p("v_readfirstlane_b32 s50, v1")
    p("s_lshr_b32 s54, s2, 3")
    p("s_lshr_b32 s55, s53, 1")
    p("s_lshl_b32 s55, s55, 2")
    p("s_and_b32 s56, s54, 3")
    p("s_add_u32 s51, s55, s56")
    p("s_and_b32 s55, s53, 1")
    p("s_lshl_b32 s55, s55, 3")
    p("s_lshr_b32 s56, s54, 2")
    p("s_add_u32 s52, s55, s56")
    XO = 2; WO = 6; XA = 10; WA = 14
    p("s_lshl_b32 s55, s51, 7")
    p("s_lshl_b32 s56, s50, 5")
    p("s_add_u32 s55, s55, s56")
    p("s_lshl_b32 s57, s55, 10")
    p("v_lshrrev_b32 v16, 3, v0")
    p("v_and_b32 v17, 7, v0")
    for j in range(4):
        p(f"v_add_u32 v18, {8*j}, v16")
        p("v_lshrrev_b32 v19, 1, v18")
        p("v_and_b32 v19, 7, v19")
        p("v_xor_b32 v19, v19, v17")
        p("v_lshlrev_b32 v19, 4, v19")
        p("v_lshl_add_u32 v19, v18, 10, v19")
        p(f"v_subrev_u32 v19, {j*1024}, v19" if j else "v_mov_b32 v19, v19")
        p(f"v_add_u32 v{XO+j}, s57, v19")
    p("s_lshl_b32 s58, s52, 6")
    p("s_mul_i32 s59, s50, 16*3072")
    p("s_add_u32 s58, s58, s59")
    p("s_movk_i32 s60, 3072")
    for j in range(3):
        p(f"v_add_u32 v18, {64*j}, v0")
        p("v_mul_u32_u24 v19, 43691, v18")
        p("v_lshrrev_b32 v19, 19, v19")
        p("v_mul_u32_u24 v20, 12, v19")
        p("v_sub_u32 v20, v18, v20")
        p("v_bfe_u32 v21, v20, 1, 1")
        p("v_lshlrev_b32 v21, 10, v21")
        p("v_lshrrev_b32 v22, 2, v20")
        p("v_lshl_add_u32 v21, v22, 5, v21")
        p("v_and_b32 v22, 1, v20")
        p("v_lshl_add_u32 v21, v22, 4, v21")
        p("v_lshlrev_b32 v22, 4, v20")
        p(f"v_add_u32 v22, {2048-128}, v22")
        p("v_cmp_gt_u32 vcc, 8, v20")
        p("v_cndmask_b32 v21, v22, v21, vcc")
        p("v_mad_u32_u24 v21, v19, s60, v21")
        p(f"v_subrev_u32 v21, {j*1024}, v21" if j else "v_mov_b32 v21, v21")
        p(f"v_add_u32 v{WO+j}, s58, v21")
    p("s_waitcnt lgkmcnt(0)")
    srd(p, 20, 4, 2048*1024)
    srd(p, 24, 6, 512*3072)
    srd(p, 28, 8, WS_USED)
    srd(p, 32, 10, 1024)
    srd(p, 36, 12, 512*1024)
    srd(p, 40, 14, 512*1024)
    srd(p, 44, 16, 512*1024)
    XB = 98304
    p(f"s_lshl_b32 s61, s50, 12")
    p(f"s_add_u32 s61, s61, {XB}")
    p(f"s_mul_i32 s62, s50, 3072")
    def dma_x(st):
        p(f"s_add_u32 m0, s61, {(st & 3) * 16384}")
        p(f"s_movk_i32 s63, {st*128}")
        for j in range(4):
            vm.issue(f"buffer_load_dwordx4 v{XO+j}, s[20:23], s63 offen offset:{j*1024} lds", ("x", st))
    def dma_w(st):
        p(f"s_add_u32 m0, s62, {st * 12288}")
        p(f"s_mov_b32 s64, {st*64*3072}")
        for j in range(3):
            vm.issue(f"buffer_load_dwordx4 v{WO+j}, s[24:27], s64 offen offset:{j*1024} lds", ("w", st))
    for st in range(4):
        dma_x(st); dma_w(st)
    for st in range(4, 8):
        dma_w(st)
    p("s_lshl_b32 s65, s2, 3")
    p("s_lshl_b32 s66, s50, 1")
    p("s_add_u32 s65, s65, s66")
    p("v_lshrrev_b32 v16, 5, v0")
    p("v_and_b32 v17, 31, v0")
    p("v_add_u32 v100, s65, v16")
    p("v_lshlrev_b32 v101, 5, v17")
    p("v_lshl_add_u32 v102, v100, 10, v101")
    vm.issue("buffer_load_dwordx4 v[104:107], v102, s[20:23], 0 offen", "g")
    vm.issue("buffer_load_dwordx4 v[108:111], v102, s[20:23], 0 offen offset:16", "g")
    vm.issue("buffer_load_dwordx4 v[112:115], v101, s[32:35], 0 offen", "g")
    vm.issue("buffer_load_dwordx4 v[116:119], v101, s[32:35], 0 offen offset:16", "g")
    p("s_lshl_b32 s67, s2, 2")
    p("s_add_u32 s67, s67, s50")
    p("s_lshr_b32 s68, s67, 6")
    p("s_lshl_b32 s68, s68, 15")
    p("s_and_b32 s69, s67, 63")
    p("s_lshl_b32 s69, s69, 4")
    p("s_add_u32 s68, s68, s69")
    p("v_lshlrev_b32 v103, 10, v17")
    p("v_lshl_add_u32 v103, v16, 3, v103")
    vm.issue("buffer_load_dwordx2 v[120:121], v103, s[36:39], s68 offen", "c")
    vm.issue("buffer_load_dwordx2 v[122:123], v103, s[40:43], s68 offen", "c")
    p("s_and_b32 s70, s50, 1")
    p("s_lshl_b32 s71, s2, 1")
    p("s_add_u32 s70, s70, s71")
    p("s_lshr_b32 s71, s70, 5")
    p("s_lshl_b32 s71, s71, 6")
    p("s_and_b32 s72, s70, 31")
    p("s_lshl_b32 s72, s72, 14")
    p("s_add_u32 s71, s71, s72")
    p("v_lshlrev_b32 v124, 1, v17")
    p("v_lshl_add_u32 v124, v16, 12, v124")
    p("v_add_u32 v125, 8192, v124")
    for j in range(8):
        base = 124 + (j >> 2)
        vm.issue(f"buffer_load_ushort v{88 + j}, v{base}, s[44:47], s71 offen offset:{(j & 3) * 1024}", "o")
    p("v_lshrrev_b32 v18, 1, v17")
    p("v_and_b32 v18, 7, v18")
    p("v_lshlrev_b32 v19, 7, v17")
    p("v_add_u32 v19, s61, v19")
    for ks in range(4):
        p(f"v_add_u32 v20, {2*ks}, v16")
        p("v_xor_b32 v20, v20, v18")
        p(f"v_lshl_add_u32 v{XA+ks}, v20, 4, v19")
    p("v_bfe_u32 v18, v0, 2, 2")
    p("v_lshl_add_u32 v18, v16, 3, v18")
    p("v_mul_u32_u24 v18, 192, v18")
    p("v_bfe_u32 v19, v0, 4, 1")
    p("v_lshl_add_u32 v18, v19, 5, v18")
    p("v_and_b32 v19, 3, v0")
    p(f"v_lshl_add_u32 v{WA}, v19, 3, v18")
    p(f"v_add_u32 v{WA+1}, 49152, v{WA}")
    ACC = [24, 40, 56]
    FR = [72, 136, 152]
    FR = [136, 152, 168]
    def read_frags(kk):
        b = FR[kk % 3]; st = kk >> 2; ks = kk & 3
        p(f"ds_read_b128 {vr(b,4)}, v{XA+ks} offset:{(st & 3) * 16384}")
        wa = WA + (kk >> 4); off = (kk & 15) * 3072
        for T in range(3):
            for e in range(2):
                p(f"ds_read_b64_tr_b16 {vr(b+4+4*T+2*e,2)}, v{wa} offset:{off + e*768 + T*64}")
    def sync_stage(st):
        vm.wait([("x", st), ("w", st)])
        p("s_barrier")
    sync_stage(0)
    read_frags(0); read_frags(1)
    for kk in range(32):
        b = FR[kk % 3]
        nxt = kk + 2
        if nxt < 32:
            if nxt % 4 == 0: sync_stage(nxt >> 2)
            read_frags(nxt)
            p("s_waitcnt lgkmcnt(14)")
        elif nxt == 32: p("s_waitcnt lgkmcnt(7)")
        else: p("s_waitcnt lgkmcnt(0)")
        c = [vr(a, 16) if kk else "0" for a in ACC]
        p(f"v_mfma_f32_32x32x16_bf16 {vr(ACC[0],16)}, {vr(b+4,4)}, {vr(b,4)}, {c[0]}")
        p(f"v_mfma_f32_32x32x16_bf16 {vr(ACC[1],16)}, {vr(b+8,4)}, {vr(b,4)}, {c[1]}")
        p(f"v_mfma_f32_32x32x16_bf16 {vr(ACC[2],16)}, {vr(b,4)}, {vr(b+12,4)}, {c[2]}")
        if kk % 4 == 3 and (kk >> 2) + 4 < 8:
            dma_x((kk >> 2) + 4)
    vm.drain()
    p("v_mov_b32 v126, 0")
    for i in range(8):
        p(f"v_dot2_f32_bf16 v126, v{104+i}, v{112+i}, v126")
    p("s_mov_b32 s73, 0x05040100")
    p("s_mov_b32 s74, 0x07060302")
    p("v_perm_b32 v172, v122, v120, s73")
    p("v_perm_b32 v173, v122, v120, s74")
    p("v_perm_b32 v174, v123, v121, s73")
    p("v_perm_b32 v175, v123, v121, s74")
    p("v_lshlrev_b32 v127, 4, v0")
    p("s_lshl_b32 s67, s67, 10")
    p(f"s_add_u32 s67, s67, {CF}")
    p("buffer_store_dwordx4 v[172:175], v127, s[28:31], s67 offen")
    for i in range(4):
        p(f"v_lshl_or_b32 v{128+i}, v{89+2*i}, 16, v{88+2*i}")
    p("s_lshl_b32 s70, s70, 10")
    p(f"s_add_u32 s70, s70, {WOF}")
    p("buffer_store_dwordx4 v[128:131], v127, s[28:31], s70 offen")
    for sh in (8, 4, 2, 1):
        p(f"v_add_f32_dpp v126, v126, v126 row_ror:{sh} row_mask:0xf bank_mask:0xf")
    p("ds_swizzle_b32 v125, v126 offset:0x401F")
    p(f"s_mov_b32 s75, {f2u(QSCALE):#x}")
    p("s_lshl_b32 s76, s51, 2")
    p("s_add_u32 s76, s76, s50")
    p("s_lshl_b32 s76, s76, 10")
    p("s_lshl_b32 s77, s52, 17")
    p("s_add_u32 s76, s76, s77")
    p("s_add_u32 s77, s76, 0x10000")
    p("v_and_b32 v18, 0x33, v0")
    p("v_bfe_u32 v19, v0, 2, 1")
    p("v_lshl_or_b32 v18, v19, 3, v18")
    p("v_bfe_u32 v19, v0, 3, 1")
    p("v_lshl_or_b32 v18, v19, 2, v18")
    p("v_lshlrev_b32 v18, 4, v18")
    p(f"v_add_u32 v18, {KF}, v18")
    p("v_bfe_u32 v19, v0, 4, 1")
    p("v_lshlrev_b32 v19, 16, v19")
    p("v_lshl_add_u32 v19, v16, 8, v19")
    p("v_and_b32 v20, 15, v0")
    p("v_lshl_add_u32 v19, v20, 4, v19")
    p(f"v_add_u32 v19, {VF}, v19")
    T = 72
    for hd in range(2):
        a = ACC[hd]
        for i in range(4):
            p(f"v_cvt_pk_bf16_f32 v{T+i}, v{a+2*i}, v{a+2*i+1}")
        for i in range(4):
            p(f"v_cvt_pk_bf16_f32 v{T+4+i}, v{a+8+2*i}, v{a+8+2*i+1}")
        p(f"buffer_store_dwordx4 {vr(T+4,4)}, v18, s[28:31], s{76+hd} offen")
        for i in range(4):
            p(f"v_lshlrev_b32 v{a+2*i}, 16, v{T+i}")
            p(f"v_and_b32 v{a+2*i+1}, 0xffff0000, v{T+i}")
        for i in range(8):
            p(f"v_mul_f32 v{a+i}, s75, v{a+i}")
        for i in range(4):
            p(f"v_cvt_pk_bf16_f32 v{T+i}, v{a+2*i}, v{a+2*i+1}")
        p(f"buffer_store_dwordx4 {vr(T,4)}, v127, s[28:31], s{76+hd} offen")
        T += 8
    a = ACC[2]
    for i in range(8):
        p(f"v_cvt_pk_bf16_f32 v{T+i}, v{a+2*i}, v{a+2*i+1}")
    p(f"buffer_store_dwordx4 {vr(T,4)}, v19, s[28:31], s76 offen")
    p(f"buffer_store_dwordx4 {vr(T+4,4)}, v19, s[28:31], s76 offen offset:512")
    p("s_waitcnt lgkmcnt(0)")
    p("v_add_f32 v126, v126, v125")
    p("v_cvt_pk_bf16_f32 v126, v126, v126")
    p("v_and_b32 v126, 0xffff0000, v126")
    p(f"v_mul_f32 v126, {f2u(-math.log2(math.e)):#x}, v126")
    p("v_exp_f32 v126, v126")
    p("v_add_f32 v126, 1.0, v126")
    p("v_rcp_f32 v126, v126")
    p("v_cvt_pk_bf16_f32 v126, v126, v126")
    p("v_and_b32 v126, 0xffff0000, v126")
    p("v_lshlrev_b32 v100, 2, v100")
    p(f"s_mov_b32 s78, {GG}")
    p("buffer_store_dword v126, v100, s[28:31], s78 offen")
    p.label("LA_end")
    p("s_endpgm")
    return finish(p, "qkv")
```

```python
from common import *
import math, struct
def f2u(x): return struct.unpack("<I", struct.pack("<f", x))[0]

def cmul(p, dr, di, ar, ai, br, bi, t=None):
    p(f"v_mul_f32 v{dr}, v{ar}, v{br}")
    p(f"v_mul_f32 v{di}, v{ar}, v{bi}")
    p(f"v_fma_f32 v{dr}, -v{ai}, v{bi}, v{dr}")
    p(f"v_fmac_f32 v{di}, v{ai}, v{br}")

def lam_setup(p, vm, L, tmp, srd_lre, srd_lim, srd_ldt, voff):
    vm.issue(f"buffer_load_ushort v{tmp}, v{voff}, s[{srd_lre}:{srd_lre+3}], 0 offen", "lam")
    vm.issue(f"buffer_load_ushort v{tmp+1}, v{voff}, s[{srd_lim}:{srd_lim+3}], 0 offen", "lam")
    vm.issue(f"buffer_load_ushort v{tmp+2}, v{voff}, s[{srd_ldt}:{srd_ldt+3}], 0 offen", "lam")

def lam_compute(p, L, t):
    log2e = math.log2(math.e)
    for i in range(3): p(f"v_lshlrev_b32 v{t+i}, 16, v{t+i}")
    p(f"v_mul_f32 v{t+2}, {f2u(log2e):#x}, v{t+2}")
    p(f"v_exp_f32 v{t+2}, v{t+2}")
    p(f"v_cvt_pk_bf16_f32 v{t+2}, v{t+2}, v{t+2}")
    p(f"v_and_b32 v{t+2}, 0xffff0000, v{t+2}")
    p(f"v_mul_f32 v{t+3}, v{t+2}, v{t}")
    p(f"v_mul_f32 v{t+4}, v{t+2}, v{t+1}")
    p(f"v_mul_f32 v{t+3}, {f2u(log2e):#x}, v{t+3}")
    p(f"v_exp_f32 v{t+3}, v{t+3}")
    p(f"v_mul_f32 v{t+4}, {f2u(1/(2*math.pi)):#x}, v{t+4}")
    p(f"v_rndne_f32 v{t+5}, v{t+4}")
    p(f"v_sub_f32 v{t+4}, v{t+4}, v{t+5}")
    p(f"v_cos_f32 v{t+5}, v{t+4}")
    p(f"v_sin_f32 v{t+6}, v{t+4}")
    p(f"v_mul_f32 v{L}, v{t+3}, v{t+5}")
    p(f"v_mul_f32 v{L+1}, v{t+3}, v{t+6}")
    p(f"v_add_f32 v{t+3}, -1.0, v{L}")
    p(f"v_mul_f32 v{t+4}, v{t}, v{t}")
    p(f"v_fmac_f32 v{t+4}, v{t+1}, v{t+1}")
    p(f"v_rcp_f32 v{t+4}, v{t+4}")
    p(f"v_mul_f32 v{t+5}, v{t+3}, v{t}")
    p(f"v_fmac_f32 v{t+5}, v{L+1}, v{t+1}")
    p(f"v_mul_f32 v{t+6}, v{L+1}, v{t}")
    p(f"v_fma_f32 v{t+6}, -v{t+3}, v{t+1}, v{t+6}")
    p(f"v_mul_f32 v{L+2}, v{t+5}, v{t+4}")
    p(f"v_mul_f32 v{L+3}, v{t+6}, v{t+4}")
    a, b = L, t
    seq = [(L, t), (t, t+2), (t+2, t), (t, L+4), (L+4, t), (t, t+2), (t+2, L+6)]
    for s_, d_ in seq:
        cmul(p, d_, d_+1, s_, s_+1, s_, s_+1)

def build_ssm(second):
    nm = "C" if second else "B"
    p = Prog(); vm = VM(p)
    p("s_cmp_ge_u32 s2, 256")
    p(f"s_cbranch_scc1 L{nm}_end")
    p(f"s_load_dwordx2 s[4:5], s[0:1], {A_X}")
    p(f"s_load_dwordx4 s[8:11], s[0:1], {A_LRE}")
    p(f"s_load_dwordx4 s[12:15], s[0:1], {A_BRE}")
    p(f"s_load_dwordx2 s[16:17], s[0:1], {A_LOGDT}")
    p(f"s_load_dwordx2 s[18:19], s[0:1], {A_WS}")
    p("v_lshrrev_b32 v1, 6, v0")
    p("v_and_b32 v0, 63, v0")
    p("s_and_b32 s53, s2, 7")
    p("v_readfirstlane_b32 s50, v1")
    p("s_lshr_b32 s54, s2, 3")
    p("s_lshr_b32 s55, s53, 1")
    p("s_lshl_b32 s55, s55, 2")
    p("s_and_b32 s56, s54, 3")
    p("s_add_u32 s51, s55, s56")
    p("s_and_b32 s55, s53, 1")
    p("s_lshl_b32 s55, s55, 3")
    p("s_lshr_b32 s56, s54, 2")
    p("s_add_u32 s52, s55, s56")
    XO = 2; BO = 6; XA = 10; BA = 14
    p("s_lshl_b32 s55, s51, 7")
    p("s_lshl_b32 s56, s50, 5")
    p("s_add_u32 s55, s55, s56")
    p("s_lshl_b32 s57, s55, 10")
    p("v_lshrrev_b32 v22, 3, v0")
    p("v_and_b32 v23, 7, v0")
    p("v_bfe_u32 v24, v22, 2, 1")
    p("v_and_b32 v25, 3, v22")
    p("v_lshl_add_u32 v24, v24, 4, v25")
    for j in range(4):
        p(f"v_add_u32 v18, {8*j}, v22")
        p("v_lshrrev_b32 v19, 1, v18")
        p("v_and_b32 v19, 7, v19")
        p("v_xor_b32 v19, v19, v23")
        p("v_lshlrev_b32 v19, 4, v19")
        p("v_lshl_add_u32 v19, v24, 10, v19")
        p(f"v_add_u32 v19, {j*4096 - j*1024}, v19")
        p(f"v_add_u32 v{XO+j}, s57, v19")
    p("s_and_b32 s58, s50, 1")
    p("s_lshl_b32 s58, s58, 4")
    p("s_lshl_b32 s59, s52, 5")
    p("s_add_u32 s58, s58, s59")
    p("s_lshl_b32 s58, s58, 10")
    for j in range(2):
        p(f"v_add_u32 v18, {8*j}, v22")
        p("v_lshrrev_b32 v19, 1, v18")
        p("v_and_b32 v19, 7, v19")
        p("v_xor_b32 v19, v19, v23")
        p("v_lshlrev_b32 v19, 4, v19")
        p("v_lshl_add_u32 v19, v18, 10, v19")
        if j: p(f"v_subrev_u32 v19, {j*1024}, v19")
        p(f"v_add_u32 v{BO+j}, s58, v19")
    p("s_waitcnt lgkmcnt(0)")
    srd(p, 20, 4, 2048*1024)
    p("s_cmp_lt_u32 s50, 2")
    p("s_cselect_b32 s24, s12, s14")
    p("s_cselect_b32 s25, s13, s15")
    p(f"s_mov_b32 s26, {512*1024}")
    p("s_mov_b32 s27, 0x00020000")
    srd(p, 28, 18, WS_USED)
    srd(p, 32, 8, 1024)
    srd(p, 36, 10, 1024)
    srd(p, 40, 16, 1024)
    XB = 65536
    p("s_lshl_b32 s61, s50, 12")
    p(f"s_add_u32 s61, s61, {XB}")
    p("s_lshl_b32 s62, s50, 11")
    def dma_x(st):
        p(f"s_add_u32 m0, s61, {(st & 3) * 16384}")
        p(f"s_movk_i32 s63, {st*128}")
        for j in range(4):
            vm.issue(f"buffer_load_dwordx4 v{XO+j}, s[20:23], s63 offen offset:{j*1024} lds", ("x", st))
    def dma_b(st):
        p(f"s_add_u32 m0, s62, {st * 8192}")
        p(f"s_movk_i32 s63, {st*128}")
        for j in range(2):
            vm.issue(f"buffer_load_dwordx4 v{BO+j}, s[24:27], s63 offen offset:{j*1024} lds", ("w", st))
    for st in range(4):
        dma_x(st); dma_b(st)
    for st in range(4, 8): dma_b(st)
    p("v_lshrrev_b32 v22, 5, v0")
    p("v_and_b32 v23, 31, v0")
    LT = 100; L = 110
    p("s_lshl_b32 s65, s52, 6")
    p("v_lshl_add_u32 v24, v23, 1, s65")
    lam_setup(p, vm, L, LT, 32, 36, 40, 24)
    EB = 120
    if second:
        p("v_lshlrev_b32 v25, 2, v24")
        p(f"v_add_u32 v25, {EE}, v25")
        for c in range(15):
            p(f"s_mov_b32 s66, {c*4096}")
            vm.issue(f"buffer_load_dwordx2 {vr(EB+2*c,2)}, v25, s[28:31], s66 offen", "E")
    p("v_lshrrev_b32 v18, 1, v23")
    p("v_and_b32 v18, 7, v18")
    p("v_lshlrev_b32 v19, 7, v23")
    p("v_add_u32 v21, s61, v19")
    for ks in range(4):
        p(f"v_add_u32 v20, {2*ks}, v22")
        p("v_xor_b32 v20, v20, v18")
        p(f"v_lshl_add_u32 v{XA+ks}, v20, 4, v21")
        p(f"v_lshl_add_u32 v{BA+ks}, v20, 4, v19")
    RE, IM = 26, 42
    FR = [60, 72, 84]
    def read_frags(kk):
        b = FR[kk % 3]; st = kk >> 2; ks = kk & 3
        p(f"ds_read_b128 {vr(b,4)}, v{XA+ks} offset:{(st & 3) * 16384}")
        p(f"ds_read_b128 {vr(b+4,4)}, v{BA+ks} offset:{st * 8192}")
        p(f"ds_read_b128 {vr(b+8,4)}, v{BA+ks} offset:{st * 8192 + 4096}")
    def sync_stage(st):
        vm.wait([("x", st), ("w", st)])
        p("s_barrier")
    sync_stage(0)
    read_frags(0); read_frags(1)
    for kk in range(32):
        b = FR[kk % 3]
        nxt = kk + 2
        if nxt < 32:
            if nxt % 4 == 0: sync_stage(nxt >> 2)
            read_frags(nxt)
            p("s_waitcnt lgkmcnt(6)")
        elif nxt == 32: p("s_waitcnt lgkmcnt(3)")
        else: p("s_waitcnt lgkmcnt(0)")
        p(f"v_mfma_f32_32x32x16_bf16 {vr(RE,16)}, {vr(b,4)}, {vr(b+4,4)}, {vr(RE,16) if kk else 0}")
        p(f"v_mfma_f32_32x32x16_bf16 {vr(IM,16)}, {vr(b,4)}, {vr(b+8,4)}, {vr(IM,16) if kk else 0}")
        if kk % 4 == 3 and (kk >> 2) + 4 < 8:
            dma_x((kk >> 2) + 4)
    vm.drain()
    lam_compute(p, L, LT)
    hr, hi, tr = 96, 97, 98
    p(f"v_mov_b32 v{hr}, v{RE}")
    p(f"v_mov_b32 v{hi}, v{IM}")
    for r in range(1, 16):
        p(f"v_fma_f32 v{tr}, v{L}, v{hr}, v{RE+r}")
        p(f"v_fma_f32 v{tr}, -v{L+1}, v{hi}, v{tr}")
        p(f"v_fma_f32 v{hi}, v{L}, v{hi}, v{IM+r}")
        p(f"v_fmac_f32 v{hi}, v{L+1}, v{hr}")
        p(f"v_mov_b32 v{hr}, v{tr}")
    p("s_barrier")
    p("s_lshl_b32 s66, s50, 9")
    p("v_lshl_add_u32 v18, v0, 3, s66")
    p(f"ds_write_b64 v18, {vr(hr,2)}")
    p("s_waitcnt lgkmcnt(0)")
    p("s_barrier")
    p("v_lshlrev_b32 v18, 3, v23")
    SUB = 60
    for j in range(8):
        p(f"ds_read_b64 {vr(SUB+2*j,2)}, v18 offset:{j*256}")
    p("s_lshl_b32 s66, s50, 1")
    p("v_add_u32 v19, s66, v22")
    cr, ci = 96, 97
    kr, ki = 78, 79
    if second:
        p(f"v_mov_b32 v{cr}, 0")
        p(f"v_mov_b32 v{ci}, 0")
        for c in range(15):
            p(f"s_cmp_le_u32 s51, {c}")
            p("s_cbranch_scc1 LC_hin_done")
            p(f"v_fma_f32 v{tr}, v{L+6}, v{cr}, v{EB+2*c}")
            p(f"v_fma_f32 v{tr}, -v{L+7}, v{ci}, v{tr}")
            p(f"v_fma_f32 v{ci}, v{L+6}, v{ci}, v{EB+2*c+1}")
            p(f"v_fmac_f32 v{ci}, v{L+7}, v{cr}")
            p(f"v_mov_b32 v{cr}, v{tr}")
        p.label("LC_hin_done")
    else:
        p(f"v_mov_b32 v{cr}, 0")
        p(f"v_mov_b32 v{ci}, 0")
    p("s_waitcnt lgkmcnt(0)")
    for j in range(8):
        if second:
            p(f"v_cmp_eq_u32 vcc, {j}, v19")
            p(f"v_cndmask_b32 v{kr}, v{kr}, v{cr}, vcc")
            p(f"v_cndmask_b32 v{ki}, v{ki}, v{ci}, vcc")
            if j == 7: break
        p(f"v_fma_f32 v{tr}, v{L+4}, v{cr}, v{SUB+2*j}")
        p(f"v_fma_f32 v{tr}, -v{L+5}, v{ci}, v{tr}")
        p(f"v_fma_f32 v{ci}, v{L+4}, v{ci}, v{SUB+2*j+1}")
        p(f"v_fmac_f32 v{ci}, v{L+5}, v{cr}")
        p(f"v_mov_b32 v{cr}, v{tr}")
    if not second:
        p("v_lshlrev_b32 v25, 2, v24")
        p("s_lshl_b32 s66, s51, 12")
        p(f"s_add_u32 s66, s66, {EE}")
        p(f"buffer_store_dwordx2 {vr(cr,2)}, v25, s[28:31], s66 offen")
    else:
        p(f"v_add_f32 v{L+2}, v{L+2}, v{L+2}")
        p(f"v_add_f32 v{L+3}, v{L+3}, v{L+3}")
        p("v_lshrrev_b32 v18, 3, v23")
        p("v_lshlrev_b32 v18, 10, v18")
        p("v_bfe_u32 v20, v23, 2, 1")
        p("v_lshl_add_u32 v18, v20, 9, v18")
        p("v_lshl_add_u32 v18, v22, 8, v18")
        p("v_and_b32 v20, 3, v23")
        p("v_lshl_add_u32 v18, v20, 2, v18")
        p("s_lshl_b32 s66, s51, 2")
        p("s_add_u32 s66, s66, s50")
        p("s_lshl_b32 s66, s66, 16")
        p("s_lshl_b32 s67, s52, 12")
        p("s_add_u32 s66, s66, s67")
        p(f"s_add_u32 s66, s66, {HF}")
        pr, pi = kr, ki
        for r in range(16):
            p(f"v_fmac_f32 v{RE+r}, v{L}, v{pr}")
            p(f"v_fmac_f32 v{IM+r}, v{L}, v{pi}")
            p(f"v_fma_f32 v{RE+r}, -v{L+1}, v{pi}, v{RE+r}")
            p(f"v_fmac_f32 v{IM+r}, v{L+1}, v{pr}")
            pr, pi = RE + r, IM + r
            t0 = 80 + 2 * (r & 3)
            p(f"v_mul_f32 v{t0}, v{L+2}, v{pr}")
            p(f"v_mul_f32 v{t0+1}, v{L+2}, v{pi}")
            p(f"v_fma_f32 v{t0}, -v{L+3}, v{pi}, v{t0}")
            p(f"v_fma_f32 v{t0+1}, -v{L+3}, v{pr}, -v{t0+1}")
            p(f"v_cvt_pk_bf16_f32 v{150+r}, v{t0}, v{t0+1}")
            p(f"buffer_store_dword v{150+r}, v18, s[28:31], s66 offen offset:{r*16}")
    p.label(f"L{nm}_end")
    p("s_endpgm")
    return finish(p, "ssm" + nm)
```

```python
import sys
from common import *
from k_qkv import build_qkv
from k_ssm import build_ssm
from k_attn import build_attn
from k_final import build_final
ff = "--fallback" in sys.argv
ks = [("qkv_kernel", build_qkv(), 256, 256, 163840, None),
      ("ssmb_kernel", build_ssm(False), 256, 256, 131072, None),
      ("ssmc_kernel", build_ssm(True), 256, 256, 131072, None),
      ("attn_kernel", build_attn(ff), 256, 512, 8*4*2304, None),
      ("final_kernel", build_final(), 256, 512, 16384, None)]
out = sys.argv[1] if len(sys.argv) > 1 and not sys.argv[1].startswith("--") else "gated_mix__ssm_conv_s5__softmax_full_mha__prompt.s"
open(out, "w").write(file_text(ks))
```

```python
from asmlib import Prog, Ins

QF = 0x000000
KF = 0x200000
VF = 0x400000
OF = 0x1002000
ON = 0x600000
HF = 0x800000
CF = 0xC00000
WOF = 0xD00000
GG = 0xD80000
EE = 0xD90000
WS_USED = 0x1210000

A_X, A_LRE, A_LIM, A_BRE, A_BIM, A_CRE, A_CIM, A_LOGDT, A_DSKIP, A_BX, A_WQKV, A_WO, A_GATE, A_OUT, A_DBG, A_WS = [8 * i for i in range(16)]

class VM:
    def __init__(self, p): self.p = p; self.q = []
    def issue(self, text, tag=None):
        self.p(text); self.q.append(tag)
    def N(self, tags):
        if not isinstance(tags, (list, set)): tags = [tags]
        last = -1
        for i, t in enumerate(self.q):
            if t in tags: last = i
        return len(self.q) - 1 - last if last >= 0 else None
    def wait(self, tags, extra=""):
        n = self.N(tags)
        if n is None:
            if extra: self.p(f"s_waitcnt {extra}")
            return
        assert n <= 63
        self.p(f"s_waitcnt vmcnt({n}) {extra}".strip())
        self.q = self.q[len(self.q) - n:] if n else []
    def drain(self):
        self.p("s_waitcnt vmcnt(0)"); self.q = []

def srd(p, d, base, nbytes):
    p(f"s_mov_b32 s{d}, s{base}")
    p(f"s_and_b32 s{d+1}, s{base+1}, 0xffff" if False else f"s_mov_b32 s{d+1}, s{base+1}")
    p(f"s_mov_b32 s{d+2}, {nbytes:#x}")
    p(f"s_mov_b32 s{d+3}, 0x00020000")

def vr(a, n=1): return f"v{a}" if n == 1 else f"v[{a}:{a+n-1}]"
def sr(a, n=1): return f"s{a}" if n == 1 else f"s[{a}:{a+n-1}]"

def kernel_text(name, prog, vgpr=None, sgpr=None):
    mv, ms = prog.max_regs()
    vg = vgpr or mv
    assert vg >= mv, (name, vg, mv)
    vg = max(vg, 8)
    acc = (vg + 3) // 4 * 4
    sg = max(sgpr or ms, 16)
    body = f""".globl {name}
.p2align 8
.type {name},@function
{name}:
{prog.text()}"""
    desc = f""".p2align 6
.amdhsa_kernel {name}
  .amdhsa_next_free_vgpr {vg}
  .amdhsa_next_free_sgpr {min(sg, 102)}
  .amdhsa_accum_offset {acc}
  .amdhsa_group_segment_fixed_size 0
  .amdhsa_kernarg_size 128
  .amdhsa_user_sgpr_count 2
  .amdhsa_user_sgpr_kernarg_segment_ptr 1
  .amdhsa_system_sgpr_workgroup_id_x 1
.end_amdhsa_kernel
"""
    print(f"{name}: vgpr={mv} sgpr={ms} ninstr={sum(1 for x in prog.ins if x.kind not in ('label','dir'))}")
    return body, desc

HEADER = open("gated_mix__ssm_conv_s5__softmax_full_mha__prompt.s.ref").read().split("; Override launch")[0]

def file_text(kernels):
    out = HEADER
    for (name, prog, grid, block, lds, vg) in kernels:
        out += f"; @launch kernel={name} grid=({grid},1,1) block=({block},1,1) lds={lds}\n"
    out += '.amdgcn_target "amdgcn-amd-amdhsa--gfx950"\n.text\n'
    descs = ""
    seen = set()
    for (name, prog, grid, block, lds, vg) in kernels:
        if name in seen: continue
        seen.add(name)
        b, d = kernel_text(name, prog, vg)
        out += b; descs += d
    out += '.section .rodata,"a"\n' + descs
    return out

def finish(p, name):
    n = p.fix_hazards()
    errs = p.check_waits()
    for e in errs: print(f"  [wait] {name}: {e}")
    return p

import os
STAMP = os.environ.get("STAMP", "") != ""
STAMP_OFF = 0xE00000
class Stamps:
    def __init__(self, p, kid): self.p = p; self.n = 0; self.kid = kid
    def start(self): self.mark()
    def mark(self):
        if not STAMP: return
        assert self.n < 8
        p = self.p
        p("s_memtime s[100:101]"); p("s_memrealtime s[82:83]"); p("s_waitcnt lgkmcnt(0)")
        p(f"s_mov_b32 s{84+self.n}, s100"); p(f"s_mov_b32 s{92+self.n}, s82"); self.n += 1
    def end(self, srd_ws, wave_s, nwaves, vtmp):
        if not STAMP: return
        p = self.p
        p("s_waitcnt vmcnt(0)")
        self.mark()
        for k in range(self.n, 8):
            p(f"s_mov_b32 s{84+k}, 0"); p(f"s_mov_b32 s{92+k}, 0")
        p(f"s_mul_i32 s82, s2, {nwaves}")
        p(f"s_add_u32 s82, s82, s{wave_s}")
        p("s_lshl_b32 s82, s82, 6")
        p(f"s_add_u32 s82, s82, {STAMP_OFF + self.kid * 0x40000}")
        p(f"v_mov_b32 v{vtmp}, 0")
        for i in range(16):
            p(f"v_mov_b32 v{vtmp+1}, s{84+i}")
            p(f"buffer_store_dword v{vtmp+1}, v{vtmp}, s[{srd_ws}:{srd_ws+3}], s82 offen offset:{4*i}")
        p("s_waitcnt vmcnt(0)")
```

```python
from common import *
import math, struct
def f2u(x): return struct.unpack("<I", struct.pack("<f", x))[0]

def cmul(p, dr, di, ar, ai, br, bi, t=None):
    p(f"v_mul_f32 v{dr}, v{ar}, v{br}")
    p(f"v_mul_f32 v{di}, v{ar}, v{bi}")
    p(f"v_fma_f32 v{dr}, -v{ai}, v{bi}, v{dr}")
    p(f"v_fmac_f32 v{di}, v{ai}, v{br}")

def lam_setup(p, vm, L, tmp, srd_lre, srd_lim, srd_ldt, voff):
    vm.issue(f"buffer_load_ushort v{tmp}, v{voff}, s[{srd_lre}:{srd_lre+3}], 0 offen", "lam")
    vm.issue(f"buffer_load_ushort v{tmp+1}, v{voff}, s[{srd_lim}:{srd_lim+3}], 0 offen", "lam")
    vm.issue(f"buffer_load_ushort v{tmp+2}, v{voff}, s[{srd_ldt}:{srd_ldt+3}], 0 offen", "lam")

def lam_compute(p, L, t):
    log2e = math.log2(math.e)
    for i in range(3): p(f"v_lshlrev_b32 v{t+i}, 16, v{t+i}")
    p(f"v_mul_f32 v{t+2}, {f2u(log2e):#x}, v{t+2}")
    p(f"v_exp_f32 v{t+2}, v{t+2}")
    p(f"v_cvt_pk_bf16_f32 v{t+2}, v{t+2}, v{t+2}")
    p(f"v_and_b32 v{t+2}, 0xffff0000, v{t+2}")
    p(f"v_mul_f32 v{t+3}, v{t+2}, v{t}")
    p(f"v_mul_f32 v{t+4}, v{t+2}, v{t+1}")
    p(f"v_mul_f32 v{t+3}, {f2u(log2e):#x}, v{t+3}")
    p(f"v_exp_f32 v{t+3}, v{t+3}")
    p(f"v_mul_f32 v{t+4}, {f2u(1/(2*math.pi)):#x}, v{t+4}")
    p(f"v_rndne_f32 v{t+5}, v{t+4}")
    p(f"v_sub_f32 v{t+4}, v{t+4}, v{t+5}")
    p(f"v_cos_f32 v{t+5}, v{t+4}")
    p(f"v_sin_f32 v{t+6}, v{t+4}")
    p(f"v_mul_f32 v{L}, v{t+3}, v{t+5}")
    p(f"v_mul_f32 v{L+1}, v{t+3}, v{t+6}")
    p(f"v_add_f32 v{t+3}, -1.0, v{L}")
    p(f"v_mul_f32 v{t+4}, v{t}, v{t}")
    p(f"v_fmac_f32 v{t+4}, v{t+1}, v{t+1}")
    p(f"v_rcp_f32 v{t+4}, v{t+4}")
    p(f"v_mul_f32 v{t+5}, v{t+3}, v{t}")
    p(f"v_fmac_f32 v{t+5}, v{L+1}, v{t+1}")
    p(f"v_mul_f32 v{t+6}, v{L+1}, v{t}")
    p(f"v_fma_f32 v{t+6}, -v{t+3}, v{t+1}, v{t+6}")
    p(f"v_mul_f32 v{L+2}, v{t+5}, v{t+4}")
    p(f"v_mul_f32 v{L+3}, v{t+6}, v{t+4}")
    a, b = L, t
    seq = [(L, t), (t, t+2), (t+2, t), (t, L+4), (L+4, t), (t, t+2), (t+2, L+6)]
    for s_, d_ in seq:
        cmul(p, d_, d_+1, s_, s_+1, s_, s_+1)

def build_ssm(second):
    nm = "C" if second else "B"
    p = Prog(); vm = VM(p)
    p("s_cmp_ge_u32 s2, 256")
    p(f"s_cbranch_scc1 L{nm}_end")
    st_ = Stamps(p, 2 if second else 1); st_.start()
    p(f"s_load_dwordx2 s[4:5], s[0:1], {A_X}")
    p(f"s_load_dwordx4 s[8:11], s[0:1], {A_LRE}")
    p(f"s_load_dwordx4 s[12:15], s[0:1], {A_BRE}")
    p(f"s_load_dwordx2 s[16:17], s[0:1], {A_LOGDT}")
    p(f"s_load_dwordx2 s[18:19], s[0:1], {A_WS}")
    p("v_lshrrev_b32 v1, 6, v0")
    p("v_and_b32 v0, 63, v0")
    p("s_and_b32 s53, s2, 7")
    p("v_readfirstlane_b32 s50, v1")
    p("s_lshr_b32 s54, s2, 3")
    p("s_lshr_b32 s55, s53, 1")
    p("s_lshl_b32 s55, s55, 2")
    p("s_and_b32 s56, s54, 3")
    p("s_add_u32 s51, s55, s56")
    p("s_and_b32 s55, s53, 1")
    p("s_lshl_b32 s55, s55, 3")
    p("s_lshr_b32 s56, s54, 2")
    p("s_add_u32 s52, s55, s56")
    XO = 2; BO = 6; XA = 10; BA = 14
    p("s_lshl_b32 s55, s51, 7")
    p("s_lshl_b32 s56, s50, 5")
    p("s_add_u32 s55, s55, s56")
    p("s_lshl_b32 s57, s55, 10")
    p("v_lshrrev_b32 v22, 3, v0")
    p("v_and_b32 v23, 7, v0")
    p("v_bfe_u32 v24, v22, 2, 1")
    p("v_and_b32 v25, 3, v22")
    p("v_lshl_add_u32 v24, v24, 4, v25")
    for j in range(4):
        p(f"v_add_u32 v18, {8*j}, v22")
        p("v_lshrrev_b32 v19, 1, v18")
        p("v_and_b32 v19, 7, v19")
        p("v_xor_b32 v19, v19, v23")
        p("v_lshlrev_b32 v19, 4, v19")
        p("v_lshl_add_u32 v19, v24, 10, v19")
        p(f"v_add_u32 v19, {j*4096 - j*1024}, v19")
        p(f"v_add_u32 v{XO+j}, s57, v19")
    p("s_and_b32 s58, s50, 1")
    p("s_lshl_b32 s58, s58, 4")
    p("s_lshl_b32 s59, s52, 5")
    p("s_add_u32 s58, s58, s59")
    p("s_lshl_b32 s58, s58, 10")
    for j in range(2):
        p(f"v_add_u32 v18, {8*j}, v22")
        p("v_lshrrev_b32 v19, 1, v18")
        p("v_and_b32 v19, 7, v19")
        p("v_xor_b32 v19, v19, v23")
        p("v_lshlrev_b32 v19, 4, v19")
        p("v_lshl_add_u32 v19, v18, 10, v19")
        if j: p(f"v_subrev_u32 v19, {j*1024}, v19")
        p(f"v_add_u32 v{BO+j}, s58, v19")
    p("s_waitcnt lgkmcnt(0)")
    srd(p, 20, 4, 2048*1024)
    p("s_cmp_lt_u32 s50, 2")
    p("s_cselect_b32 s24, s12, s14")
    p("s_cselect_b32 s25, s13, s15")
    p(f"s_mov_b32 s26, {512*1024}")
    p("s_mov_b32 s27, 0x00020000")
    srd(p, 28, 18, WS_USED)
    srd(p, 32, 8, 1024)
    srd(p, 36, 10, 1024)
    srd(p, 40, 16, 1024)
    XB = 65536
    p("s_lshl_b32 s61, s50, 12")
    p(f"s_add_u32 s61, s61, {XB}")
    p("s_lshl_b32 s62, s50, 11")
    def dma_x(st):
        p(f"s_add_u32 m0, s61, {(st & 3) * 16384}")
        p(f"s_movk_i32 s63, {st*128}")
        for j in range(4):
            vm.issue(f"buffer_load_dwordx4 v{XO+j}, s[20:23], s63 offen offset:{j*1024} lds", ("x", st))
    def dma_b(st):
        p(f"s_add_u32 m0, s62, {st * 8192}")
        p(f"s_movk_i32 s63, {st*128}")
        for j in range(2):
            vm.issue(f"buffer_load_dwordx4 v{BO+j}, s[24:27], s63 offen offset:{j*1024} lds", ("w", st))
    for st in range(4):
        dma_x(st); dma_b(st)
    for st in range(4, 8): dma_b(st)
    p("v_lshrrev_b32 v22, 5, v0")
    p("v_and_b32 v23, 31, v0")
    LT = 100; L = 110
    p("s_lshl_b32 s65, s52, 6")
    p("v_lshl_add_u32 v24, v23, 1, s65")
    lam_setup(p, vm, L, LT, 32, 36, 40, 24)
    EB = 120
    if second:
        p("v_lshlrev_b32 v25, 2, v24")
        p(f"v_add_u32 v25, {EE}, v25")
        for c in range(15):
            p(f"s_mov_b32 s66, {c*4096}")
            vm.issue(f"buffer_load_dwordx2 {vr(EB+2*c,2)}, v25, s[28:31], s66 offen", "E")
    p("v_lshrrev_b32 v18, 1, v23")
    p("v_and_b32 v18, 7, v18")
    p("v_lshlrev_b32 v19, 7, v23")
    p("v_add_u32 v21, s61, v19")
    for ks in range(4):
        p(f"v_add_u32 v20, {2*ks}, v22")
        p("v_xor_b32 v20, v20, v18")
        p(f"v_lshl_add_u32 v{XA+ks}, v20, 4, v21")
        p(f"v_lshl_add_u32 v{BA+ks}, v20, 4, v19")
    RE, IM = 26, 42
    FR = [60, 72, 84]
    def read_frags(kk):
        b = FR[kk % 3]; st = kk >> 2; ks = kk & 3
        p(f"ds_read_b128 {vr(b,4)}, v{XA+ks} offset:{(st & 3) * 16384}")
        p(f"ds_read_b128 {vr(b+4,4)}, v{BA+ks} offset:{st * 8192}")
        p(f"ds_read_b128 {vr(b+8,4)}, v{BA+ks} offset:{st * 8192 + 4096}")
    def sync_stage(st):
        vm.wait([("x", st), ("w", st)])
        p("s_barrier")
    st_.mark()
    sync_stage(0)
    st_.mark()
    read_frags(0); read_frags(1)
    for kk in range(32):
        b = FR[kk % 3]
        nxt = kk + 2
        if nxt < 32:
            if nxt % 4 == 0: sync_stage(nxt >> 2)
            read_frags(nxt)
            p("s_waitcnt lgkmcnt(6)")
        elif nxt == 32: p("s_waitcnt lgkmcnt(3)")
        else: p("s_waitcnt lgkmcnt(0)")
        p(f"v_mfma_f32_32x32x16_bf16 {vr(RE,16)}, {vr(b,4)}, {vr(b+4,4)}, {vr(RE,16) if kk else 0}")
        p(f"v_mfma_f32_32x32x16_bf16 {vr(IM,16)}, {vr(b,4)}, {vr(b+8,4)}, {vr(IM,16) if kk else 0}")
        if kk % 4 == 3 and (kk >> 2) + 4 < 8:
            dma_x((kk >> 2) + 4)
    st_.mark()
    vm.drain()
    lam_compute(p, L, LT)
    hr, hi, tr = 96, 97, 98
    p(f"v_mov_b32 v{hr}, v{RE}")
    p(f"v_mov_b32 v{hi}, v{IM}")
    for r in range(1, 16):
        p(f"v_fma_f32 v{tr}, v{L}, v{hr}, v{RE+r}")
        p(f"v_fma_f32 v{tr}, -v{L+1}, v{hi}, v{tr}")
        p(f"v_fma_f32 v{hi}, v{L}, v{hi}, v{IM+r}")
        p(f"v_fmac_f32 v{hi}, v{L+1}, v{hr}")
        p(f"v_mov_b32 v{hr}, v{tr}")
    p("s_barrier")
    p("s_lshl_b32 s66, s50, 9")
    p("v_lshl_add_u32 v18, v0, 3, s66")
    p(f"ds_write_b64 v18, {vr(hr,2)}")
    p("s_waitcnt lgkmcnt(0)")
    p("s_barrier")
    p("v_lshlrev_b32 v18, 3, v23")
    SUB = 60
    for j in range(8):
        p(f"ds_read_b64 {vr(SUB+2*j,2)}, v18 offset:{j*256}")
    p("s_lshl_b32 s66, s50, 1")
    p("v_add_u32 v19, s66, v22")
    cr, ci = 96, 97
    kr, ki = 78, 79
    if second:
        p(f"v_mov_b32 v{cr}, 0")
        p(f"v_mov_b32 v{ci}, 0")
        for c in range(15):
            p(f"s_cmp_le_u32 s51, {c}")
            p("s_cbranch_scc1 LC_hin_done")
            p(f"v_fma_f32 v{tr}, v{L+6}, v{cr}, v{EB+2*c}")
            p(f"v_fma_f32 v{tr}, -v{L+7}, v{ci}, v{tr}")
            p(f"v_fma_f32 v{ci}, v{L+6}, v{ci}, v{EB+2*c+1}")
            p(f"v_fmac_f32 v{ci}, v{L+7}, v{cr}")
            p(f"v_mov_b32 v{cr}, v{tr}")
        p.label("LC_hin_done")
    else:
        p(f"v_mov_b32 v{cr}, 0")
        p(f"v_mov_b32 v{ci}, 0")
    p("s_waitcnt lgkmcnt(0)")
    for j in range(8):
        if second:
            p(f"v_cmp_eq_u32 vcc, {j}, v19")
            p(f"v_cndmask_b32 v{kr}, v{kr}, v{cr}, vcc")
            p(f"v_cndmask_b32 v{ki}, v{ki}, v{ci}, vcc")
            if j == 7: break
        p(f"v_fma_f32 v{tr}, v{L+4}, v{cr}, v{SUB+2*j}")
        p(f"v_fma_f32 v{tr}, -v{L+5}, v{ci}, v{tr}")
        p(f"v_fma_f32 v{ci}, v{L+4}, v{ci}, v{SUB+2*j+1}")
        p(f"v_fmac_f32 v{ci}, v{L+5}, v{cr}")
        p(f"v_mov_b32 v{cr}, v{tr}")
    if not second:
        p("v_lshlrev_b32 v25, 2, v24")
        p("s_lshl_b32 s66, s51, 12")
        p(f"s_add_u32 s66, s66, {EE}")
        p(f"buffer_store_dwordx2 {vr(cr,2)}, v25, s[28:31], s66 offen")
    else:
        p(f"v_add_f32 v{L+2}, v{L+2}, v{L+2}")
        p(f"v_add_f32 v{L+3}, v{L+3}, v{L+3}")
        p("v_lshrrev_b32 v18, 3, v23")
        p("v_lshlrev_b32 v18, 10, v18")
        p("v_bfe_u32 v20, v23, 2, 1")
        p("v_lshl_add_u32 v18, v20, 9, v18")
        p("v_lshl_add_u32 v18, v22, 8, v18")
        p("v_and_b32 v20, 3, v23")
        p("v_lshl_add_u32 v18, v20, 2, v18")
        p("s_lshl_b32 s66, s51, 2")
        p("s_add_u32 s66, s66, s50")
        p("s_lshl_b32 s66, s66, 16")
        p("s_lshl_b32 s67, s52, 12")
        p("s_add_u32 s66, s66, s67")
        p(f"s_add_u32 s66, s66, {HF}")
        pr, pi = kr, ki
        for r in range(16):
            p(f"v_fmac_f32 v{RE+r}, v{L}, v{pr}")
            p(f"v_fmac_f32 v{IM+r}, v{L}, v{pi}")
            p(f"v_fma_f32 v{RE+r}, -v{L+1}, v{pi}, v{RE+r}")
            p(f"v_fmac_f32 v{IM+r}, v{L+1}, v{pr}")
            pr, pi = RE + r, IM + r
            t0 = 80 + 2 * (r & 3)
            p(f"v_mul_f32 v{t0}, v{L+2}, v{pr}")
            p(f"v_mul_f32 v{t0+1}, v{L+2}, v{pi}")
            p(f"v_fma_f32 v{t0}, -v{L+3}, v{pi}, v{t0}")
            p(f"v_fma_f32 v{t0+1}, -v{L+3}, v{pr}, -v{t0+1}")
            p(f"v_cvt_pk_bf16_f32 v{150+r}, v{t0}, v{t0+1}")
            p(f"buffer_store_dword v{150+r}, v18, s[28:31], s66 offen offset:{r*16}")
    st_.mark()
    st_.end(28, 50, 4, 4)
    p.label(f"L{nm}_end")
    p("s_endpgm")
    return finish(p, "ssm" + nm)
```

```python
import sys, os, math, struct
from common import *
from k_ssm import cmul, lam_compute
def f2u(x): return struct.unpack("<I", struct.pack("<f", x))[0]
QSCALE = 0.25 * math.log2(math.e)

FL1 = 0xDA0000
FLE = 0xDB0000
EPO = 0xDB8000
FLH = 0xDC0000
FLO = 0xDD0000
assert FLO + 0x20000 <= 0xE00000

XR = 0
WR = 81920
SCR = 131072
EXC = 149504
LDS_BYTES = 151552
SPIN = 400000

OPT = dict(prio_drop=2, ev=(1, 2, 2, 2, 5), kvsc="sc1", fallback=False)
OPT.update(eval(os.environ.get("OPT", "{}")))

def publish(p, soff):
    p("v_mov_b32 v4, s32"); p("v_mov_b32 v5, s33")
    p("s_mov_b64 exec, 1")
    p(f"buffer_store_dwordx2 v[4:5], off, s[12:15], s{soff} sc1")
    p("s_mov_b64 exec, -1")

_pc = [0]
def poll(p, vaddr, soff, dontcare=None):
    n = _pc[0]; _pc[0] += 1
    p(f"s_mov_b32 s81, {SPIN}")
    p.label(f"Lpoll{n}")
    p(f"buffer_load_dwordx2 v[4:5], v{vaddr}, s[12:15], s{soff} offen sc1")
    p("s_sub_u32 s81, s81, 1")
    p("s_cbranch_scc1 Lpollx%d" % n)
    p("s_waitcnt vmcnt(0)")
    p("v_cmp_eq_u32 s[78:79], s32, v4")
    p("v_cmp_eq_u32 vcc, s33, v5")
    p("s_and_b64 s[78:79], s[78:79], vcc")
    if dontcare is not None: p(f"s_or_b64 s[78:79], s[78:79], s[{dontcare}:{dontcare+1}]")
    p("s_cmp_eq_u64 s[78:79], -1")
    p(f"s_cbranch_scc1 Lpollx{n}")
    p("s_sleep 2")
    p(f"s_branch Lpoll{n}")
    p.label(f"Lpollx{n}")
    p("s_waitcnt vmcnt(0)")

def build():
    p = Prog()
    st_ = Stamps(p, 0)
    p("s_cmp_ge_u32 s2, 256")
    p("s_cbranch_scc1 L_end")
    st_.start()
    p("s_load_dwordx16 s[40:55], s[0:1], 0")
    p(f"s_load_dwordx2 s[56:57], s[0:1], {A_DSKIP}")
    p(f"s_load_dwordx2 s[58:59], s[0:1], {A_WS}")
    p(f"s_load_dwordx8 s[60:67], s[0:1], {A_WQKV}")
    p("v_lshrrev_b32 v1, 6, v0")
    p("v_and_b32 v0, 63, v0")
    p("s_and_b32 s68, s2, 7")
    p("v_readfirstlane_b32 s3, v1")
    p("s_lshr_b32 s69, s2, 3")
    p("s_lshr_b32 s70, s68, 1")
    p("s_lshl_b32 s70, s70, 2")
    p("s_and_b32 s71, s69, 3")
    p("s_add_u32 s34, s70, s71")
    p("s_and_b32 s70, s68, 1")
    p("s_lshl_b32 s70, s70, 3")
    p("s_lshr_b32 s39, s69, 2")
    p("s_add_u32 s35, s70, s39")
    p("s_lshl_b32 s70, s68, 2")
    p("s_add_u32 s38, s70, s71")
    p("s_lshr_b32 s71, s69, 3")
    p("s_add_u32 s36, s70, s71")
    p("s_and_b32 s37, s69, 7")
    p("s_and_b32 s4, s3, 3")
    p("s_lshr_b32 s5, s3, 2")
    p("v_lshrrev_b32 v1, 5, v0")
    p("v_and_b32 v2, 31, v0")
    p("v_lshlrev_b32 v3, 4, v0")
    p("s_mul_i32 s6, s4, 20480")
    p("s_lshl_b32 s7, s34, 2")
    p("s_add_u32 s7, s7, s4")
    p("s_cmp_eq_u32 s5, 0")
    p("s_cbranch_scc0 L_G1")

    vm = VM(p)
    XA = 8; WA = 12
    p("v_lshrrev_b32 v18, 1, v2")
    p("v_and_b32 v18, 7, v18")
    p("v_lshl_add_u32 v19, v2, 7, s6")
    for ks in range(4):
        p(f"v_add_u32 v20, {2*ks}, v1")
        p("v_xor_b32 v20, v20, v18")
        p(f"v_lshl_add_u32 v{XA+ks}, v20, 4, v19")
    p("v_bfe_u32 v18, v0, 2, 2")
    p("v_lshl_add_u32 v18, v1, 3, v18")
    p("v_mul_u32_u24 v18, 192, v18")
    p("v_bfe_u32 v19, v0, 4, 1")
    p("v_lshl_add_u32 v18, v19, 5, v18")
    p("v_and_b32 v19, 3, v0")
    p("v_lshl_add_u32 v18, v19, 3, v18")
    p(f"v_add_u32 v{WA}, {WR}, v18")
    p("s_lshl_b32 s68, s34, 7")
    p("s_lshl_b32 s69, s35, 3")
    p("s_add_u32 s68, s68, s69")
    p("s_lshl_b32 s69, s4, 1")
    p("s_add_u32 s68, s68, s69")
    p("v_add_u32 v160, s68, v1")
    p("v_lshlrev_b32 v161, 5, v2")
    p("v_lshl_add_u32 v162, v160, 10, v161")
    p("s_waitcnt lgkmcnt(0)")
    srd(p, 8, 40, 2048*1024)
    srd(p, 12, 58, WS_USED)
    srd(p, 24, 64, 1024)
    p(f"s_mov_b32 s68, {EPO}")
    vm.issue("buffer_load_dword v163, off, s[12:15], s68 sc1", "g")
    vm.issue("buffer_load_dwordx4 v[164:167], v162, s[8:11], 0 offen", "g")
    vm.issue("buffer_load_dwordx4 v[168:171], v162, s[8:11], 0 offen offset:16", "g")
    vm.issue("buffer_load_dwordx4 v[172:175], v161, s[24:27], 0 offen", "g")
    vm.issue("buffer_load_dwordx4 v[176:179], v161, s[24:27], 0 offen offset:16", "g")
    p("v_and_b32 v13, 0x33, v0")
    p("v_bfe_u32 v19, v0, 2, 1")
    p("v_lshl_or_b32 v13, v19, 3, v13")
    p("v_bfe_u32 v19, v0, 3, 1")
    p("v_lshl_or_b32 v13, v19, 2, v13")
    p("v_lshlrev_b32 v13, 4, v13")
    p(f"v_add_u32 v13, {KF}, v13")
    p("v_bfe_u32 v14, v0, 4, 1")
    p("v_lshlrev_b32 v14, 16, v14")
    p("v_lshl_add_u32 v14, v1, 8, v14")
    p("v_and_b32 v20, 15, v0")
    p("v_lshl_add_u32 v14, v20, 4, v14")
    p(f"v_add_u32 v14, {VF}, v14")
    p("s_lshl_b32 s76, s7, 10")
    p("s_lshl_b32 s77, s35, 17")
    p("s_add_u32 s76, s76, s77")
    p("s_add_u32 s77, s76, 0x10000")
    vm.drain()
    p("v_readfirstlane_b32 s32, v163")
    p("v_mov_b32 v180, 0")
    for i in range(8):
        p(f"v_dot2_f32_bf16 v180, v{164+i}, v{172+i}, v180")
    p("s_mul_i32 s32, s32, 0x9E3779B1")
    p("s_add_u32 s32, s32, 0x7F4A7C15")
    p("s_xor_b32 s33, s32, 0x5BD1E995")
    for sh in (8, 4, 2, 1):
        p(f"v_add_f32_dpp v180, v180, v180 row_ror:{sh} row_mask:0xf bank_mask:0xf")
    p("ds_swizzle_b32 v181, v180 offset:0x401F")
    p("s_waitcnt lgkmcnt(0)")
    p("v_add_f32 v180, v180, v181")
    p("v_cvt_pk_bf16_f32 v180, v180, v180")
    p("v_and_b32 v180, 0xffff0000, v180")
    p(f"v_mul_f32 v180, {f2u(-math.log2(math.e)):#x}, v180")
    p("v_exp_f32 v180, v180")
    p("v_add_f32 v180, 1.0, v180")
    p("v_rcp_f32 v180, v180")
    p("v_cvt_pk_bf16_f32 v180, v180, v180")
    p("v_and_b32 v180, 0xffff0000, v180")
    p("v_lshlrev_b32 v160, 2, v160")
    p(f"s_mov_b32 s68, {GG}")
    p("buffer_store_dword v180, v160, s[12:15], s68 offen sc1")
    ACC = [40, 56, 104]; FR = [120, 136]
    def rd0(kk):
        b = FR[kk & 1]; st = kk >> 2; ks = kk & 3; sl = st % 5
        p(f"ds_read_b128 {vr(b,4)}, v{XA+ks} offset:{sl * 4096}")
        for T in range(3):
            for e in range(2):
                p(f"ds_read_b64_tr_b16 {vr(b+4+4*T+2*e,2)}, v{WA} offset:{sl*12288 + ks*3072 + e*768 + T*64}")
    def mm0(kk):
        b = FR[kk & 1]
        c = [vr(a, 16) if kk else "0" for a in ACC]
        p(f"v_mfma_f32_32x32x16_bf16 {vr(ACC[0],16)}, {vr(b+4,4)}, {vr(b,4)}, {c[0]}")
        p(f"v_mfma_f32_32x32x16_bf16 {vr(ACC[1],16)}, {vr(b+8,4)}, {vr(b,4)}, {c[1]}")
        p(f"v_mfma_f32_32x32x16_bf16 {vr(ACC[2],16)}, {vr(b,4)}, {vr(b+12,4)}, {c[2]}")
    st_.mark()
    for st in range(8):
        k = 4 * st
        p("s_barrier")
        rd0(k); rd0(k + 1)
        p("s_waitcnt lgkmcnt(7)"); mm0(k); rd0(k + 2)
        p("s_waitcnt lgkmcnt(7)"); mm0(k + 1); rd0(k + 3)
        p("s_waitcnt lgkmcnt(7)"); mm0(k + 2)
        p("s_waitcnt lgkmcnt(0)"); mm0(k + 3)
    st_.mark()
    p(f"s_mov_b32 s75, {f2u(QSCALE):#x}")
    T = 120
    for hd in range(2):
        a = ACC[hd]
        for i in range(4):
            p(f"v_cvt_pk_bf16_f32 v{T+4+i}, v{a+8+2*i}, v{a+8+2*i+1}")
        p(f"buffer_store_dwordx4 {vr(T+4,4)}, v13, s[12:15], s{76+hd} offen sc1")
        T += 8
    a = ACC[2]
    for i in range(8):
        p(f"v_cvt_pk_bf16_f32 v{T+i}, v{a+2*i}, v{a+2*i+1}")
    p(f"buffer_store_dwordx4 {vr(T,4)}, v14, s[12:15], s76 offen sc1")
    p(f"buffer_store_dwordx4 {vr(T+4,4)}, v14, s[12:15], s76 offen offset:512 sc1")
    T = 120
    for hd in range(2):
        a = ACC[hd]
        for i in range(4):
            p(f"v_cvt_pk_bf16_f32 v{T+i}, v{a+2*i}, v{a+2*i+1}")
        for i in range(4):
            p(f"v_lshlrev_b32 v{a+2*i}, 16, v{T+i}")
            p(f"v_and_b32 v{a+2*i+1}, 0xffff0000, v{T+i}")
        for i in range(8):
            p(f"v_mul_f32 v{a+i}, s75, v{a+i}")
        for i in range(4):
            p(f"v_cvt_pk_bf16_f32 v{T+i}, v{a+2*i}, v{a+2*i+1}")
        p(f"buffer_store_dwordx4 {vr(T,4)}, v3, s[12:15], s{76+hd} offen sc1")
        T += 8
    p("s_barrier")
    p("s_lshl_b32 s68, s35, 12")
    p("s_lshl_b32 s69, s7, 6")
    p("s_add_u32 s68, s68, s69")
    p(f"s_add_u32 s68, s68, {FL1}")
    p("s_waitcnt vmcnt(0)")
    publish(p, 68)
    st_.mark()
    p("s_barrier")
    p("s_branch L_ATT")

    p.label("L_G1")
    st1 = Stamps(p, 0); st1.n = 1
    vm = VM(p)
    XO = 240; WO = 244; BO = 247; XA1 = 224; BA = 228
    XF = 8; BF = [136, 144, 152]; RE = 168; IM = 184; L = 200; CAR = 208; LT = 210
    p("s_lshl_b32 s68, s7, 15")
    p("v_lshrrev_b32 v22, 3, v0")
    p("v_and_b32 v23, 7, v0")
    p("v_bfe_u32 v24, v22, 2, 1")
    p("v_and_b32 v25, 3, v22")
    p("v_lshl_add_u32 v24, v24, 4, v25")
    p("s_lshl_b32 s69, s35, 15")
    for j in range(4):
        p(f"v_add_u32 v18, {8*j}, v22")
        p("v_lshrrev_b32 v19, 1, v18")
        p("v_and_b32 v19, 7, v19")
        p("v_xor_b32 v19, v19, v23")
        p("v_lshlrev_b32 v19, 4, v19")
        p("v_lshl_add_u32 v20, v24, 10, v19")
        p(f"v_add_u32 v20, {j*4096 - j*1024}, v20")
        p(f"v_add_u32 v{XO+j}, s68, v20")
        p("v_lshl_add_u32 v20, v22, 10, v19")
        p(f"v_add_u32 v20, {j*8192 - j*1024}, v20")
        p(f"v_add_u32 v{BO+j}, s69, v20")
    p("s_lshl_b32 s70, s35, 6")
    p("s_mul_i32 s71, s4, 16*3072")
    p("s_add_u32 s70, s70, s71")
    p("s_movk_i32 s72, 3072")
    for j in range(3):
        p(f"v_add_u32 v18, {64*j}, v0")
        p("v_mul_u32_u24 v19, 43691, v18")
        p("v_lshrrev_b32 v19, 19, v19")
        p("v_mul_u32_u24 v20, 12, v19")
        p("v_sub_u32 v20, v18, v20")
        p("v_cmp_gt_u32 vcc, 8, v20")
        p("v_bfe_u32 v21, v20, 1, 1")
        p("v_lshlrev_b32 v21, 10, v21")
        p("v_lshrrev_b32 v26, 2, v20")
        p("v_lshl_add_u32 v21, v26, 5, v21")
        p("v_and_b32 v26, 1, v20")
        p("v_lshl_add_u32 v21, v26, 4, v21")
        p("v_lshlrev_b32 v26, 4, v20")
        p(f"v_add_u32 v26, {2048-128}, v26")
        p("v_cndmask_b32 v21, v26, v21, vcc")
        p("v_mad_u32_u24 v21, v19, s72, v21")
        if j: p(f"v_subrev_u32 v21, {j*1024}, v21")
        p(f"v_add_u32 v{WO+j}, s70, v21")
    p("s_mul_i32 s73, s4, 3072")
    p(f"s_add_u32 s73, s73, {WR}")
    p("s_waitcnt lgkmcnt(0)")
    srd(p, 8, 40, 2048*1024)
    srd(p, 16, 60, 512*3072)
    def dma(st):
        sl = st % 5
        p(f"s_add_u32 m0, s6, {sl * 4096}")
        if st < 8:
            p(f"s_movk_i32 s74, {st*128}")
            for j in range(4):
                vm.issue(f"buffer_load_dwordx4 v{XO+j}, s[8:11], s74 offen offset:{j*1024} lds", ("S", st))
            p(f"s_add_u32 m0, s73, {sl * 12288}")
            p(f"s_mov_b32 s74, {st*64*3072}")
            for j in range(3):
                vm.issue(f"buffer_load_dwordx4 v{WO+j}, s[16:19], s74 offen offset:{j*1024} lds", ("S", st))
        else:
            q = st - 8
            p(f"s_add_u32 s74, s75, {q*256}")
            for j in range(4):
                vm.issue(f"buffer_load_dwordx4 v{BO+j}, s[20:23], s74 offen offset:{j*1024} lds", ("S", st))
    dma(0); dma(1)
    srd(p, 12, 58, WS_USED)
    p("s_cmp_lt_u32 s4, 2")
    p("s_cselect_b32 s20, s46, s48")
    p("s_cselect_b32 s21, s47, s49")
    p(f"s_mov_b32 s22, {512*1024}")
    p("s_mov_b32 s23, 0x00020000")
    p("s_and_b32 s75, s4, 1")
    p("s_lshl_b32 s75, s75, 7")
    dma(2); dma(3); dma(4)
    p(f"s_mov_b32 s68, {EPO}")
    vm.issue("buffer_load_dword v163, off, s[12:15], s68 sc1", "lam")
    p("s_lshl_b32 s68, s35, 6")
    p("v_lshl_add_u32 v164, v2, 1, s68")
    srd(p, 24, 42, 1024)
    vm.issue(f"buffer_load_ushort v{LT}, v164, s[24:27], 0 offen", "lam")
    srd(p, 28, 44, 1024)
    vm.issue(f"buffer_load_ushort v{LT+1}, v164, s[28:31], 0 offen", "lam")
    p("s_mov_b32 s24, s54"); p("s_mov_b32 s25, s55")
    vm.issue(f"buffer_load_ushort v{LT+2}, v164, s[24:27], 0 offen", "lam")
    p("v_lshrrev_b32 v165, 1, v2")
    p("v_and_b32 v165, 7, v165")
    p("v_lshlrev_b32 v166, 7, v2")
    p("v_add_u32 v167, s6, v166")
    for ks in range(4):
        p(f"v_add_u32 v160, {2*ks}, v1")
        p("v_xor_b32 v160, v160, v165")
        p(f"v_lshl_add_u32 v{XA1+ks}, v160, 4, v167")
        p(f"v_lshl_add_u32 v{BA+ks}, v160, 4, v166")
        p(f"v_add_u32 v{BA+4+ks}, 40960, v{BA+ks}")
    st1.mark()
    for st in range(8):
        vm.wait(("S", st), "lgkmcnt(0)")
        p("s_barrier")
        for ks in range(4):
            p(f"ds_read_b128 {vr(XF + 16*st + 4*ks, 4)}, v{XA1+ks} offset:{(st % 5) * 4096}")
        if st >= 1: dma(st + 4)
        if st == 5:
            p("v_readfirstlane_b32 s32, v163")
            lam_compute(p, L, LT)
            p("s_mul_i32 s32, s32, 0x9E3779B1")
            p("s_add_u32 s32, s32, 0x7F4A7C15")
            p("s_xor_b32 s33, s32, 0x5BD1E995")
    st1.mark()
    vm.drain()
    p("s_barrier")
    slotq = [3, 4, 0, 1]
    def rd1(kk):
        b = BF[kk % 3]; s = kk >> 2; ks = kk & 3
        off = (s & 1) * 20480 + slotq[s >> 1] * 4096
        p(f"ds_read_b128 {vr(b,4)}, v{BA+ks} offset:{off}")
        p(f"ds_read_b128 {vr(b+4,4)}, v{BA+4+ks} offset:{off}")
    rd1(0); rd1(1)
    for kk in range(32):
        b = BF[kk % 3]
        if kk + 2 < 32:
            rd1(kk + 2); p("s_waitcnt lgkmcnt(4)")
        elif kk + 2 == 32: p("s_waitcnt lgkmcnt(2)")
        else: p("s_waitcnt lgkmcnt(0)")
        p(f"v_mfma_f32_32x32x16_bf16 {vr(RE,16)}, {vr(XF+4*kk,4)}, {vr(b,4)}, {vr(RE,16) if kk else 0}")
        p(f"v_mfma_f32_32x32x16_bf16 {vr(IM,16)}, {vr(XF+4*kk,4)}, {vr(b+4,4)}, {vr(IM,16) if kk else 0}")
    a0, a1 = 210, 212
    p("s_lshl_b32 s68, s4, 9")
    p(f"s_add_u32 s68, s68, {EXC}")
    p("v_lshl_add_u32 v18, v0, 3, s68")
    p(f"v_lshlrev_b32 v19, 3, v2")
    p(f"v_add_u32 v19, {EXC}, v19")
    p("s_lshl_b32 s68, s4, 1")
    p("v_add_u32 v20, s68, v1")
    hr, hi = RE, IM
    for r in range(1, 16):
        d = a0 if r & 1 else a1
        p(f"v_fma_f32 v{d}, v{L}, v{hr}, v{RE+r}")
        p(f"v_fma_f32 v{d+1}, v{L}, v{hi}, v{IM+r}")
        p(f"v_fma_f32 v{d}, -v{L+1}, v{hi}, v{d}")
        p(f"v_fmac_f32 v{d+1}, v{L+1}, v{hr}")
        hr, hi = d, d + 1
    p(f"ds_write_b64 v18, {vr(hr,2)}")
    p("s_waitcnt lgkmcnt(0)")
    st1.mark()
    p("s_barrier")
    SUB = 136
    for j in range(8):
        p(f"ds_read_b64 {vr(SUB+2*j,2)}, v19 offset:{j*256}")
    PW = 214
    p(f"v_mov_b32 v{CAR}, 0"); p(f"v_mov_b32 v{CAR+1}, 0")
    p(f"v_mov_b32 v{PW}, 1.0"); p(f"v_mov_b32 v{PW+1}, 0")
    p("v_mov_b32 v216, 1.0"); p("v_mov_b32 v217, 0")
    p("s_waitcnt lgkmcnt(0)")
    cr, ci = SUB, SUB + 1
    pr, pi = L + 4, L + 5
    for j in range(1, 8):
        p(f"v_cmp_eq_u32 vcc, {j}, v20")
        d = a0 if j & 1 else a1
        p(f"v_fma_f32 v{d}, v{L+4}, v{cr}, v{SUB+2*j}")
        p(f"v_fma_f32 v{d+1}, v{L+4}, v{ci}, v{SUB+2*j+1}")
        p(f"v_cndmask_b32 v{CAR}, v{CAR}, v{cr}, vcc")
        p(f"v_cndmask_b32 v{CAR+1}, v{CAR+1}, v{ci}, vcc")
        p(f"v_cndmask_b32 v{PW}, v{PW}, v{pr}, vcc")
        p(f"v_cndmask_b32 v{PW+1}, v{PW+1}, v{pi}, vcc")
        p(f"v_fma_f32 v{d}, -v{L+5}, v{ci}, v{d}")
        p(f"v_fmac_f32 v{d+1}, v{L+5}, v{cr}")
        cr, ci = d, d + 1
        if j < 7:
            q = 216 if j & 1 else 218
            cmul(p, q, q + 1, pr, pi, L + 4, L + 5)
            pr, pi = q, q + 1
    p("s_lshl_b32 s68, s35, 8")
    p("v_lshl_add_u32 v18, v2, 3, s68")
    p("s_lshl_b32 s68, s34, 12")
    p(f"s_add_u32 s68, s68, {EE}")
    p("s_cmp_eq_u32 s4, 0")
    p("s_cbranch_scc0 L_noE")
    p(f"buffer_store_dwordx2 {vr(cr,2)}, v18, s[12:15], s68 offen sc1")
    p.label("L_noE")
    p(f"v_mov_b32 v{L+4}, v{PW}"); p(f"v_mov_b32 v{L+5}, v{PW+1}")
    p(f"v_add_f32 v{L+2}, v{L+2}, v{L+2}")
    p(f"v_add_f32 v{L+3}, v{L+3}, v{L+3}")
    p("s_setprio 1")

    p.label("L_ATT")
    st_.n = 4
    S = [8, 24]; O = [40, 56]; Q = [72, 76]; K = [80, 84]; V = [88, 96]; IDX = 7; VL = 1; VV = 2
    WOR = 104; HA = 168
    kv = OPT["kvsc"]
    p("s_lshl_b32 s68, s5, 5")
    p("v_add_u32 v6, s68, v0")
    p("s_lshl_b32 s69, s37, 3")
    p("s_lshl_b32 s70, s4, 1")
    p("s_add_u32 s69, s69, s70")
    p("v_and_b32 v4, 1, v0")
    p("v_add_u32 v4, s69, v4")
    p("v_cmp_lt_u32 vcc, 31, v0")
    p("s_lshr_b32 s70, s36, 1")
    p("s_lshl_b32 s70, s70, 12")
    p("v_cndmask_b32 v6, v6, v4, vcc")
    p("v_lshlrev_b32 v6, 6, v6")
    p(f"s_add_u32 s70, s70, {FL1}")
    p("s_lshl_b32 s76, s36, 16")
    p("s_lshl_b32 s77, s69, 10")
    p("s_add_u32 s77, s77, s76")
    p("s_lshl_b32 s73, s5, 15")
    p("s_add_u32 s73, s73, s76")
    p(f"s_add_u32 s75, s73, {31*1024}")
    p("v_lshrrev_b32 v4, 5, v0")
    p("v_and_b32 v5, 15, v0")
    p("v_lshlrev_b32 v5, 4, v5")
    p("v_lshl_add_u32 v5, v4, 8, v5")
    p(f"v_add_u32 v{VV}, {VF}, v5")
    p(f"v_add_u32 v{VL}, {KF}, v3")
    p("v_and_b32 v4, 27, v0")
    p("v_mov_b32 v5, 0x3f803f80")
    p("v_cmp_eq_u32 vcc, 16, v4")
    p("s_mov_b32 s44, 0xffff"); p("s_mov_b32 s45, 0xffff")
    p("v_cndmask_b32 v4, 0, v5, vcc")
    for i in range(16): p(f"v_mov_b32 v{V[0]+i}, v4")
    p(f"v_mov_b32 v{IDX}, 0xdddddddd")
    for i in range(32): p(f"v_mov_b32 v{O[0]+i}, 0")
    for i in range(8, 16): p(f"v_mov_b32 v{S[1]+i}, 0")
    poll(p, 6, 70)
    def loadK(b, so, extra=0):
        p(f"buffer_load_dwordx4 {vr(K[b],4)}, v{VL}, s[12:15], s{so} offen offset:{extra} {kv}")
    def loadV(b, so, extra=0):
        p("s_mov_b64 exec, s[44:45]")
        p(f"buffer_load_dwordx4 {vr(V[b],4)}, v{VV}, s[12:15], s{so} offen offset:{extra} {kv}")
        p(f"buffer_load_dwordx4 {vr(V[b]+4,4)}, v{VV}, s[12:15], s{so} offen offset:{extra+512} {kv}")
        p("s_mov_b64 exec, -1")
    loadK(0, 73)
    for c in range(2):
        p(f"buffer_load_dwordx4 {vr(Q[c],4)}, v3, s[12:15], s77 offen offset:{c*1024} sc1")
    loadV(0, 73); loadK(1, 73, 1024)
    p("s_add_u32 s74, s73, 1024")
    p("s_add_u32 s73, s73, 2048")
    p("s_waitcnt vmcnt(3)")
    p(f"v_mfma_f32_32x32x16_bf16 {vr(S[0],16)}, {vr(K[0],4)}, {vr(Q[0],4)}, 0")
    st_.mark()
    p("s_nop 11")
    _lc = [0]
    def loop(n):
        k = _lc[0]; _lc[0] += 1
        if n > 1:
            p(f"s_mov_b32 s72, {n}")
            p(".p2align 6")
            p.label(f"L_loop{k}")
        for it in range(2):
            b = it; nb = 1 - it
            for c in range(2):
                s = S[c]; sn = S[1 - c]
                e = lambda i: p(f"v_exp_f32 v{s+i}, v{s+i}")
                e(0); e(1)
                pv = V[b] if c else V[nb]
                p(f"v_smfmac_f32_32x32x32_bf16 {vr(O[1-c],16)}, {vr(pv+4,4)}, {vr(sn+8,8)}, v{IDX}")
                e(2)
                if c == 0: loadV(nb, 74)
                else: p("s_waitcnt vmcnt(3)")
                e(3); e(4)
                kk = K[b] if c == 0 else K[nb]
                p(f"v_mfma_f32_32x32x16_bf16 {vr(sn,16)}, {vr(kk,4)}, {vr(Q[1-c],4)}, 0")
                e(5)
                if c == 0:
                    loadK(b, 73)
                    p("s_mov_b32 s74, s73")
                    p("s_add_u32 s73, s73, 1024")
                    p("s_min_u32 s73, s73, s75")
                e(6); e(7); e(8)
                if c == 0: p("s_waitcnt vmcnt(4)")
                e(9)
                p(f"v_smfmac_f32_32x32x32_bf16 {vr(O[c],16)}, {vr(V[b],4)}, {vr(s,8)}, v{IDX}")
                if it == 1 and c == 1 and n > 1:
                    p("s_sub_u32 s72, s72, 1")
                    p("s_cmp_lg_u32 s72, 0")
                for i in range(10, 16): e(i)
        if n > 1: p(f"s_cbranch_scc1 L_loop{k}")
    ev = OPT["ev"]
    loop(ev[0])
    p("s_lshr_b32 s46, s3, 1")
    p("s_and_b32 s47, s3, 1")
    p("s_lshl_b32 s48, s3, 14")
    srd(p, 16, 62, 512*1024)
    p("v_lshrrev_b32 v4, 3, v0")
    p("v_and_b32 v5, 7, v0")
    p("v_bfe_u32 v6, v0, 4, 1")
    p("v_lshlrev_b32 v6, 2, v6")
    p("v_xor_b32 v5, v5, v6")
    p("v_lshlrev_b32 v5, 4, v5")
    p("v_lshl_add_u32 v6, v4, 10, v5")
    p("s_lshl_b32 s68, s46, 17")
    p("s_lshl_b32 s69, s39, 7")
    p("s_add_u32 s68, s68, s69")
    p("s_cmp_eq_u32 s3, 4")
    p("s_cbranch_scc0 L_noEf")
    p("s_lshl_b32 s69, s35, 10")
    p("s_lshl_b32 s70, s34, 6")
    p("s_add_u32 s69, s69, s70")
    p(f"s_add_u32 s69, s69, {FLE}")
    p("s_waitcnt vmcnt(0)")
    publish(p, 69)
    p.label("L_noEf")
    for j in range(16):
        p(f"s_add_u32 m0, s48, {j*1024}")
        if j: p("s_add_u32 s68, s68, 8192")
        else: p("s_nop 0")
        p("buffer_load_dwordx4 v6, s[16:19], s68 offen lds")
    loop(ev[1])
    p("v_bfe_u32 v4, v0, 2, 2")
    p("v_lshrrev_b32 v5, 5, v0")
    p("v_lshl_add_u32 v5, v5, 2, v4")
    p("v_lshlrev_b32 v5, 7, v5")
    p("v_bfe_u32 v6, v0, 4, 1")
    p("v_lshl_add_u32 v5, v6, 5, v5")
    p("v_and_b32 v6, 3, v0")
    p("v_lshl_add_u32 v5, v6, 3, v5")
    p("v_lshrrev_b32 v4, 1, v4")
    p("v_lshl_add_u32 v5, v4, 6, v5")
    p("v_add_u32 v5, s48, v5")
    p("v_xor_b32 v6, 64, v5")
    p("s_waitcnt vmcnt(0)")
    n = 0
    for hh in range(8):
        for jn in range(2):
            for e_ in range(2):
                p(f"ds_read_b64_tr_b16 {vr(WOR + 8*hh + 4*jn + 2*e_, 2)}, v{5+jn} offset:{hh*2048 + e_*1024}")
                n += 1
                if n % 8 == 0 and n > 8: p("s_waitcnt lgkmcnt(8)")
    p("s_waitcnt lgkmcnt(0)")
    loop(ev[2])
    EB = 210
    p("s_cmp_eq_u32 s5, 0")
    p("s_cbranch_scc1 L_noE3")
    p("v_min_u32 v6, 15, v0")
    p("v_cmp_le_u32 s[42:43], s34, v6")
    p("v_lshlrev_b32 v6, 6, v6")
    p("s_lshl_b32 s68, s35, 10")
    p(f"s_add_u32 s68, s68, {FLE}")
    poll(p, 6, 68, dontcare=42)
    p("v_and_b32 v6, 31, v0")
    p("s_lshl_b32 s68, s35, 8")
    p("v_lshl_add_u32 v6, v6, 3, s68")
    p(f"s_mov_b32 s68, {EE}")
    for c in range(15):
        p(f"s_cmp_le_u32 s34, {c}")
        p("s_cbranch_scc1 L_noE3")
        p(f"buffer_load_dwordx2 {vr(EB+2*c,2)}, v6, s[12:15], s68 offen sc1")
        p("s_add_u32 s68, s68, 4096")
    p.label("L_noE3")
    loop(ev[3])
    p("s_cmp_eq_u32 s5, 0")
    p("s_cbranch_scc1 L_noE4")
    p("s_waitcnt vmcnt(0)")
    p("v_mov_b32 v240, 0"); p("v_mov_b32 v241, 0")
    for c in range(15):
        p(f"s_cmp_le_u32 s34, {c}")
        p("s_cbranch_scc1 L_hin")
        p(f"v_fma_f32 v242, v{L+6}, v240, v{EB+2*c}")
        p(f"v_fma_f32 v243, v{L+6}, v241, v{EB+2*c+1}")
        p(f"v_fma_f32 v242, -v{L+7}, v241, v242")
        p(f"v_fma_f32 v241, v{L+7}, v240, v243")
        p("v_mov_b32 v240, v242")
    p.label("L_hin")
    p(f"v_fmac_f32 v{CAR}, v{L+4}, v240")
    p(f"v_fmac_f32 v{CAR+1}, v{L+4}, v241")
    p(f"v_fma_f32 v{CAR}, -v{L+5}, v241, v{CAR}")
    p(f"v_fmac_f32 v{CAR+1}, v{L+5}, v240")
    p("s_mov_b32 s68, s48")
    p("v_and_b32 v4, 31, v0")
    p("v_mul_u32_u24 v4, 80, v4")
    p("v_lshrrev_b32 v5, 5, v0")
    p("v_lshl_add_u32 v4, v5, 5, v4")
    p("v_add_u32 v234, s68, v4")
    p("v_bfe_u32 v4, v0, 2, 2")
    p("v_lshl_add_u32 v4, v5, 3, v4")
    p("v_mul_u32_u24 v4, 80, v4")
    p("v_and_b32 v5, 1, v0")
    p("v_lshl_add_u32 v4, v5, 5, v4")
    p("v_bfe_u32 v5, v0, 4, 1")
    p("v_lshl_add_u32 v4, v5, 4, v4")
    p("v_bfe_u32 v5, v0, 1, 1")
    p("v_lshl_add_u32 v4, v5, 3, v4")
    p("v_add_u32 v235, s68, v4")
    pr, pi = CAR, CAR + 1
    PK = 240
    for r in range(16):
        p(f"v_fmac_f32 v{RE+r}, v{L}, v{pr}")
        p(f"v_fmac_f32 v{IM+r}, v{L}, v{pi}")
        p(f"v_fma_f32 v{RE+r}, -v{L+1}, v{pi}, v{RE+r}")
        p(f"v_fmac_f32 v{IM+r}, v{L+1}, v{pr}")
        pr, pi = RE + r, IM + r
        t0 = 226 + 2 * (r & 1)
        p(f"v_mul_f32 v{t0}, v{L+2}, v{pr}")
        p(f"v_mul_f32 v{t0+1}, v{L+2}, v{pi}")
        p(f"v_fma_f32 v{t0}, -v{L+3}, v{pi}, v{t0}")
        p(f"v_fma_f32 v{t0+1}, -v{L+3}, v{pr}, -v{t0+1}")
        if r & 1:
            p(f"v_cvt_pk_bf16_f32 v{PK + (r >> 1)}, v226, v228")
            p(f"v_cvt_pk_bf16_f32 v{PK + 8 + (r >> 1)}, v227, v229")
    for pl in range(2):
        for q in range(2):
            p(f"ds_write_b128 v234, {vr(PK + 8*pl + 4*q, 4)} offset:{pl*2560 + q*16}")
    p("s_lshl_b32 s68, s7, 16")
    p("s_lshl_b32 s69, s35, 11")
    p("s_add_u32 s68, s68, s69")
    p(f"s_add_u32 s68, s68, {HF}")
    p("s_add_u32 s69, s68, 0x8000")
    p("s_waitcnt lgkmcnt(0)")
    for pl in range(2):
        for kl in range(2):
            for e_ in range(2):
                p(f"ds_read_b64_tr_b16 {vr(210 + 8*pl + 4*kl + 2*e_, 2)}, v235 offset:{pl*2560 + (16*kl + 4*e_)*80}")
    p("s_waitcnt lgkmcnt(0)")
    for pl in range(2):
        for kl in range(2):
            p(f"buffer_store_dwordx4 {vr(210 + 8*pl + 4*kl, 4)}, v3, s[12:15], s{68+pl} offen offset:{kl*1024} sc1")
    p("s_lshl_b32 s68, s7, 10")
    p("s_lshl_b32 s69, s35, 6")
    p("s_add_u32 s68, s68, s69")
    p(f"s_add_u32 s68, s68, {FLH}")
    p("s_waitcnt vmcnt(0)")
    publish(p, 68)
    p.label("L_noE4")
    p("s_cmp_lt_u32 s46, 2")
    p("s_cselect_b32 s20, s50, s52")
    p("s_cselect_b32 s21, s51, s53")
    p(f"s_mov_b32 s22, {512*1024}")
    p("s_mov_b32 s23, 0x00020000")
    p("v_lshrrev_b32 v4, 5, v0")
    p("v_and_b32 v5, 31, v0")
    p("v_xor_b32 v5, v5, v4")
    p("v_lshlrev_b32 v5, 4, v5")
    p("v_lshl_add_u32 v5, v4, 10, v5")
    p("s_lshl_b32 s68, s39, 1")
    p("s_add_u32 s68, s68, s47")
    p("s_lshl_b32 s68, s68, 15")
    p("s_and_b32 s69, s46, 1")
    p("s_lshl_b32 s69, s69, 9")
    p("s_add_u32 s68, s68, s69")
    for j in range(16):
        p(f"v_xor_b32 v6, {((2*j) & 15) << 4}, v5")
        p(f"s_add_u32 m0, s48, {j*1024}")
        if j: p("s_add_u32 s68, s68, 2048")
        else: p("s_nop 0")
        p("buffer_load_dwordx4 v6, s[20:23], s68 offen lds")
    loop(ev[4])
    p("s_lshl_b32 s49, s38, 1")
    p("s_add_u32 s49, s49, s47")
    p("v_and_b32 v6, 7, v0")
    p("v_lshlrev_b32 v6, 6, v6")
    p("s_lshl_b32 s68, s49, 10")
    p("s_and_b32 s69, s46, 1")
    p("s_lshl_b32 s69, s69, 9")
    p("s_add_u32 s68, s68, s69")
    p(f"s_add_u32 s68, s68, {FLH}")
    poll(p, 6, 68)
    p("s_lshl_b32 s68, s49, 16")
    p("s_lshl_b32 s69, s46, 14")
    p("s_add_u32 s68, s68, s69")
    p(f"s_add_u32 s68, s68, {HF}")
    for t in range(16):
        if t and t % 4 == 0: p("s_add_u32 s68, s68, 4096")
        p(f"buffer_load_dwordx4 {vr(HA+4*t,4)}, v3, s[12:15], s68 offen offset:{(t%4)*1024} sc1")
    rest = 16 - sum(ev)
    pd = OPT["prio_drop"]
    if rest - pd > 0: loop(rest - pd)
    p("s_setprio 0")
    loop(pd)
    p(f"v_smfmac_f32_32x32x32_bf16 {vr(O[1],16)}, {vr(V[1]+4,4)}, {vr(S[1]+8,8)}, v{IDX}")
    st_.mark()
    p("s_mul_i32 s68, s3, 2304")
    p(f"s_add_u32 s68, s68, {SCR}")
    p("v_add_u32 v4, s68, v3")
    p("v_lshl_add_u32 v5, v0, 2, s68")
    p("s_xor_b32 s68, s3, 4")
    p("s_mul_i32 s68, s68, 2304")
    p(f"s_add_u32 s68, s68, {SCR}")
    p("v_add_u32 v8, s68, v3")
    p("v_lshl_add_u32 v9, v0, 2, s68")
    p("s_cmp_eq_u32 s5, 0")
    p("s_cbranch_scc0 L_red1")
    p(f"ds_write_b128 v4, {vr(O[1],4)}")
    p(f"ds_write_b128 v4, {vr(O[1]+4,4)} offset:1024")
    p(f"ds_write_b32 v5, v{O[1]+8} offset:2048")
    p("s_branch L_red2")
    p.label("L_red1")
    p(f"ds_write_b128 v4, {vr(O[0],4)}")
    p(f"ds_write_b128 v4, {vr(O[0]+4,4)} offset:1024")
    p(f"ds_write_b32 v5, v{O[0]+8} offset:2048")
    p("s_waitcnt lgkmcnt(0)")
    for i in range(9): p(f"v_mov_b32 v{O[0]+i}, v{O[1]+i}")
    p.label("L_red2")
    p("s_lshl_b32 s69, s37, 3")
    p("s_lshl_b32 s70, s4, 1")
    p("s_add_u32 s69, s69, s70")
    p("s_add_u32 s69, s69, s5")
    p("s_lshl_b32 s70, s69, 15")
    p("s_lshl_b32 s71, s36, 10")
    p("s_add_u32 s70, s70, s71")
    p(f"s_add_u32 s70, s70, {OF}")
    p("s_waitcnt vmcnt(0) lgkmcnt(0)")
    p("s_barrier")
    R = O[0]
    p(f"ds_read_b128 v[12:15], v8")
    p(f"ds_read_b128 v[16:19], v8 offset:1024")
    p(f"ds_read_b32 v20, v9 offset:2048")
    p(f"s_mov_b32 s40, {f2u(2.0**-40):#x}")
    p(f"s_mov_b32 s41, {f2u(2.0**40):#x}")
    p(f"s_mov_b32 s42, {f2u(2.0**120):#x}")
    p("s_waitcnt lgkmcnt(0)")
    for i in range(9): p(f"v_add_f32 v{R+i}, v{R+i}, v{12+i}")
    p(f"v_max3_f32 v6, |v{R}|, |v{R+1}|, |v{R+2}|")
    p(f"v_max3_f32 v6, v6, |v{R+3}|, |v{R+4}|")
    p(f"v_max3_f32 v6, v6, |v{R+5}|, |v{R+6}|")
    p(f"v_max_f32 v6, v6, |v{R+7}|")
    p(f"v_cmp_le_f32 s[78:79], s40, v{R+8}")
    p(f"v_cmp_ge_f32 s[80:81], s41, v{R+8}")
    p(f"v_cmp_ge_f32 vcc, s42, v6")
    p("s_and_b64 s[78:79], s[78:79], s[80:81]")
    p("s_and_b64 s[78:79], s[78:79], vcc")
    p("s_cmp_eq_u64 s[78:79], -1" if not OPT["fallback"] else "s_cmp_eq_u64 s[78:79], 1")
    p("s_cbranch_scc0 L_slow")
    p.label("L_fin")
    p(f"v_rcp_f32 v6, v{R+8}")
    for i in range(8): p(f"v_mul_f32 v{R+i}, v6, v{R+i}")
    for i in range(4): p(f"v_cvt_pk_bf16_f32 v{R+12+i}, v{R+2*i}, v{R+2*i+1}")
    p(f"buffer_store_dwordx4 {vr(R+12,4)}, v3, s[12:15], s70 offen sc1")
    CA = 232; ACA = [8, 24]; CB = [72, 80, 88, 96]
    p("v_lshrrev_b32 v4, 5, v0")
    p("v_and_b32 v5, 31, v0")
    p("v_and_b32 v6, 15, v0")
    p("v_xor_b32 v6, v6, v4")
    p("v_lshlrev_b32 v6, 4, v6")
    p("v_lshl_add_u32 v6, v5, 9, v6")
    p("s_lshl_b32 s68, s46, 15")
    p("v_add_u32 v6, s68, v6")
    for t in range(8): p(f"v_xor_b32 v{CA+t}, {t << 5}, v6")
    def rdC(t):
        b = CB[t & 3]
        for jn in range(2):
            p(f"ds_read_b128 {vr(b+4*jn,4)}, v{CA + (t & 7)} offset:{jn*16384 + (t >> 3)*256}")
    rdC(0); rdC(1); rdC(2)
    p("s_lshl_b32 s71, s69, 11")
    p("s_lshl_b32 s72, s36, 6")
    p("s_add_u32 s71, s71, s72")
    p(f"s_add_u32 s71, s71, {FLO}")
    for t in range(16):
        if t + 3 < 16:
            rdC(t + 3); p("s_waitcnt lgkmcnt(6)")
        else: p(f"s_waitcnt lgkmcnt({2*(15-t)})")
        b = CB[t & 3]
        for jn in range(2):
            p(f"v_mfma_f32_32x32x16_bf16 {vr(ACA[jn],16)}, {vr(HA+4*t,4)}, {vr(b+4*jn,4)}, {vr(ACA[jn],16) if t else 0}")
        if t == OPT.get("oflag_t", 7):
            p("s_waitcnt vmcnt(0)")
            p("v_mov_b32 v248, s32"); p("v_mov_b32 v249, s33")
            p("s_mov_b64 exec, 1")
            p("buffer_store_dwordx2 v[248:249], off, s[12:15], s71 sc1")
            p("s_mov_b64 exec, -1")
    G_ = 48; X_ = 56; D_ = 64; AV = 240
    p("s_and_b32 s68, s46, 1")
    p("s_lshl_b32 s68, s68, 3")
    p("s_lshl_b32 s72, s49, 5")
    p("s_add_u32 s72, s72, s68")
    p("s_lshr_b32 s68, s46, 1")
    p("s_lshl_b32 s68, s68, 5")
    p("s_lshl_b32 s73, s39, 6")
    p("s_add_u32 s73, s73, s68")
    p("s_lshl_b32 s68, s72, 2")
    p(f"s_add_u32 s68, s68, {GG}")
    p("v_lshlrev_b32 v6, 6, v4")
    p(f"buffer_load_dwordx4 {vr(G_,4)}, v6, s[12:15], s68 offen sc1")
    p(f"buffer_load_dwordx4 {vr(G_+4,4)}, v6, s[12:15], s68 offen offset:16 sc1")
    srd(p, 24, 56, 1024)
    p("v_lshlrev_b32 v6, 1, v5")
    p("s_lshl_b32 s68, s73, 1")
    p(f"buffer_load_ushort v{D_}, v6, s[24:27], s68 offen")
    p("v_lshl_add_u32 v6, v4, 14, v6")
    p("s_lshl_b32 s74, s72, 10")
    p("s_add_u32 s68, s68, s74")
    for r in range(8):
        if r == 4: p("s_add_u32 s68, s68, 4096")
        p(f"buffer_load_ushort v{X_+r}, v6, s[8:11], s68 offen offset:{(r & 3)*1024}")
    p("s_lshl_b32 s68, s3, 13")
    p("v_add_u32 v250, s68, v3")
    p("s_lshl_b32 s68, s47, 13")
    p("s_lshl_b32 s74, s46, 11")
    p("s_add_u32 s68, s68, s74")
    p("v_add_u32 v251, s68, v3")
    p("s_barrier")
    for q in range(8):
        p(f"ds_write_b128 v250, {vr(8+4*q,4)} offset:{q*1024}")
    p("s_waitcnt lgkmcnt(0)")
    p("s_barrier")
    for k in range(4):
        p(f"ds_read_b128 {vr(72+8*k,4)}, v251 offset:{k*16384}")
        p(f"ds_read_b128 {vr(76+8*k,4)}, v251 offset:{k*16384+1024}")
    p("v_and_b32 v6, 7, v0")
    p("v_lshlrev_b32 v6, 6, v6")
    p("s_lshl_b32 s68, s49, 11")
    p("s_lshl_b32 s74, s46, 9")
    p("s_add_u32 s68, s68, s74")
    p(f"s_add_u32 s68, s68, {FLO}")
    p("s_waitcnt vmcnt(0) lgkmcnt(0)")
    for i in range(8):
        p(f"v_add_f32 v{72+i}, v{72+i}, v{80+i}")
        p(f"v_add_f32 v{88+i}, v{88+i}, v{96+i}")
    p(f"v_lshlrev_b32 v{D_}, 16, v{D_}")
    for i in range(8):
        p(f"v_lshlrev_b32 v{X_+i}, 16, v{X_+i}")
        p(f"v_mul_f32 v{X_+i}, v{D_}, v{X_+i}")
        p(f"v_add_f32 v{AV+i}, v{72+i}, v{88+i}")
    for i in range(4):
        p(f"v_cvt_pk_bf16_f32 v{72+i}, v{X_+2*i}, v{X_+2*i+1}")
    for i in range(4):
        p(f"v_lshlrev_b32 v{X_+2*i}, 16, v{72+i}")
        p(f"v_and_b32 v{X_+2*i+1}, 0xffff0000, v{72+i}")
    for i in range(8):
        p(f"v_add_f32 v{AV+i}, v{AV+i}, v{X_+i}")
        p(f"v_mul_f32 v{AV+i}, v{G_+i}, v{AV+i}")
        p(f"v_sub_f32 v{G_+i}, 1.0, v{G_+i}")
    for i in range(4):
        p(f"v_cvt_pk_bf16_f32 v{72+i}, v{G_+2*i}, v{G_+2*i+1}")
    for i in range(4):
        p(f"v_lshlrev_b32 v{G_+2*i}, 16, v{72+i}")
        p(f"v_and_b32 v{G_+2*i+1}, 0xffff0000, v{72+i}")
    srd(p, 28, 66, 2048*2048)
    st_.mark()
    poll(p, 6, 68)
    OA = 168
    p("s_lshl_b32 s68, s49, 15")
    p("s_lshl_b32 s74, s46, 13")
    p("s_add_u32 s68, s68, s74")
    p(f"s_add_u32 s68, s68, {OF}")
    for hh in range(8):
        if hh == 4: p("s_add_u32 s68, s68, 4096")
        p(f"buffer_load_dwordx4 {vr(OA+4*hh,4)}, v3, s[12:15], s68 offen offset:{(hh & 3)*1024} sc1")
    p("v_add_u32 v250, 65536, v250")
    p("v_add_u32 v251, 65536, v251")
    p("v_lshrrev_b32 v4, 5, v0")
    p("v_and_b32 v5, 31, v0")
    p("v_lshlrev_b32 v5, 2, v5")
    p("v_lshl_add_u32 v5, v4, 15, v5")
    p("v_add_u32 v6, 4096, v5")
    p("s_lshl_b32 s68, s72, 11")
    p("s_lshl_b32 s74, s73, 2")
    p("s_add_u32 s68, s68, s74")
    p("s_add_u32 s74, s68, 8192")
    for hh in range(8):
        p(f"s_waitcnt vmcnt({7-hh})")
        for jn in range(2):
            p(f"v_mfma_f32_32x32x16_bf16 {vr(ACA[jn],16)}, {vr(OA+4*hh,4)}, {vr(WOR+8*hh+4*jn,4)}, {vr(ACA[jn],16) if hh else 0}")
    for q in range(8):
        p(f"ds_write_b128 v250, {vr(8+4*q,4)} offset:{q*1024}")
    p("s_waitcnt lgkmcnt(0)")
    p("s_barrier")
    for k in range(4):
        p(f"ds_read_b128 {vr(72+8*k,4)}, v251 offset:{k*16384}")
        p(f"ds_read_b128 {vr(76+8*k,4)}, v251 offset:{k*16384+1024}")
    p("s_waitcnt lgkmcnt(0)")
    for i in range(8):
        p(f"v_add_f32 v{72+i}, v{72+i}, v{80+i}")
        p(f"v_add_f32 v{88+i}, v{88+i}, v{96+i}")
    for i in range(8):
        p(f"v_add_f32 v{72+i}, v{72+i}, v{88+i}")
    for i in range(4):
        p(f"v_cvt_pk_bf16_f32 v{80+i}, v{72+2*i}, v{72+2*i+1}")
    for i in range(4):
        p(f"v_lshlrev_b32 v{72+2*i}, 16, v{80+i}")
        p(f"v_and_b32 v{72+2*i+1}, 0xffff0000, v{80+i}")
    for i in range(8):
        p(f"v_mul_f32 v{72+i}, v{G_+i}, v{72+i}")
    for i in range(4):
        p(f"v_cvt_pk_bf16_f32 v{80+i}, v{72+2*i}, v{72+2*i+1}")
    for i in range(4):
        p(f"v_lshlrev_b32 v{72+2*i}, 16, v{80+i}")
        p(f"v_and_b32 v{72+2*i+1}, 0xffff0000, v{80+i}")
    for i in range(8):
        p(f"v_add_f32 v{72+i}, v{AV+i}, v{72+i}")
        p(f"buffer_store_dword v{72+i}, v{5 + ((i >> 1) & 1)}, s[28:31], s{68 if i < 4 else 74} offen offset:{(i & 1)*2048}")
    p("s_or_b32 s68, s2, s3")
    p("s_cmp_eq_u32 s68, 0")
    p("s_cbranch_scc0 L_noep")
    p(f"s_mov_b32 s68, {EPO}")
    p("v_mov_b32 v4, s32")
    p("s_mov_b64 exec, 1")
    p("buffer_store_dword v4, off, s[12:15], s68 sc1")
    p("s_mov_b64 exec, -1")
    p.label("L_noep")
    st_.end(12, 3, 8, 4)
    p.label("L_end")
    p("s_endpgm")
    p.label("L_slow")
    p("s_lshl_b32 s68, s69, 10")
    p("s_add_u32 s68, s68, s76")
    p(f"buffer_load_dwordx4 {vr(Q[0],4)}, v3, s[12:15], s68 offen sc1")
    p("v_mov_b32 v6, 0xff800000")
    p("s_mov_b32 s73, s76")
    p("s_mov_b32 s72, 64")
    p.label("L_slow1")
    loadK(0, 73)
    p("s_add_u32 s73, s73, 1024")
    p("s_sub_u32 s72, s72, 1")
    p("s_waitcnt vmcnt(0)")
    p(f"v_mfma_f32_32x32x16_bf16 {vr(S[0],16)}, {vr(K[0],4)}, {vr(Q[0],4)}, 0")
    for i in range(8): p(f"v_max3_f32 v6, v6, v{S[0]+2*i}, v{S[0]+2*i+1}")
    p("s_cmp_lg_u32 s72, 0")
    p("s_cbranch_scc1 L_slow1")
    p("v_mov_b32 v4, v6")
    p("v_permlane32_swap_b32 v4, v6")
    p("v_max_f32 v6, v4, v6")
    for i in range(16): p(f"v_sub_f32 v{S[1]+i}, 0, v6")
    for i in range(16): p(f"v_mov_b32 v{R+i}, 0")
    p("s_mov_b32 s73, s76")
    p("s_mov_b32 s72, 64")
    p.label("L_slow2")
    loadK(0, 73); loadV(0, 73)
    p("s_add_u32 s73, s73, 1024")
    p("s_sub_u32 s72, s72, 1")
    p("s_waitcnt vmcnt(0)")
    p(f"v_mfma_f32_32x32x16_bf16 {vr(S[0],16)}, {vr(K[0],4)}, {vr(Q[0],4)}, {vr(S[1],16)}")
    for i in range(16): p(f"v_exp_f32 v{S[0]+i}, v{S[0]+i}")
    p(f"v_smfmac_f32_32x32x32_bf16 {vr(R,16)}, {vr(V[0],4)}, {vr(S[0],8)}, v{IDX}")
    p(f"v_smfmac_f32_32x32x32_bf16 {vr(R,16)}, {vr(V[0]+4,4)}, {vr(S[0]+8,8)}, v{IDX}")
    p("s_cmp_lg_u32 s72, 0")
    p("s_cbranch_scc1 L_slow2")
    p("s_nop 11")
    p("s_branch L_fin")
    return p

if __name__ == "__main__":
    p = build()
    p.fix_hazards(verbose="-v" in sys.argv)
    for lab in (None, "L_G1", "L_slow"):
        for e in p.check_waits(lab): print(f"  [wait:{lab}] {e}")
    NAME = "gated_mix__ssm_conv_s5__softmax_full_mha__prompt_kernel"
    b, d = kernel_text(NAME, p, None)
    out = HEADER + f"; @launch grid=(256,1,1) block=(512,1,1) lds={LDS_BYTES}\n" + '.amdgcn_target "amdgcn-amd-amdhsa--gfx950"\n.text\n' + b + '.section .rodata,"a"\n' + d
    dst = [a for a in sys.argv[1:] if not a.startswith("-")]
    open(dst[0] if dst else "gated_mix__ssm_conv_s5__softmax_full_mha__prompt.s", "w").write(out)
```

```python
import sys, os, math, struct
from common import *
from k_ssm import cmul, lam_compute
def f2u(x): return struct.unpack("<I", struct.pack("<f", x))[0]
QSCALE = 0.25 * math.log2(math.e)

FL1 = 0xDA0000
FLE = 0xDB0000
EPO = 0xDB8000
FLH = 0xDC0000
FLO = 0xDD0000
assert FLO + 0x20000 <= 0xE00000

WR = 81920
WQ = 81920
P2 = 131072
SCR = 141312
EXC = 159744
LF = 161792
LDS_BYTES = 162048
SPIN = 400000

OPT = dict(kvsc="sc1", fallback=False, rot=1, cwarm=1,
           sched=[(2, 1, 0, "E2 E3a"), (4, 0, 1, ""), (0, 1, 0, "E3b"), (0, 1, 0, "E4"), (0, 1, 0, "E4b"), (0, 4, 1, ""), (3, 1, 0, "E6 E5a"), (1, 2, 0, "E5b"), (2, 1, 0, "")])
OPT.update(eval(os.environ.get("OPT", "{}")))

def publish(p, soff, v=4):
    p(f"v_mov_b32 v{v}, s32"); p(f"v_mov_b32 v{v+1}, s33")
    p("s_mov_b64 exec, 1")
    p(f"buffer_store_dwordx2 v[{v}:{v+1}], off, s[12:15], s{soff} sc1")
    p("s_mov_b64 exec, -1")

_pc = [0]
def poll(p, vaddr, soff, dontcare=None):
    n = _pc[0]; _pc[0] += 1
    p(f"s_mov_b32 s81, {SPIN}")
    p.label(f"Lpoll{n}")
    p(f"buffer_load_dwordx2 v[4:5], v{vaddr}, s[12:15], s{soff} offen sc1")
    p("s_sub_u32 s81, s81, 1")
    p("s_cbranch_scc1 Lpollx%d" % n)
    p("s_waitcnt vmcnt(0)")
    p("v_cmp_eq_u32 s[78:79], s32, v4")
    p("v_cmp_eq_u32 vcc, s33, v5")
    p("s_and_b64 s[78:79], s[78:79], vcc")
    if dontcare is not None: p(f"s_or_b64 s[78:79], s[78:79], s[{dontcare}:{dontcare+1}]")
    p("s_cmp_eq_u64 s[78:79], -1")
    p(f"s_cbranch_scc1 Lpollx{n}")
    p("s_sleep 2")
    p(f"s_branch Lpoll{n}")
    p.label(f"Lpollx{n}")
    p("s_waitcnt vmcnt(0)")

def lds_spin(p, vaddr, want):
    n = _pc[0]; _pc[0] += 1
    p(f"s_mov_b32 s81, {SPIN*8}")
    p.label(f"Lspin{n}")
    p(f"ds_read_b32 v4, v{vaddr}")
    p("s_sub_u32 s81, s81, 1")
    p(f"s_cbranch_scc1 Lspinx{n}")
    p("s_waitcnt lgkmcnt(0)")
    p(f"v_cmp_ne_u32 vcc, {want}, v4")
    p(f"s_cbranch_vccz Lspinx{n}")
    p("s_sleep 1")
    p(f"s_branch Lspin{n}")
    p.label(f"Lspinx{n}")
    p("s_waitcnt lgkmcnt(0)")

def build():
    p = Prog()
    st_ = Stamps(p, 0)
    MK = OPT.get("marks", ["pro", "t1", "pub", "att", "loop", "pre"])
    TRACE = OPT.get("trace")
    sites = {}
    def tr(name):
        if not TRACE: return
        i = sites.setdefault(name, len(sites) + 1)
        p("s_memtime s[100:101]"); p("s_waitcnt lgkmcnt(0)")
        p("s_mov_b64 exec, s[96:97]"); p("v_mov_b32 v254, s100"); p(f"v_mov_b32 v255, {i}"); p("s_mov_b64 exec, -1")
        p("s_lshl_b64 s[96:97], s[96:97], 1")
    def mk(name, st=None):
        if name in MK: (st or st_).mark()
        tr(name)
    p("s_cmp_ge_u32 s2, 256")
    p("s_cbranch_scc1 L_end")
    st_.start()
    if TRACE:
        p("s_mov_b64 s[96:97], 1"); p("v_mov_b32 v254, 0"); p("v_mov_b32 v255, 0"); tr("start")
    p("s_load_dwordx16 s[40:55], s[0:1], 0")
    p(f"s_load_dwordx2 s[56:57], s[0:1], {A_DSKIP}")
    p(f"s_load_dwordx2 s[58:59], s[0:1], {A_WS}")
    p(f"s_load_dwordx8 s[60:67], s[0:1], {A_WQKV}")
    p("v_lshrrev_b32 v1, 6, v0")
    p("v_and_b32 v0, 63, v0")
    p("s_and_b32 s68, s2, 7")
    p("v_readfirstlane_b32 s3, v1")
    p("s_lshr_b32 s69, s2, 3")
    p("s_lshr_b32 s70, s68, 1")
    p("s_lshl_b32 s70, s70, 2")
    p("s_and_b32 s71, s69, 3")
    p("s_add_u32 s34, s70, s71")
    p("s_and_b32 s70, s68, 1")
    p("s_lshl_b32 s70, s70, 3")
    p("s_lshr_b32 s39, s69, 2")
    p("s_add_u32 s35, s70, s39")
    p("s_lshl_b32 s70, s68, 2")
    p("s_add_u32 s38, s70, s71")
    p("s_lshr_b32 s71, s69, 3")
    p("s_add_u32 s36, s70, s71")
    p("s_and_b32 s37, s69, 7")
    p("s_and_b32 s4, s3, 3")
    p("s_lshr_b32 s5, s3, 2")
    p("v_lshrrev_b32 v1, 5, v0")
    p("v_and_b32 v2, 31, v0")
    p("v_lshlrev_b32 v3, 4, v0")
    p("s_mul_i32 s6, s4, 20480")
    p("s_lshl_b32 s7, s34, 2")
    p("s_add_u32 s7, s7, s4")
    p("s_cmp_eq_u32 s5, 0")
    p("s_cbranch_scc0 L_G1")

    vm = VM(p)
    XA = 8; WA = 12
    p("s_lshl_b32 s68, s34, 7")
    p("s_and_b32 s69, s35, 7")
    p("s_lshl_b32 s69, s69, 4")
    p("s_add_u32 s68, s68, s69")
    p("s_and_b32 s69, s35, 8")
    p("s_add_u32 s68, s68, s69")
    p("s_lshl_b32 s69, s4, 1")
    p("s_add_u32 s68, s68, s69")
    p("v_add_u32 v160, s68, v1")
    p("v_lshlrev_b32 v161, 5, v2")
    p("v_lshl_add_u32 v162, v160, 10, v161")
    p("s_waitcnt lgkmcnt(0)")
    srd(p, 8, 40, 2048*1024)
    srd(p, 12, 58, WS_USED)
    srd(p, 24, 64, 1024)
    p(f"s_mov_b32 s68, {EPO}")
    vm.issue("buffer_load_dword v163, off, s[12:15], s68 sc1", "g")
    vm.issue("buffer_load_dwordx4 v[164:167], v162, s[8:11], 0 offen", "g")
    vm.issue("buffer_load_dwordx4 v[168:171], v162, s[8:11], 0 offen offset:16", "g")
    vm.issue("buffer_load_dwordx4 v[172:175], v161, s[24:27], 0 offen", "g")
    vm.issue("buffer_load_dwordx4 v[176:179], v161, s[24:27], 0 offen offset:16", "g")
    p("v_lshrrev_b32 v18, 1, v2")
    p("v_and_b32 v18, 7, v18")
    p("v_lshl_add_u32 v19, v2, 7, s6")
    for ks in range(4):
        p(f"v_add_u32 v20, {2*ks}, v1")
        p("v_xor_b32 v20, v20, v18")
        p(f"v_lshl_add_u32 v{XA+ks}, v20, 4, v19")
    p("v_bfe_u32 v18, v0, 2, 2")
    p("v_lshl_add_u32 v18, v1, 3, v18")
    p("v_mul_u32_u24 v18, 192, v18")
    p("v_bfe_u32 v19, v0, 4, 1")
    p("v_lshl_add_u32 v18, v19, 5, v18")
    p("v_and_b32 v19, 3, v0")
    p("v_lshl_add_u32 v18, v19, 3, v18")
    p(f"v_add_u32 v{WA}, {WR}, v18")
    p("v_and_b32 v13, 0x33, v0")
    p("v_bfe_u32 v19, v0, 2, 1")
    p("v_lshl_or_b32 v13, v19, 3, v13")
    p("v_bfe_u32 v19, v0, 3, 1")
    p("v_lshl_or_b32 v13, v19, 2, v13")
    p("v_lshlrev_b32 v13, 4, v13")
    p(f"v_add_u32 v13, {KF}, v13")
    p("v_bfe_u32 v14, v0, 4, 1")
    p("v_lshlrev_b32 v14, 16, v14")
    p("v_lshl_add_u32 v14, v1, 8, v14")
    p("v_and_b32 v20, 15, v0")
    p("v_lshl_add_u32 v14, v20, 4, v14")
    p(f"v_add_u32 v14, {VF}, v14")
    p("s_lshl_b32 s76, s7, 10")
    p("s_lshl_b32 s77, s35, 17")
    p("s_add_u32 s76, s76, s77")
    p("s_add_u32 s77, s76, 0x10000")
    srd(p, 16, 62, 512*1024)
    p("v_lshrrev_b32 v18, 3, v0")
    p("v_and_b32 v19, 7, v0")
    p("v_bfe_u32 v20, v0, 4, 1")
    p("v_lshlrev_b32 v20, 2, v20")
    p("v_xor_b32 v19, v19, v20")
    p("v_lshlrev_b32 v19, 4, v19")
    p("v_lshl_add_u32 v15, v18, 10, v19")
    ACC = [40, 56, 104]; FR = [120, 136]
    def rd0(kk):
        b = FR[kk & 1]; st = kk >> 2; ks = kk & 3; sl = st % 5
        p(f"ds_read_b128 {vr(b,4)}, v{XA+ks} offset:{sl * 4096}")
        for T in range(3):
            for e in range(2):
                p(f"ds_read_b64_tr_b16 {vr(b+4+4*T+2*e,2)}, v{WA} offset:{sl*12288 + ks*3072 + e*768 + T*64}")
    def mm0(kk):
        b = FR[kk & 1]
        c = [vr(a, 16) if kk else "0" for a in ACC]
        p(f"v_mfma_f32_32x32x16_bf16 {vr(ACC[0],16)}, {vr(b+4,4)}, {vr(b,4)}, {c[0]}")
        p(f"v_mfma_f32_32x32x16_bf16 {vr(ACC[1],16)}, {vr(b+8,4)}, {vr(b,4)}, {c[1]}")
        p(f"v_mfma_f32_32x32x16_bf16 {vr(ACC[2],16)}, {vr(b,4)}, {vr(b+12,4)}, {c[2]}")
    def gate_job():
        vm.drain()
        p("v_readfirstlane_b32 s32, v163")
        p("v_mov_b32 v180, 0")
        for i in range(8):
            p(f"v_dot2_f32_bf16 v180, v{164+i}, v{172+i}, v180")
        p("s_mul_i32 s32, s32, 0x9E3779B1")
        p("s_add_u32 s32, s32, 0x7F4A7C15")
        p("s_xor_b32 s33, s32, 0x5BD1E995")
        for sh in (8, 4, 2, 1):
            p(f"v_add_f32_dpp v180, v180, v180 row_ror:{sh} row_mask:0xf bank_mask:0xf")
        p("v_mov_b32 v181, v180")
        p("v_permlane16_swap_b32 v181, v180")
        p("v_add_f32 v180, v180, v181")
        p("v_cvt_pk_bf16_f32 v180, v180, v180")
        p("v_and_b32 v180, 0xffff0000, v180")
        p(f"v_mul_f32 v180, {f2u(-math.log2(math.e)):#x}, v180")
        p("v_exp_f32 v180, v180")
        p("v_add_f32 v180, 1.0, v180")
        p("v_rcp_f32 v180, v180")
        p("v_cvt_pk_bf16_f32 v180, v180, v180")
        p("v_and_b32 v180, 0xffff0000, v180")
        p("v_lshlrev_b32 v160, 2, v160")
        p(f"s_mov_b32 s68, {GG}")
        p("buffer_store_dword v180, v160, s[12:15], s68 offen sc1")
        for i in range(4): p(f"v_mov_b32 v{184+i}, -1")
        p("s_lshl_b32 s68, s37, 3")
        p("s_lshl_b32 s69, s4, 1")
        p("s_add_u32 s68, s68, s69")
        p("s_lshl_b32 s68, s68, 15")
        p("s_lshl_b32 s69, s36, 10")
        p("s_add_u32 s68, s68, s69")
        p(f"s_add_u32 s68, s68, {OF}")
        p("s_add_u32 s69, s68, 0x8000")
        p("buffer_store_dwordx4 v[184:187], v3, s[12:15], s68 offen sc1")
        p("buffer_store_dwordx4 v[184:187], v3, s[12:15], s69 offen sc1")
    mk("pro")
    for st in range(8):
        k = 4 * st
        p("s_barrier")
        rd0(k); rd0(k + 1)
        p("s_waitcnt lgkmcnt(7)"); mm0(k); rd0(k + 2)
        p("s_waitcnt lgkmcnt(7)"); mm0(k + 1); rd0(k + 3)
        p("s_waitcnt lgkmcnt(7)"); mm0(k + 2)
        p("s_waitcnt lgkmcnt(0)"); mm0(k + 3)
        if st == 1: gate_job()
    mk("t1")
    p(f"s_mov_b32 s75, {f2u(QSCALE):#x}")
    p("s_lshl_b32 s68, s35, 12")
    p("s_lshl_b32 s69, s7, 6")
    p("s_add_u32 s68, s68, s69")
    p(f"s_add_u32 s68, s68, {FL1}")
    T = 120
    for hd in range(2):
        a = ACC[hd]
        for i in range(4):
            p(f"v_cvt_pk_bf16_f32 v{T+4+i}, v{a+8+2*i}, v{a+8+2*i+1}")
        p(f"buffer_store_dwordx4 {vr(T+4,4)}, v13, s[12:15], s{76+hd} offen sc1")
        T += 8
    T = 120
    for hd in range(2):
        a = ACC[hd]
        for i in range(4):
            p(f"v_cvt_pk_bf16_f32 v{T+i}, v{a+2*i}, v{a+2*i+1}")
        for i in range(4):
            p(f"v_lshlrev_b32 v{a+2*i}, 16, v{T+i}")
            p(f"v_and_b32 v{a+2*i+1}, 0xffff0000, v{T+i}")
        for i in range(8):
            p(f"v_mul_f32 v{a+i}, s75, v{a+i}")
        for i in range(4):
            p(f"v_cvt_pk_bf16_f32 v{T+i}, v{a+2*i}, v{a+2*i+1}")
        p(f"buffer_store_dwordx4 {vr(T,4)}, v3, s[12:15], s{76+hd} offen sc1")
        T += 8
        if hd == 0:
            a = ACC[2]
            for i in range(8):
                p(f"v_cvt_pk_bf16_f32 v{136+i}, v{a+2*i}, v{a+2*i+1}")
            p(f"buffer_store_dwordx4 {vr(136,4)}, v14, s[12:15], s76 offen sc1")
            p(f"buffer_store_dwordx4 {vr(140,4)}, v14, s[12:15], s76 offen offset:512 sc1")
    p("s_waitcnt vmcnt(0)")
    publish(p, 68)
    mk("pub")
    p("s_barrier")
    p("s_lshl_b32 s68, s4, 17")
    p("s_lshl_b32 s69, s39, 7")
    p("s_add_u32 s68, s68, s69")
    p("s_lshl_b32 s69, s4, 14")
    p(f"s_add_u32 s69, s69, {WQ}")
    p("s_and_b32 s70, s38, 3")
    p("s_lshl_b32 s70, s70, 2")
    for j in range(16):
        p("s_lshl_b32 s71, s70, 10")
        p("s_add_u32 m0, s69, s71")
        p("s_lshl_b32 s71, s70, 13")
        p("s_add_u32 s71, s71, s68")
        p("buffer_load_dwordx4 v15, s[16:19], s71 offen lds")
        if j < 15:
            p("s_add_u32 s70, s70, 1")
            p("s_and_b32 s70, s70, 15")
    p("s_branch L_ATT")

    p.label("L_G1")
    st1 = Stamps(p, 0); st1.n = 1
    vm = VM(p)
    XO = 240; WO = 244; BO = 247; XA1 = 224; BA = 228
    XF = 8; BF = [136, 144, 152]; RE = 168; IM = 184; L = 200; CAR = 208; LT = 210
    p("s_lshl_b32 s68, s7, 15")
    p("v_lshrrev_b32 v22, 3, v0")
    p("v_and_b32 v23, 7, v0")
    p("v_bfe_u32 v24, v22, 2, 1")
    p("v_and_b32 v25, 3, v22")
    p("v_lshl_add_u32 v24, v24, 4, v25")
    for j in range(4):
        p(f"v_add_u32 v18, {8*j}, v22")
        p("v_lshrrev_b32 v19, 1, v18")
        p("v_and_b32 v19, 7, v19")
        p("v_xor_b32 v19, v19, v23")
        p(f"v_lshlrev_b32 v{30+j}, 4, v19")
        p(f"v_lshl_add_u32 v20, v24, 10, v{30+j}")
        p(f"v_add_u32 v20, {j*4096 - j*1024}, v20")
        p(f"v_add_u32 v{XO+j}, s68, v20")
    if OPT["rot"]:
        p("s_and_b32 s80, s34, 3")
        p("s_lshl_b32 s80, s80, 1")
        p("s_add_u32 s80, s80, s35")
    else:
        p("s_mov_b32 s80, 0")
    p("s_mul_i32 s73, s4, 3072")
    p(f"s_add_u32 s73, s73, {WR}")
    def dma_x(st):
        p(f"s_add_u32 s74, s80, {st}")
        p("s_and_b32 s74, s74, 7")
        p(f"s_add_u32 m0, s6, {(st % 5) * 4096}")
        p("s_lshl_b32 s72, s74, 7")
        for j in range(4):
            vm.issue(f"buffer_load_dwordx4 v{XO+j}, s[8:11], s72 offen offset:{j*1024} lds", ("S", st))
    def dma_w(st):
        p(f"s_add_u32 m0, s73, {(st % 5) * 12288}")
        p(f"s_mul_i32 s72, s74, {64*3072}")
        for j in range(3):
            vm.issue(f"buffer_load_dwordx4 v{WO+j}, s[16:19], s72 offen offset:{j*1024} lds", ("S", st))
    def dma(st):
        if st < 8:
            dma_x(st); dma_w(st)
        else:
            p(f"s_add_u32 s74, s75, {2*(st-8)}")
            p("s_and_b32 s74, s74, 7")
            p(f"s_add_u32 m0, s6, {(st % 5) * 4096}")
            p("s_lshl_b32 s72, s74, 7")
            for j in range(4):
                vm.issue(f"buffer_load_dwordx4 v{BO+j}, s[20:23], s72 offen offset:{j*1024} lds", ("S", st))
    p("s_waitcnt lgkmcnt(0)")
    srd(p, 8, 40, 2048*1024)
    dma_x(0)
    p("s_lshl_b32 s70, s35, 6")
    p("s_mul_i32 s71, s4, 16*3072")
    p("s_add_u32 s70, s70, s71")
    p("s_movk_i32 s71, 3072")
    for j in range(3):
        p(f"v_add_u32 v18, {64*j}, v0")
        p("v_mul_u32_u24 v19, 43691, v18")
        p("v_lshrrev_b32 v19, 19, v19")
        p("v_mul_u32_u24 v20, 12, v19")
        p("v_sub_u32 v20, v18, v20")
        p("v_cmp_gt_u32 vcc, 8, v20")
        p("v_bfe_u32 v21, v20, 1, 1")
        p("v_lshlrev_b32 v21, 10, v21")
        p("v_lshrrev_b32 v26, 2, v20")
        p("v_lshl_add_u32 v21, v26, 5, v21")
        p("v_and_b32 v26, 1, v20")
        p("v_lshl_add_u32 v21, v26, 4, v21")
        p("v_lshlrev_b32 v26, 4, v20")
        p(f"v_add_u32 v26, {2048-128}, v26")
        p("v_cndmask_b32 v21, v26, v21, vcc")
        p("v_mad_u32_u24 v21, v19, s71, v21")
        if j: p(f"v_subrev_u32 v21, {j*1024}, v21")
        p(f"v_add_u32 v{WO+j}, s70, v21")
    srd(p, 16, 60, 512*3072)
    dma_w(0); dma(1)
    srd(p, 12, 58, WS_USED)
    p("s_cmp_lt_u32 s4, 2")
    p("s_cselect_b32 s20, s46, s48")
    p("s_cselect_b32 s21, s47, s49")
    p(f"s_mov_b32 s22, {512*1024}")
    p("s_mov_b32 s23, 0x00020000")
    p("s_and_b32 s75, s4, 1")
    p("s_add_u32 s75, s75, s80")
    p("s_lshl_b32 s69, s35, 15")
    for j in range(4):
        p(f"v_lshl_add_u32 v20, v22, 10, v{30+j}")
        p(f"v_add_u32 v20, {j*8192 - j*1024}, v20")
        p(f"v_add_u32 v{BO+j}, s69, v20")
    p("v_lshlrev_b32 v18, 2, v0")
    p(f"v_add_u32 v18, {LF}, v18")
    p("v_mov_b32 v19, 0")
    p("ds_write_b32 v18, v19")
    DEP = OPT.get("dep", 2)
    for q in range(2, DEP): dma(q)
    p(f"s_mov_b32 s68, {EPO}")
    vm.issue("buffer_load_dword v163, off, s[12:15], s68 sc1", "lam")
    p("s_lshl_b32 s68, s35, 6")
    p("v_lshl_add_u32 v164, v2, 1, s68")
    srd(p, 24, 42, 1024)
    vm.issue(f"buffer_load_ushort v{LT}, v164, s[24:27], 0 offen", "lam")
    srd(p, 28, 44, 1024)
    vm.issue(f"buffer_load_ushort v{LT+1}, v164, s[28:31], 0 offen", "lam")
    p("s_mov_b32 s24, s54"); p("s_mov_b32 s25, s55")
    vm.issue(f"buffer_load_ushort v{LT+2}, v164, s[24:27], 0 offen", "lam")
    p("v_lshrrev_b32 v165, 1, v2")
    p("v_and_b32 v165, 7, v165")
    p("v_lshlrev_b32 v166, 7, v2")
    p("v_add_u32 v167, s6, v166")
    for ks in range(4):
        p(f"v_add_u32 v160, {2*ks}, v1")
        p("v_xor_b32 v160, v160, v165")
        p(f"v_lshl_add_u32 v{XA1+ks}, v160, 4, v167")
        p(f"v_lshl_add_u32 v{BA+ks}, v160, 4, v166")
        p(f"v_add_u32 v{BA+4+ks}, 40960, v{BA+ks}")
    mk("pro", st1)
    for st in range(8):
        vm.wait(("S", st), "lgkmcnt(0)")
        p("s_barrier")
        for ks in range(4):
            p(f"ds_read_b128 {vr(XF + 16*st + 4*ks, 4)}, v{XA1+ks} offset:{(st % 5) * 4096}")
        if st + DEP < 12: dma(st + DEP)
        if st == 5:
            p("v_readfirstlane_b32 s32, v163")
            lam_compute(p, L, LT)
            p("s_mul_i32 s32, s32, 0x9E3779B1")
            p("s_add_u32 s32, s32, 0x7F4A7C15")
            p("s_xor_b32 s33, s32, 0x5BD1E995")
    for q in range(8 + DEP, 12): dma(q)
    mk("t1", st1)
    p("s_cmp_lt_u32 s4, 2")
    p("s_cselect_b32 s24, s50, s52")
    p("s_cselect_b32 s25, s51, s53")
    p(f"s_mov_b32 s26, {512*1024}")
    p("s_lshr_b32 s68, s2, 3")
    p("s_lshl_b32 s68, s68, 1")
    p("s_and_b32 s69, s4, 1")
    p("s_add_u32 s68, s68, s69")
    p("s_lshl_b32 s68, s68, 13")
    vm.drain()
    p("s_barrier")
    slotq = [3, 4, 0, 1]
    def rd1(kk):
        b = BF[kk % 3]; s = kk >> 2; ks = kk & 3
        off = (s & 1) * 20480 + slotq[s >> 1] * 4096
        p(f"ds_read_b128 {vr(b,4)}, v{BA+ks} offset:{off}")
        p(f"ds_read_b128 {vr(b+4,4)}, v{BA+4+ks} offset:{off}")
    rd1(0); rd1(1)
    for kk in range(32):
        b = BF[kk % 3]
        if kk + 2 < 32:
            rd1(kk + 2); p("s_waitcnt lgkmcnt(4)")
        elif kk + 2 == 32: p("s_waitcnt lgkmcnt(2)")
        else: p("s_waitcnt lgkmcnt(0)")
        p(f"v_mfma_f32_32x32x16_bf16 {vr(RE,16)}, {vr(XF+4*kk,4)}, {vr(b,4)}, {vr(RE,16) if kk else 0}")
        p(f"v_mfma_f32_32x32x16_bf16 {vr(IM,16)}, {vr(XF+4*kk,4)}, {vr(b+4,4)}, {vr(IM,16) if kk else 0}")
        if OPT["cwarm"] and kk >= 8 and kk % 3 == 2:
            q = (kk - 8) // 3
            if q == 4: p("s_add_u32 s68, s68, 4096")
            p(f"buffer_load_dwordx4 v[240:243], v3, s[24:27], s68 offen offset:{(q & 3)*1024}")
    a0, a1 = 210, 212
    p("s_lshl_b32 s68, s4, 9")
    p(f"s_add_u32 s68, s68, {EXC}")
    p("v_lshl_add_u32 v18, v0, 3, s68")
    p(f"v_lshlrev_b32 v19, 3, v2")
    p(f"v_add_u32 v19, {EXC}, v19")
    p("s_lshl_b32 s68, s4, 1")
    p("v_add_u32 v20, s68, v1")
    p("s_lshl_b32 s68, s4, 2")
    p(f"s_add_u32 s68, s68, {LF}")
    p("v_mov_b32 v21, s68")
    p("v_mov_b32 v22, 1")
    p("v_and_b32 v23, 3, v0")
    p("v_lshlrev_b32 v23, 2, v23")
    p(f"v_add_u32 v23, {LF}, v23")
    p(f"v_add_f32 v{L+2}, v{L+2}, v{L+2}")
    p(f"v_add_f32 v{L+3}, v{L+3}, v{L+3}")
    hr, hi = RE, IM
    for r in range(16):
        p(f"v_mul_f32 v214, v{L+3}, v{IM+r}")
        p(f"v_mul_f32 v215, v{L+3}, v{RE+r}")
        p(f"v_fma_f32 v{RE+r}, v{L+2}, v{RE+r}, -v214")
        p(f"v_fma_f32 v{IM+r}, v{L+2}, v{IM+r}, v215")
        if r == 0: continue
        d = a0 if r & 1 else a1
        p(f"v_fma_f32 v{d}, v{L}, v{hr}, v{RE+r}")
        p(f"v_fma_f32 v{d+1}, v{L}, v{hi}, v{IM+r}")
        p(f"v_fma_f32 v{d}, -v{L+1}, v{hi}, v{d}")
        p(f"v_fmac_f32 v{d+1}, v{L+1}, v{hr}")
        hr, hi = d, d + 1
    p(f"ds_write_b64 v18, {vr(hr,2)}")
    p("s_waitcnt lgkmcnt(0)")
    p("ds_write_b32 v21, v22")
    mk("pub", st1)
    lds_spin(p, 23, 1)
    SUB = 136
    for j in range(8):
        p(f"ds_read_b64 {vr(SUB+2*j,2)}, v19 offset:{j*256}")
    PW = 214
    p(f"v_mov_b32 v{CAR}, 0"); p(f"v_mov_b32 v{CAR+1}, 0")
    p(f"v_mov_b32 v{PW}, 1.0"); p(f"v_mov_b32 v{PW+1}, 0")
    p("s_waitcnt lgkmcnt(0)")
    cr, ci = SUB, SUB + 1
    pr, pi = L + 4, L + 5
    for j in range(1, 8):
        p(f"v_cmp_eq_u32 vcc, {j}, v20")
        d = a0 if j & 1 else a1
        p(f"v_fma_f32 v{d}, v{L+4}, v{cr}, v{SUB+2*j}")
        p(f"v_fma_f32 v{d+1}, v{L+4}, v{ci}, v{SUB+2*j+1}")
        p(f"v_cndmask_b32 v{CAR}, v{CAR}, v{cr}, vcc")
        p(f"v_cndmask_b32 v{CAR+1}, v{CAR+1}, v{ci}, vcc")
        p(f"v_cndmask_b32 v{PW}, v{PW}, v{pr}, vcc")
        p(f"v_cndmask_b32 v{PW+1}, v{PW+1}, v{pi}, vcc")
        p(f"v_fma_f32 v{d}, -v{L+5}, v{ci}, v{d}")
        p(f"v_fmac_f32 v{d+1}, v{L+5}, v{cr}")
        cr, ci = d, d + 1
        if j < 7:
            q = 216 if j & 1 else 218
            cmul(p, q, q + 1, pr, pi, L + 4, L + 5)
            pr, pi = q, q + 1
    p("s_lshl_b32 s68, s35, 8")
    p("v_lshl_add_u32 v18, v2, 3, s68")
    p("s_lshl_b32 s68, s34, 12")
    p(f"s_add_u32 s68, s68, {EE}")
    p("s_cmp_eq_u32 s4, 0")
    p("s_cbranch_scc0 L_noE")
    p(f"buffer_store_dwordx2 {vr(cr,2)}, v18, s[12:15], s68 offen sc1")
    p.label("L_noE")
    p(f"v_mov_b32 v{L+4}, v{PW}"); p(f"v_mov_b32 v{L+5}, v{PW+1}")
    p("s_mul_i32 s68, s4, 2560")
    p(f"s_add_u32 s68, s68, {P2}")
    p("v_mul_u32_u24 v4, 80, v2")
    p("v_lshl_add_u32 v4, v1, 5, v4")
    p(f"v_add_u32 v{L+2}, s68, v4")
    p("v_bfe_u32 v4, v0, 2, 2")
    p("v_lshl_add_u32 v4, v1, 3, v4")
    p("v_mul_u32_u24 v4, 80, v4")
    p("v_and_b32 v5, 1, v0")
    p("v_lshl_add_u32 v4, v5, 5, v4")
    p("v_bfe_u32 v5, v0, 4, 1")
    p("v_lshl_add_u32 v4, v5, 4, v4")
    p("v_bfe_u32 v5, v0, 1, 1")
    p("v_lshl_add_u32 v4, v5, 3, v4")
    p(f"v_add_u32 v{L+3}, s68, v4")
    p("s_setprio 1")

    p.label("L_ATT")
    assert st_.n == st1.n or not STAMP
    S = [8, 24]; O = [40, 56]; Q = [72, 76]; K = [80, 84]; V = [88, 96]; IDX = 7; VL = 1; VV = 2
    WOR = 104; HA = 168
    kv = OPT["kvsc"]
    p("s_lshl_b32 s69, s37, 3")
    p("s_lshl_b32 s70, s4, 1")
    p("s_add_u32 s69, s69, s70")
    p("s_add_u32 s46, s69, s5")
    p("s_lshl_b32 s68, s5, 5")
    p("v_add_u32 v6, s68, v0")
    p("v_and_b32 v4, 1, v0")
    p("v_add_u32 v4, s69, v4")
    p("v_cmp_lt_u32 vcc, 31, v0")
    p("s_lshr_b32 s70, s36, 1")
    p("s_lshl_b32 s70, s70, 6")
    p("v_cndmask_b32 v6, v6, v4, vcc")
    p("v_add_u32 v6, s70, v6")
    p("v_subrev_u32 v4, 34, v0")
    p("v_and_b32 v4, 15, v4")
    p("v_and_b32 v5, 8, v4")
    p("v_bfe_u32 v8, v4, 2, 1")
    p("v_add_u32 v5, v5, v8")
    p("s_and_b32 s70, s46, 3")
    p("s_lshl_b32 s70, s70, 1")
    p("v_add_u32 v5, s70, v5")
    p("v_and_b32 v4, 3, v4")
    p("s_and_b32 s70, s46, 0x3c")
    p("v_add_u32 v4, s70, v4")
    p("v_cmp_lt_u32 vcc, 33, v0")
    p("v_lshl_add_u32 v4, v5, 6, v4")
    p(f"s_mov_b32 s70, {FL1}")
    p("v_cndmask_b32 v6, v6, v4, vcc")
    p("v_lshlrev_b32 v6, 6, v6")
    p("s_lshl_b32 s76, s36, 16")
    p("s_lshl_b32 s77, s69, 10")
    p("s_add_u32 s77, s77, s76")
    p("s_lshl_b32 s73, s5, 15")
    p("s_add_u32 s73, s73, s76")
    p("v_lshrrev_b32 v4, 5, v0")
    p("v_and_b32 v5, 15, v0")
    p("v_lshlrev_b32 v5, 4, v5")
    p("v_lshl_add_u32 v5, v4, 8, v5")
    p(f"v_add_u32 v5, {VF}, v5")
    p(f"v_mov_b32 v{VV}, v5")
    p(f"s_add_u32 s16, s58, {KF}")
    p("s_addc_u32 s17, s59, 0")
    p(f"s_mov_b32 s18, {WS_USED - KF}")
    p("s_mov_b32 s19, 0x00020000")
    p("s_lshl_b32 s68, s4, 4")
    p("s_lshl_b32 s70, s5, 2")
    p("s_add_u32 s68, s68, s70")
    p(f"s_add_u32 s68, s68, {LF + 128}")
    p("v_mov_b32 v1, s68")
    p("s_mov_b32 s74, 0")
    p(f"s_mov_b32 s70, {FL1}")
    p("v_and_b32 v4, 27, v0")
    p("v_mov_b32 v5, 0x3f803f80")
    p("v_cmp_eq_u32 vcc, 16, v4")
    p("s_mov_b32 s44, 0xffff"); p("s_mov_b32 s45, 0xffff")
    p("v_cndmask_b32 v4, 0, v5, vcc")
    for i in range(16): p(f"v_mov_b32 v{V[0]+i}, v4")
    p(f"v_mov_b32 v{IDX}, 0xdddddddd")
    for i in range(32): p(f"v_mov_b32 v{O[0]+i}, 0")
    for i in range(8, 16): p(f"v_mov_b32 v{S[1]+i}, 0")
    p("v_bfe_u32 v10, v0, 2, 2")
    p("v_lshrrev_b32 v8, 5, v0")
    p("v_lshl_add_u32 v8, v8, 2, v10")
    p("v_lshlrev_b32 v8, 7, v8")
    p("v_bfe_u32 v9, v0, 4, 1")
    p("v_lshl_add_u32 v8, v9, 5, v8")
    p("v_and_b32 v9, 3, v0")
    p("v_lshl_add_u32 v8, v9, 3, v8")
    p("v_lshrrev_b32 v10, 1, v10")
    p("v_lshl_add_u32 v8, v10, 6, v8")
    p("s_lshl_b32 s68, s4, 14")
    p(f"s_add_u32 s68, s68, {WQ}")
    p("v_add_u32 v8, s68, v8")
    p("v_xor_b32 v9, 64, v8")
    p("s_lshl_b32 s68, s4, 2")
    p(f"s_add_u32 s68, s68, {LF + 16}")
    p("v_mov_b32 v10, s68")
    p(f"v_mov_b32 v11, {LF + 32}")
    p("v_mov_b32 v12, 1")
    CO = 250
    p("s_cmp_lt_u32 s4, 2")
    p("s_cselect_b32 s20, s50, s52")
    p("s_cselect_b32 s21, s51, s53")
    p(f"s_mov_b32 s22, {512*1024}")
    p("s_mov_b32 s23, 0x00020000")
    p("v_lshrrev_b32 v4, 3, v0")
    p("v_and_b32 v5, 7, v0")
    for j in range(4):
        p(f"v_add_u32 v13, {8*j}, v4")
        p("v_bfe_u32 v13, v13, 1, 3")
        p("v_xor_b32 v13, v13, v5")
        p("v_lshlrev_b32 v13, 4, v13")
        p("v_lshl_add_u32 v13, v4, 10, v13")
        p(f"v_add_u32 v{CO+j}, {j*8192 - j*1024}, v13")
    p("s_lshl_b32 s47, s39, 1")
    p("s_add_u32 s47, s47, s5")
    p("s_lshl_b32 s47, s47, 15")
    p("s_and_b32 s69, s4, 1")
    p("s_lshl_b32 s69, s69, 9")
    p("s_add_u32 s47, s47, s69")
    p("s_lshl_b32 s40, s4, 15")
    p("s_lshl_b32 s69, s5, 14")
    p("s_add_u32 s40, s40, s69")
    p("s_lshl_b32 s49, s38, 1")
    p("s_add_u32 s49, s49, s5")
    poll(p, 6, 70)
    def loadK(b, so, extra=0):
        p(f"buffer_load_dwordx4 {vr(K[b],4)}, v3, s[16:19], s{so} offen offset:{extra} {kv}")
    def loadV(b, so, extra=0):
        p("s_mov_b64 exec, s[44:45]")
        for f in range(2):
            p(f"buffer_load_dwordx4 {vr(V[b]+4*f,4)}, v{VV}, s[12:15], s{so} offen offset:{extra+512*f} {kv}")
        p("s_mov_b64 exec, -1")
    p("s_cmp_eq_u32 s3, 4")
    p("s_cbranch_scc0 L_noEf")
    p("s_lshl_b32 s69, s35, 10")
    p("s_lshl_b32 s70, s34, 6")
    p("s_add_u32 s69, s69, s70")
    p(f"s_add_u32 s69, s69, {FLE}")
    publish(p, 69)
    p.label("L_noEf")
    loadK(0, 73)
    for c in range(2):
        p(f"buffer_load_dwordx4 {vr(Q[c],4)}, v3, s[12:15], s77 offen offset:{c*1024} sc1")
    loadV(0, 73); loadK(1, 73, 1024)
    p("s_cmp_eq_u32 s5, 0")
    p("s_cbranch_scc0 L_nowf")
    p("ds_write_b32 v10, v12")
    p.label("L_nowf")
    lds_spin(p, 10, 1)
    n = 0
    for hh in range(8):
        for jn in range(2):
            for e_ in range(2):
                p(f"ds_read_b64_tr_b16 {vr(WOR + 8*hh + 4*jn + 2*e_, 2)}, v{8+jn} offset:{hh*2048 + e_*1024}")
                n += 1
                if n % 8 == 0 and n > 8: p("s_waitcnt lgkmcnt(8)")
    p("s_waitcnt lgkmcnt(0)")
    p("s_mov_b64 exec, 1")
    p("ds_add_u32 v11, v12")
    p("s_mov_b64 exec, -1")
    p("s_waitcnt vmcnt(3) lgkmcnt(0)")
    p(f"v_mfma_f32_32x32x16_bf16 {vr(S[0],16)}, {vr(K[0],4)}, {vr(Q[0],4)}, 0")
    mk("att")
    p("s_nop 11")
    _lc = [0]
    ADP = OPT.get("adp", 1)
    NT = OPT.get("nt", 4)
    ACA = [168, 184]; HB = [200, 204]; CBF = [216, 224]; CA = 250
    def rdC(t):
        for jn in range(2):
            p(f"ds_read_b128 {vr(CBF[t & 1]+4*jn,4)}, v{CA + (t & 3)} offset:{jn*16384 + (t >> 2)*4096}")
    def ldH(t):
        p(f"buffer_load_dwordx4 {vr(HB[t & 1],4)}, v3, s[12:15], s47 offen offset:{(t & 3)*1024} sc1")
        if (t & 3) == 3: p("s_add_u32 s47, s47, 4096")
    def trip(dmav=False, tph=None):
        last = tph == NT - 1
        def dm(j):
            if dmav: p(f"buffer_load_dwordx4 v{CO+j}, s[20:23], s47 offen offset:{j*1024} lds")
        for it in range(2):
            b = it; nb = 1 - it
            t = None if tph is None else 2 * tph + it
            for c in range(2):
                s = S[c]; sn = S[1 - c]
                e = lambda i: p(f"v_exp_f32 v{s+i}, v{s+i}")
                e(0); e(1)
                pv = V[b] if c else V[nb]
                p(f"v_smfmac_f32_32x32x32_bf16 {vr(O[1-c],16)}, {vr(pv+4,4)}, {vr(sn+8,8)}, v{IDX}")
                if c == 0:
                    if not (last and it == 1): loadV(nb, 73, 1024 + it * 1024)
                elif last: p(f"s_waitcnt vmcnt({2 if it == 0 else 0})")
                else: p(f"s_waitcnt vmcnt({6 if dmav else 4 if t else 3})")
                e(2); e(3); e(4)
                kk = K[b] if c == 0 else K[nb]
                if not (last and it == 1 and c == 1):
                    p(f"v_mfma_f32_32x32x16_bf16 {vr(sn,16)}, {vr(kk,4)}, {vr(Q[1-c],4)}, 0")
                lg = " lgkmcnt(0)" if t is not None or (ADP and it == 1) else ""
                if c == 0:
                    if last: p(f"s_waitcnt vmcnt({4 if it == 0 else 0}){lg}")
                    else:
                        loadK(b, 73, 2048 + it * 1024)
                        p(f"s_waitcnt vmcnt({6 if dmav else 5 if t else 4}){lg}")
                    if dmav and it == 0: p("s_mov_b32 m0, s40")
                else:
                    dm(2 * it + 1)
                    if ADP and it == 0 and not last:
                        p("s_mov_b64 exec, 1")
                        p(f"ds_inc_u32 v1, v{IDX}")
                        p(f"ds_inc_u32 v1, v{IDX} offset:8")
                        p("s_mov_b64 exec, -1")
                    if ADP and it == 1 and not last:
                        n_ = _pc[0]; _pc[0] += 1
                        p("s_cmp_gt_u32 s74, s75")
                        p("s_setprio 0")
                        p(f"s_cbranch_scc1 Lpr{n_}")
                        p("s_setprio 1")
                        p.label(f"Lpr{n_}")
                e(5); e(6); e(7); e(8); e(9)
                p(f"v_smfmac_f32_32x32x32_bf16 {vr(O[c],16)}, {vr(V[b],4)}, {vr(s,8)}, v{IDX}")
                if c == 0: dm(2 * it)
                if ADP and c == 1 and it == 0 and not last:
                    p("ds_read_b32 v6, v1 offset:4")
                    p("s_add_u32 s74, s74, 1")
                if ADP and c == 0 and it == 1 and not last:
                    p("v_readfirstlane_b32 s75, v6")
                if c == 0 and t is not None and t + 1 < 2 * NT: rdC(t + 1)
                if it == 1 and c == 1:
                    p("s_add_u32 s73, s73, 2048")
                    if dmav:
                        p("s_add_u32 s40, s40, 4096")
                        p("s_add_u32 s47, s47, 128")
                    if tph is None: p("s_cmp_lg_u32 s73, s72")
                e(10); e(11); e(12)
                if t is not None:
                    p(f"v_mfma_f32_32x32x16_bf16 {vr(ACA[c],16)}, {vr(HB[t & 1],4)}, {vr(CBF[t & 1]+4*c,4)}, {vr(ACA[c],16) if t else 0}")
                    if c == 1 and t + 2 < 2 * NT: ldH(t + 2)
                e(13); e(14); e(15)
    def loop(cnt, dmav=False, drain=False):
        n0, n1 = cnt
        if n0 == 0 and n1 == 0: return
        k = _lc[0]; _lc[0] += 1
        if n0 == n1: p(f"s_add_u32 s72, s73, {n0*2048}")
        else:
            p("s_cmp_eq_u32 s5, 0")
            p(f"s_cselect_b32 s72, {n0}, {n1}")
            p("s_lshl_b32 s72, s72, 11")
            if min(n0, n1) == 0:
                p(f"s_cbranch_scc0 L_loopx{k}")
            p("s_add_u32 s72, s72, s73")
        if drain: p("s_waitcnt vmcnt(0)")
        p(".p2align 6")
        p.label(f"L_loop{k}")
        trip(dmav)
        if TRACE:
            p("s_cselect_b32 s98, 1, 0"); tr("trip"); p("s_cmp_eq_u32 s98, 1")
        p(f"s_cbranch_scc1 L_loop{k}")
        p.label(f"L_loopx{k}")

    EB = 210
    G8 = 232; X_ = 240; D_ = 248; OG = 249
    def g1only(name, fn):
        p("s_cmp_eq_u32 s5, 0")
        p(f"s_cbranch_scc1 L_no{name}")
        fn()
        p.label(f"L_no{name}")
    def check_or_poll(vaddr, soff, nnewer, dontcare=None, redo=None):
        n = _pc[0]; _pc[0] += 1
        p(f"s_waitcnt vmcnt({nnewer})")
        p("v_cmp_eq_u32 s[78:79], s32, v4")
        p("v_cmp_eq_u32 vcc, s33, v5")
        p("s_and_b64 s[78:79], s[78:79], vcc")
        if dontcare is not None: p(f"s_or_b64 s[78:79], s[78:79], s[{dontcare}:{dontcare+1}]")
        p("s_cmp_eq_u64 s[78:79], -1")
        p(f"s_cbranch_scc1 Lchk{n}")
        redo()
        poll(p, vaddr, soff, dontcare)
        p.label(f"Lchk{n}")
    def E2():
        p(f"v_mov_b32 v6, {LF + 32}")
        lds_spin(p, 6, 8)
    def E3a():
        p("v_min_u32 v6, 15, v0")
        p("v_cmp_le_u32 s[42:43], s34, v6")
        p("v_lshlrev_b32 v6, 6, v6")
        p("s_lshl_b32 s48, s35, 10")
        p(f"s_add_u32 s48, s48, {FLE}")
        p("buffer_load_dwordx2 v[4:5], v6, s[12:15], s48 offen sc1")
    def E3b():
        check_or_poll(6, 48, 6, 42, redo=E3a)
        p("v_and_b32 v6, 31, v0")
        p("s_lshl_b32 s68, s35, 8")
        p("v_lshl_add_u32 v6, v6, 3, s68")
        p(f"s_mov_b32 s68, {EE}")
        for c in range(15):
            p(f"s_cmp_le_u32 s34, {c}")
            p("s_cbranch_scc1 L_noE3b")
            p(f"buffer_load_dwordx2 {vr(EB+2*c,2)}, v6, s[12:15], s68 offen sc1")
            p("s_add_u32 s68, s68, 4096")
    def E4():
        p("s_waitcnt vmcnt(6)")
        p("v_mov_b32 v240, 0"); p("v_mov_b32 v241, 0")
        for c in range(15):
            p(f"s_cmp_le_u32 s34, {c}")
            p("s_cbranch_scc1 L_hin")
            p(f"v_fmac_f32 v{EB+2*c}, v{L+6}, v240")
            p(f"v_fmac_f32 v{EB+2*c+1}, v{L+6}, v241")
            p(f"v_fma_f32 v242, -v{L+7}, v241, v{EB+2*c}")
            p(f"v_fma_f32 v241, v{L+7}, v240, v{EB+2*c+1}")
            p("v_mov_b32 v240, v242")
        p.label("L_hin")
        p(f"v_fmac_f32 v{CAR}, v{L+4}, v240")
        p(f"v_fmac_f32 v{CAR+1}, v{L+4}, v241")
        p(f"v_fma_f32 v{CAR}, -v{L+5}, v241, v{CAR}")
        p(f"v_fmac_f32 v{CAR+1}, v{L+5}, v240")
        pr, pi = CAR, CAR + 1
        PK = 234
        for r in range(16):
            p(f"v_fmac_f32 v{RE+r}, v{L}, v{pr}")
            p(f"v_fmac_f32 v{IM+r}, v{L}, v{pi}")
            p(f"v_fma_f32 v{RE+r}, -v{L+1}, v{pi}, v{RE+r}")
            p(f"v_fmac_f32 v{IM+r}, v{L+1}, v{pr}")
            pr, pi = RE + r, IM + r
            if r & 1:
                p(f"v_cvt_pk_bf16_f32 v{PK + (r >> 1)}, v{RE+r-1}, v{RE+r}")
                p(f"v_cvt_pk_bf16_f32 v{PK + 8 + (r >> 1)}, -v{IM+r-1}, -v{IM+r}")
        p("s_lshl_b32 s68, s7, 16")
        p("s_lshl_b32 s69, s35, 11")
        p("s_add_u32 s68, s68, s69")
        p(f"s_add_u32 s68, s68, {HF}")
        p("s_add_u32 s69, s68, 0x8000")
        for pl in range(2):
            for q in range(2):
                p(f"ds_write_b128 v{L+2}, {vr(PK + 8*pl + 4*q, 4)} offset:{q*16}")
            for kl in range(2):
                for e_ in range(2):
                    p(f"ds_read_b64_tr_b16 {vr(210 + 8*pl + 4*kl + 2*e_, 2)}, v{L+3} offset:{(16*kl + 4*e_)*80}")
        for pl in range(2):
            p(f"s_waitcnt lgkmcnt({6 if pl == 0 else 0})")
            for kl in range(2):
                p(f"buffer_store_dwordx4 {vr(210 + 8*pl + 4*kl, 4)}, v3, s[12:15], s{68+pl} offen offset:{kl*1024} sc1")
    def E4b():
        p("s_lshl_b32 s68, s7, 10")
        p("s_lshl_b32 s69, s35, 6")
        p("s_add_u32 s68, s68, s69")
        p(f"s_add_u32 s68, s68, {FLH}")
        p("s_waitcnt vmcnt(6)")
        publish(p, 68)
    def E5a():
        p("v_and_b32 v4, 7, v0")
        p("v_and_b32 v5, 4, v4")
        p("v_and_b32 v4, 3, v4")
        p("v_lshl_add_u32 v4, v5, 1, v4")
        p("v_and_b32 v5, 3, v0")
        p("v_add_u32 v4, v4, v5")
        p("s_lshr_b32 s68, s49, 5")
        p("v_add_u32 v4, s68, v4")
        p("s_lshl_b32 s68, s4, 4")
        p("s_bfe_u32 s69, s49, 0x20003")
        p("s_lshl_b32 s69, s69, 2")
        p("s_add_u32 s68, s68, s69")
        p("s_bfe_u32 s69, s49, 0x20001")
        p("s_add_u32 s68, s68, s69")
        p("v_lshl_add_u32 v4, v4, 6, s68")
        p("s_lshl_b32 s68, s49, 4")
        p(f"s_add_u32 s68, s68, {(FLH - FL1) // 64}")
        p("v_cmp_gt_u32 vcc, 16, v0")
        p("v_add_u32 v5, s68, v0")
        p(f"s_mov_b32 s48, {FL1}")
        p("v_cndmask_b32 v6, v4, v5, vcc")
        p("v_lshlrev_b32 v6, 6, v6")
        p("buffer_load_dwordx2 v[4:5], v6, s[12:15], s48 offen sc1")
    def E5b():
        check_or_poll(6, 48, 6, redo=E5a)
        p("s_lshl_b32 s47, s49, 16")
        p("s_lshl_b32 s69, s4, 14")
        p("s_add_u32 s47, s47, s69")
        p(f"s_add_u32 s47, s47, {HF}")
        ldH(0); ldH(1)
        p("s_lshl_b32 s68, s39, 11")
        p("s_add_u32 s68, s68, s47")
        for t in range(2):
            p(f"buffer_load_dwordx4 {vr(208+4*t,4)}, v3, s[12:15], s68 offen offset:{t*1024} sc1")
        p("s_and_b32 s68, s4, 1")
        p("s_lshl_b32 s68, s68, 3")
        p("s_lshl_b32 s40, s49, 5")
        p("s_add_u32 s40, s40, s68")
        p("s_lshr_b32 s68, s4, 1")
        p("s_lshl_b32 s68, s68, 5")
        p("s_lshl_b32 s41, s39, 6")
        p("s_add_u32 s41, s41, s68")
        p("v_lshrrev_b32 v4, 5, v0")
        p("v_and_b32 v5, 31, v0")
        p("s_lshl_b32 s68, s40, 2")
        p(f"s_add_u32 s68, s68, {GG}")
        p("v_lshlrev_b32 v6, 6, v4")
        p(f"buffer_load_dwordx4 {vr(G8,4)}, v6, s[12:15], s68 offen sc1")
        p(f"buffer_load_dwordx4 {vr(G8+4,4)}, v6, s[12:15], s68 offen offset:16 sc1")
        srd(p, 24, 56, 1024)
        p("v_lshlrev_b32 v6, 1, v5")
        p("s_lshl_b32 s68, s41, 1")
        p(f"buffer_load_ushort v{D_}, v6, s[24:27], s68 offen")
        p("v_lshl_add_u32 v6, v4, 14, v6")
        p("s_lshl_b32 s69, s40, 10")
        p("s_add_u32 s68, s68, s69")
        for r in range(8):
            if r == 4: p("s_add_u32 s68, s68, 4096")
            p(f"buffer_load_ushort v{X_+r}, v6, s[8:11], s68 offen offset:{(r & 3)*1024}")
        p("v_bfe_u32 v4, v5, 2, 1")
        p("v_lshlrev_b32 v4, 4, v4")
        p("v_and_or_b32 v4, v5, 3, v4")
        p("v_lshrrev_b32 v5, 3, v5")
        p("v_lshl_add_u32 v4, v5, 2, v4")
        p("v_lshlrev_b32 v4, 2, v4")
        p("s_lshl_b32 s68, s46, 7")
        p(f"s_add_u32 s68, s68, {GG}")
        p(f"buffer_load_dword v{OG}, v4, s[12:15], s68 offen sc1")
    def E6():
        p("s_lshl_b32 s68, s3, 2")
        p(f"s_add_u32 s68, s68, {LF + 36}")
        p("v_mov_b32 v216, s68")
        p("v_mov_b32 v217, 1")
        p("s_waitcnt vmcnt(6)")
        p("ds_write_b32 v216, v217")
    def TPH():
        p("s_xor_b32 s68, s3, 4")
        p("s_lshl_b32 s68, s68, 2")
        p(f"s_add_u32 s68, s68, {LF + 36}")
        p("v_mov_b32 v6, s68")
        lds_spin(p, 6, 1)
        p("v_lshrrev_b32 v4, 5, v0")
        p("v_and_b32 v5, 31, v0")
        p("v_bfe_u32 v6, v5, 1, 3")
        p("s_lshl_b32 s71, s4, 15")
        p("v_lshl_add_u32 v5, v5, 7, s71")
        for ks in range(4):
            p(f"v_add_u32 v216, {2*ks}, v4")
            p("v_xor_b32 v216, v216, v6")
            p(f"v_lshl_add_u32 v{CA+ks}, v216, 4, v5")
        rdC(0)
        for q in range(NT):
            if q == OPT.get("tp0", 99): p("s_setprio 0")
            if q == OPT.get("tp1", 99):
                g1only("TP1", lambda: p("s_setprio 1"))
            trip(False, q); tr("trip")
    sched = OPT["sched"]
    assert sum(x[0] for x in sched) == 16 - NT and sum(x[1] for x in sched) == 16 - NT, sched
    assert sched[-1][3] == '' and min(sched[-1][:2]) >= 1
    assert sum(x[0] for x in sched if x[2]) == 4 and sum(x[1] for x in sched if x[2]) == 4
    if OPT.get("noev"):
        loop((12, 12)); mk("nv"); p("s_setprio 0"); loop((4, 4))
        p("s_mov_b32 s40, 0"); p("s_mov_b32 s41, 0")
    else:
        for (n0, n1, dv, evs) in sched:
            loop((n0, n1), dv, drain=bool(dv))
            for ev in evs.split():
                tr(ev)
                if ev == "E2": E2()
                elif ev in ("E3a", "E3b", "E4", "E4b"):
                    assert n1 >= 1 or ev == "E3a"
                    g1only(ev, dict(E3a=E3a, E3b=E3b, E4=E4, E4b=E4b)[ev])
                elif ev == "E5a": E5a()
                elif ev == "E5b":
                    assert n0 >= 1 and n1 >= 1
                    E5b()
                elif ev == "P0": p("s_setprio 0")
                elif ev == "E6": E6()
                tr(ev + "x")
        TPH()
    p(f"v_smfmac_f32_32x32x32_bf16 {vr(O[1],16)}, {vr(V[1]+4,4)}, {vr(S[1]+8,8)}, v{IDX}")
    mk("loop")
    H2 = 200; G16 = 56; AV = X_; OA = 8; ACB = [40, 56]; CB = [72, 80, 88, 96]; R = O[0]
    for t in range(2 * NT, 16):
        p(f"buffer_load_dwordx4 {vr(H2+4*(t & 7),4)}, v3, s[12:15], s47 offen offset:{(t & 3)*1024} sc1")
        if (t & 3) == 3: p("s_add_u32 s47, s47, 4096")
    p("s_mul_i32 s68, s3, 2304")
    p(f"s_add_u32 s68, s68, {SCR}")
    p("v_add_u32 v4, s68, v3")
    p("v_lshl_add_u32 v5, v0, 2, s68")
    p("s_xor_b32 s68, s3, 4")
    p("s_mul_i32 s68, s68, 2304")
    p(f"s_add_u32 s68, s68, {SCR}")
    p("v_add_u32 v96, s68, v3")
    p("v_lshl_add_u32 v97, v0, 2, s68")
    p(f"v_sub_f32 v{OG}, 1.0, v{OG}")
    p("s_cmp_eq_u32 s5, 0")
    p("s_cbranch_scc0 L_red1")
    p(f"ds_write_b128 v4, {vr(O[1],4)}")
    p(f"ds_write_b128 v4, {vr(O[1]+4,4)} offset:1024")
    p(f"ds_write_b32 v5, v{O[1]+8} offset:2048")
    p("s_branch L_red2")
    p.label("L_red1")
    p(f"ds_write_b128 v4, {vr(O[0],4)}")
    p(f"ds_write_b128 v4, {vr(O[0]+4,4)} offset:1024")
    p(f"ds_write_b32 v5, v{O[0]+8} offset:2048")
    p("s_waitcnt lgkmcnt(0)")
    for i in range(9): p(f"v_mov_b32 v{O[0]+i}, v{O[1]+i}")
    p.label("L_red2")
    p(f"v_cvt_pk_bf16_f32 v{OG}, v{OG}, v{OG}")
    p("s_lshl_b32 s70, s46, 15")
    p("s_lshl_b32 s71, s36, 10")
    p("s_add_u32 s70, s70, s71")
    p(f"s_add_u32 s70, s70, {OF}")
    p(f"v_and_b32 v{OG}, 0xffff0000, v{OG}")
    p("s_lshl_b32 s47, s49, 15")
    p("s_lshl_b32 s74, s4, 13")
    p("s_add_u32 s47, s47, s74")
    p(f"s_add_u32 s47, s47, {OF}")
    p("s_add_u32 s48, s47, 4096")
    p("s_lshl_b32 s71, s49, 7")
    p(f"s_add_u32 s71, s71, {GG}")
    p("v_lshrrev_b32 v1, 5, v0")
    p("v_lshlrev_b32 v2, 6, v1")
    p(f"s_mov_b32 s68, {f2u(2.0**-40):#x}")
    p(f"s_mov_b32 s69, {f2u(2.0**40):#x}")
    p(f"s_mov_b32 s42, {f2u(2.0**120):#x}")
    p("s_waitcnt lgkmcnt(0)")
    p("s_barrier")
    tr("bar")
    p(f"ds_read_b128 v[12:15], v96")
    p(f"ds_read_b128 v[16:19], v96 offset:1024")
    p(f"ds_read_b32 v20, v97 offset:2048")
    p("s_waitcnt lgkmcnt(0)")
    for i in range(9): p(f"v_add_f32 v{R+i}, v{R+i}, v{12+i}")
    p(f"v_max3_f32 v6, |v{R}|, |v{R+1}|, |v{R+2}|")
    p(f"v_max3_f32 v6, v6, |v{R+3}|, |v{R+4}|")
    p(f"v_max3_f32 v6, v6, |v{R+5}|, |v{R+6}|")
    p(f"v_max_f32 v6, v6, |v{R+7}|")
    p(f"v_cmp_le_f32 s[78:79], s68, v{R+8}")
    p(f"v_cmp_ge_f32 s[80:81], s69, v{R+8}")
    p(f"v_cmp_ge_f32 vcc, s42, v6")
    p("s_and_b64 s[78:79], s[78:79], s[80:81]")
    p("s_and_b64 s[78:79], s[78:79], vcc")
    p("s_cmp_eq_u64 s[78:79], -1" if not OPT["fallback"] else "s_cmp_eq_u64 s[78:79], 1")
    p("s_cbranch_scc0 L_slow")
    p.label("L_fin")
    p(f"v_rcp_f32 v6, v{R+8}")
    p(f"v_mul_f32 v6, v{OG}, v6")
    for i in range(8): p(f"v_mul_f32 v{R+i}, v6, v{R+i}")
    for i in range(4): p(f"v_cvt_pk_bf16_f32 v{R+12+i}, v{R+2*i}, v{R+2*i+1}")
    for i in range(4): p(f"v_min_u32 v{R+12+i}, -2, v{R+12+i}")
    p(f"buffer_store_dwordx4 {vr(R+12,4)}, v3, s[12:15], s70 offen sc1")
    tr("ost")
    for q in range(4):
        p(f"buffer_load_dwordx4 {vr(G16+4*q,4)}, v2, s[12:15], s71 offen offset:{q*16} sc1")
    def loadO():
        for hh in range(8):
            p(f"buffer_load_dwordx4 {vr(OA+4*hh,4)}, v3, s[12:15], s{47 + (hh >> 2)} offen offset:{(hh & 3)*1024} sc1")
    def rdC2(t):
        for jn in range(2):
            p(f"ds_read_b128 {vr(CB[t & 3]+4*jn,4)}, v{CA + (t & 3)} offset:{jn*16384 + (t >> 2)*4096}")
    t0 = 2 * NT
    for t in range(t0, min(t0 + 3, 16)): rdC2(t)
    p(f"v_lshlrev_b32 v{D_}, 16, v{D_}")
    for i in range(8):
        p(f"v_lshlrev_b32 v{X_+i}, 16, v{X_+i}")
        p(f"v_mul_f32 v{X_+i}, v{D_}, v{X_+i}")
    p("s_waitcnt vmcnt(5)")
    extra = []
    for i in range(4): extra.append(f"v_cvt_pk_bf16_f32 v{40+i}, v{X_+2*i}, v{X_+2*i+1}")
    for i in range(4):
        extra.append(f"v_lshlrev_b32 v{X_+2*i}, 16, v{40+i}")
        extra.append(f"v_and_b32 v{X_+2*i+1}, 0xffff0000, v{40+i}")
    for i in range(8): extra.append(f"v_mul_f32 v{AV+i}, v{G8+i}, v{X_+i}")
    extra += ["s_lshl_b32 s68, s3, 13", "v_add_u32 v232, s68, v3", "s_lshl_b32 s68, s5, 15", "s_lshl_b32 s74, s4, 11", "s_add_u32 s68, s68, s74",
              "v_add_u32 v233, s68, v3", "v_and_b32 v5, 31, v0", "v_lshlrev_b32 v5, 2, v5", "v_lshl_add_u32 v234, v1, 15, v5", "v_add_u32 v235, 4096, v234",
              "s_lshl_b32 s40, s40, 11", "s_lshl_b32 s41, s41, 2", "s_add_u32 s40, s40, s41", "s_add_u32 s41, s40, 8192"]
    ot = OPT.get("oload_t", 12)
    for t in range(t0, 16):
        if t + 3 < 16:
            rdC2(t + 3); p("s_waitcnt lgkmcnt(6)")
        else: p(f"s_waitcnt lgkmcnt({2*(15-t)})")
        for jn in range(2):
            p(f"v_mfma_f32_32x32x16_bf16 {vr(ACA[jn],16)}, {vr(H2+4*(t & 7),4)}, {vr(CB[t & 3]+4*jn,4)}, {vr(ACA[jn],16)}")
            for _ in range(3):
                if extra: p(extra.pop(0))
        if t == ot: loadO()
    for x in extra: p(x)
    if ot < t0 or ot > 15: loadO()
    srd(p, 28, 66, 2048*2048)
    p("s_waitcnt vmcnt(8)")
    p("s_barrier")
    for jn in range(2):
        for r in range(16):
            p(f"v_mul_f32 v{ACA[jn]+r}, v{G16+r}, v{ACA[jn]+r}")
    mk("pre")
    p(f"s_mov_b32 s81, {SPIN}")
    p.label("L_opoll")
    for hh in range(8):
        p(f"s_waitcnt vmcnt({7-hh})")
        for jn in range(2):
            p(f"v_mfma_f32_32x32x16_bf16 {vr(ACB[jn],16)}, {vr(OA+4*hh,4)}, {vr(WOR+8*hh+4*jn,4)}, {vr(ACB[jn],16) if hh else vr(ACA[jn],16)}")
        if hh == 0:
            p(f"v_max3_u32 v4, v{OA}, v{OA+1}, v{OA+2}")
            p(f"v_max_u32 v4, v4, v{OA+3}")
        else:
            p(f"v_max3_u32 v4, v4, v{OA+4*hh}, v{OA+4*hh+1}")
            p(f"v_max3_u32 v4, v4, v{OA+4*hh+2}, v{OA+4*hh+3}")
    p("v_cmp_eq_u32 vcc, -1, v4")
    p("s_sub_u32 s81, s81, 1")
    p("s_cbranch_scc1 L_opollx")
    p("s_cbranch_vccz L_opollx")
    p(f"s_sleep {OPT.get('osleep', 1)}")
    loadO()
    p("s_branch L_opoll")
    p.label("L_opollx")
    tr("ook")
    for q in range(8):
        p(f"ds_write_b128 v232, {vr(40+4*q,4)} offset:{q*1024}")
    p("s_waitcnt lgkmcnt(0)")
    p("s_barrier")
    for k in range(4):
        p(f"ds_read_b128 {vr(72+8*k,4)}, v233 offset:{k*8192}")
        p(f"ds_read_b128 {vr(76+8*k,4)}, v233 offset:{k*8192+1024}")
    p("s_waitcnt lgkmcnt(4)")
    for i in range(8):
        p(f"v_add_f32 v{72+i}, v{72+i}, v{80+i}")
        p(f"v_add_f32 v{72+i}, v{72+i}, v{AV+i}")
    p("s_waitcnt lgkmcnt(0)")
    for i in range(8):
        p(f"v_add_f32 v{88+i}, v{88+i}, v{96+i}")
        p(f"v_add_f32 v{88+i}, v{72+i}, v{88+i}")
        p(f"buffer_store_dword v{88+i}, v{234 + ((i >> 1) & 1)}, s[28:31], s{40 if i < 4 else 41} offen offset:{(i & 1)*2048} {OPT.get('outsc', '')}")
    p("s_or_b32 s68, s2, s3")
    p("s_cmp_eq_u32 s68, 0")
    p("s_cbranch_scc0 L_noep")
    p(f"s_mov_b32 s68, {EPO}")
    p("v_mov_b32 v4, s32")
    p("s_mov_b64 exec, 1")
    p("buffer_store_dword v4, off, s[12:15], s68 sc1")
    p("s_mov_b64 exec, -1")
    p.label("L_noep")
    st_.end(12, 3, 8, 4)
    if TRACE:
        p("s_waitcnt vmcnt(0)"); tr("end")
        p("s_lshl_b32 s82, s2, 3"); p("s_add_u32 s82, s82, s3"); p("s_lshl_b32 s82, s82, 9"); p(f"s_add_u32 s82, s82, {STAMP_OFF}")
        p("v_lshlrev_b32 v4, 2, v0")
        p("buffer_store_dword v254, v4, s[12:15], s82 offen"); p("buffer_store_dword v255, v4, s[12:15], s82 offen offset:256")
        print("SITES", {v: k for k, v in sites.items()})
        open("sites.txt", "w").write(repr({v: k for k, v in sites.items()}))
    p.label("L_end")
    p("s_endpgm")
    p.label("L_slow")
    p("v_and_b32 v5, 15, v0")
    p("v_lshlrev_b32 v5, 4, v5")
    p("v_lshl_add_u32 v5, v1, 8, v5")
    p(f"v_add_u32 v2, {VF}, v5")
    p("s_lshl_b32 s68, s46, 10")
    p("s_add_u32 s68, s68, s76")
    p(f"buffer_load_dwordx4 {vr(Q[0],4)}, v3, s[12:15], s68 offen sc1")
    p("v_mov_b32 v6, 0xff800000")
    p("s_mov_b32 s73, s76")
    p("s_mov_b32 s72, 64")
    p.label("L_slow1")
    loadK(0, 73)
    p("s_add_u32 s73, s73, 1024")
    p("s_sub_u32 s72, s72, 1")
    p("s_waitcnt vmcnt(0)")
    p(f"v_mfma_f32_32x32x16_bf16 {vr(S[0],16)}, {vr(K[0],4)}, {vr(Q[0],4)}, 0")
    for i in range(8): p(f"v_max3_f32 v6, v6, v{S[0]+2*i}, v{S[0]+2*i+1}")
    p("s_cmp_lg_u32 s72, 0")
    p("s_cbranch_scc1 L_slow1")
    p("v_mov_b32 v4, v6")
    p("v_permlane32_swap_b32 v4, v6")
    p("v_max_f32 v6, v4, v6")
    for i in range(16): p(f"v_sub_f32 v{S[1]+i}, 0, v6")
    for i in range(16): p(f"v_mov_b32 v{R+i}, 0")
    p("s_mov_b32 s73, s76")
    p("s_mov_b32 s72, 64")
    p.label("L_slow2")
    loadK(0, 73); loadV(0, 73)
    p("s_add_u32 s73, s73, 1024")
    p("s_sub_u32 s72, s72, 1")
    p("s_waitcnt vmcnt(0)")
    p(f"v_mfma_f32_32x32x16_bf16 {vr(S[0],16)}, {vr(K[0],4)}, {vr(Q[0],4)}, {vr(S[1],16)}")
    for i in range(16): p(f"v_exp_f32 v{S[0]+i}, v{S[0]+i}")
    p(f"v_smfmac_f32_32x32x32_bf16 {vr(R,16)}, {vr(V[0],4)}, {vr(S[0],8)}, v{IDX}")
    p(f"v_smfmac_f32_32x32x32_bf16 {vr(R,16)}, {vr(V[0]+4,4)}, {vr(S[0]+8,8)}, v{IDX}")
    p("s_cmp_lg_u32 s72, 0")
    p("s_cbranch_scc1 L_slow2")
    p("v_lshlrev_b32 v2, 6, v1")
    p("s_nop 11")
    p("s_branch L_fin")
    return p

if __name__ == "__main__":
    p = build()
    p.fix_hazards(verbose="-v" in sys.argv)
    for lab in (None, "L_G1", "L_slow"):
        for e in p.check_waits(lab): print(f"  [wait:{lab}] {e}")
    NAME = "gated_mix__ssm_conv_s5__softmax_full_mha__prompt_kernel"
    b, d = kernel_text(NAME, p, None)
    out = HEADER + f"; @launch grid=(256,1,1) block=(512,1,1) lds={LDS_BYTES}\n" + '.amdgcn_target "amdgcn-amd-amdhsa--gfx950"\n.text\n' + b + '.section .rodata,"a"\n' + d
    dst = [a for a in sys.argv[1:] if not a.startswith("-")]
    fn = dst[0] if dst else "gated_mix__ssm_conv_s5__softmax_full_mha__prompt.s"
    open(fn, "w").write(out)
    import subprocess
    sys.path.insert(0, "cdna_kernels")
    from cdna_launch import with_harness_metadata, address_register_problem
    open("h.s", "w").write(with_harness_metadata(out, NAME, 16, launch_lists=True))
    r = subprocess.run(["clang", "-x", "assembler", "-target", "amdgcn-amd-amdhsa", "-mcpu=gfx950", "h.s", "-o", "h.co"], capture_output=True, text=True)
    if r.returncode: print("ASSEMBLY FAILED", r.stderr[:3000])
    else:
        pr = address_register_problem("h.co", NAME, None)
        if pr: print("CHECK:", pr)
```

```python
import sys, os, math, struct
from common import *
from k_ssm import cmul, lam_compute
def f2u(x): return struct.unpack("<I", struct.pack("<f", x))[0]
QSCALE = 0.25 * math.log2(math.e)

FL1 = 0xDA0000
FLE = 0xDB0000
EPO = 0xDB8000
FLH = 0xDC0000
FLO = 0xDD0000
assert FLO + 0x20000 <= 0xE00000

WR = 81920
WQ = 81920
P2 = 131072
SCR = 141312
EXC = 159744
LF = 161792
LDS_BYTES = 162048
SPIN = 400000

OPT = dict(kvsc="sc1", fallback=False, rot=1, cwarm=1,
           sched=[(2, 1, 0, "E2 E3a"), (4, 0, 1, ""), (0, 1, 0, "E3b"), (0, 1, 0, "E4"), (0, 1, 0, "E4b"), (0, 4, 1, ""), (3, 1, 0, "E6 E5a"), (1, 2, 0, "E5b"), (2, 1, 0, "")])
OPT.update(eval(os.environ.get("OPT", "{}")))

def publish(p, soff, v=4):
    p(f"v_mov_b32 v{v}, s32"); p(f"v_mov_b32 v{v+1}, s33")
    p("s_mov_b64 exec, 1")
    p(f"buffer_store_dwordx2 v[{v}:{v+1}], off, s[12:15], s{soff} sc1")
    p("s_mov_b64 exec, -1")

_pc = [0]
def poll(p, vaddr, soff, dontcare=None):
    n = _pc[0]; _pc[0] += 1
    p(f"s_mov_b32 s81, {SPIN}")
    p.label(f"Lpoll{n}")
    p(f"buffer_load_dwordx2 v[4:5], v{vaddr}, s[12:15], s{soff} offen sc1")
    p("s_sub_u32 s81, s81, 1")
    p("s_cbranch_scc1 Lpollx%d" % n)
    p("s_waitcnt vmcnt(0)")
    p("v_cmp_eq_u32 s[78:79], s32, v4")
    p("v_cmp_eq_u32 vcc, s33, v5")
    p("s_and_b64 s[78:79], s[78:79], vcc")
    if dontcare is not None: p(f"s_or_b64 s[78:79], s[78:79], s[{dontcare}:{dontcare+1}]")
    p("s_cmp_eq_u64 s[78:79], -1")
    p(f"s_cbranch_scc1 Lpollx{n}")
    p("s_sleep 2")
    p(f"s_branch Lpoll{n}")
    p.label(f"Lpollx{n}")
    p("s_waitcnt vmcnt(0)")

def lds_spin(p, vaddr, want):
    n = _pc[0]; _pc[0] += 1
    p(f"s_mov_b32 s81, {SPIN*8}")
    p.label(f"Lspin{n}")
    p(f"ds_read_b32 v4, v{vaddr}")
    p("s_sub_u32 s81, s81, 1")
    p(f"s_cbranch_scc1 Lspinx{n}")
    p("s_waitcnt lgkmcnt(0)")
    p(f"v_cmp_ne_u32 vcc, {want}, v4")
    p(f"s_cbranch_vccz Lspinx{n}")
    p("s_sleep 1")
    p(f"s_branch Lspin{n}")
    p.label(f"Lspinx{n}")
    p("s_waitcnt lgkmcnt(0)")

def build():
    p = Prog()
    st_ = Stamps(p, 0)
    MK = OPT.get("marks", ["pro", "t1", "pub", "att", "loop", "pre"])
    TRACE = OPT.get("trace")
    sites = {}
    def tr(name):
        if not TRACE: return
        i = sites.setdefault(name, len(sites) + 1)
        p("s_memtime s[100:101]"); p("s_waitcnt lgkmcnt(0)")
        p("s_mov_b64 exec, s[96:97]"); p("v_mov_b32 v254, s100"); p(f"v_mov_b32 v255, {i}"); p("s_mov_b64 exec, -1")
        p("s_lshl_b64 s[96:97], s[96:97], 1")
    def mk(name, st=None):
        if name in MK: (st or st_).mark()
        tr(name)
    p("s_cmp_ge_u32 s2, 256")
    p("s_cbranch_scc1 L_end")
    st_.start()
    if TRACE:
        p("s_mov_b64 s[96:97], 1"); p("v_mov_b32 v254, 0"); p("v_mov_b32 v255, 0"); tr("start")
    p("s_load_dwordx16 s[40:55], s[0:1], 0")
    p(f"s_load_dwordx2 s[56:57], s[0:1], {A_DSKIP}")
    p(f"s_load_dwordx2 s[58:59], s[0:1], {A_WS}")
    p(f"s_load_dwordx8 s[60:67], s[0:1], {A_WQKV}")
    p("v_lshrrev_b32 v1, 6, v0")
    p("v_and_b32 v0, 63, v0")
    p("s_and_b32 s68, s2, 7")
    p("v_readfirstlane_b32 s3, v1")
    p("s_lshr_b32 s69, s2, 3")
    p("s_lshr_b32 s70, s68, 1")
    p("s_lshl_b32 s70, s70, 2")
    p("s_and_b32 s71, s69, 3")
    p("s_add_u32 s34, s70, s71")
    p("s_and_b32 s70, s68, 1")
    p("s_lshl_b32 s70, s70, 3")
    p("s_lshr_b32 s39, s69, 2")
    p("s_add_u32 s35, s70, s39")
    if OPT.get("cgx"): p(f"s_xor_b32 s35, s35, {OPT['cgx']}")
    p("s_lshl_b32 s70, s68, 2")
    p("s_add_u32 s38, s70, s71")
    p("s_lshr_b32 s71, s69, 3")
    p("s_add_u32 s36, s70, s71")
    p("s_and_b32 s37, s69, 7")
    p("s_and_b32 s4, s3, 3")
    p("s_lshr_b32 s5, s3, 2")
    p("v_lshrrev_b32 v1, 5, v0")
    p("v_and_b32 v2, 31, v0")
    p("v_lshlrev_b32 v3, 4, v0")
    p("s_mul_i32 s6, s4, 20480")
    p("s_lshl_b32 s7, s34, 2")
    p("s_add_u32 s7, s7, s4")
    p("s_cmp_eq_u32 s5, 0")
    p("s_cbranch_scc0 L_G1")

    vm = VM(p)
    XA = 8; WA = 12
    p("s_lshl_b32 s68, s34, 7")
    p("s_and_b32 s69, s35, 7")
    p("s_lshl_b32 s69, s69, 4")
    p("s_add_u32 s68, s68, s69")
    p("s_and_b32 s69, s35, 8")
    p("s_add_u32 s68, s68, s69")
    p("s_lshl_b32 s69, s4, 1")
    p("s_add_u32 s68, s68, s69")
    p("v_add_u32 v160, s68, v1")
    p("v_lshlrev_b32 v161, 5, v2")
    p("v_lshl_add_u32 v162, v160, 10, v161")
    p("s_waitcnt lgkmcnt(0)")
    srd(p, 8, 40, 2048*1024)
    if OPT.get("wsbase"):
        p(f"s_add_u32 s58, s58, {OPT['wsbase']:#x}"); p("s_addc_u32 s59, s59, 0")
    srd(p, 12, 58, WS_USED)
    srd(p, 24, 64, 1024)
    p(f"s_mov_b32 s68, {EPO}")
    vm.issue("buffer_load_dword v163, off, s[12:15], s68", "g")
    vm.issue("buffer_load_dwordx4 v[164:167], v162, s[8:11], 0 offen", "g")
    vm.issue("buffer_load_dwordx4 v[168:171], v162, s[8:11], 0 offen offset:16", "g")
    vm.issue("buffer_load_dwordx4 v[172:175], v161, s[24:27], 0 offen", "g")
    vm.issue("buffer_load_dwordx4 v[176:179], v161, s[24:27], 0 offen offset:16", "g")
    if OPT.get("tlb", 0):
        p("s_lshr_b32 s68, s2, 3")
        p("s_lshl_b32 s69, s68, 2")
        p("s_add_u32 s69, s69, s4")
        p(f"s_mul_i32 s69, s69, {3 << 16}")
        p("v_lshlrev_b32 v190, 16, v0")
        p("s_mov_b64 exec, 7")
        vm.issue("buffer_load_dword v191, v190, s[12:15], s69 offen sc1", "g")
        p("s_and_b32 s69, s68, 1")
        p("s_cmp_eq_u32 s69, 0")
        p("s_cselect_b32 s70, s46, s48"); p("s_cselect_b32 s71, s47, s49")
        p("s_cselect_b32 s72, s50, s52"); p("s_cselect_b32 s73, s51, s53")
        p("s_cmp_eq_u32 s4, 2")
        p("s_cselect_b32 s70, s72, s70"); p("s_cselect_b32 s71, s73, s71")
        p("s_cmp_eq_u32 s4, 3")
        p("s_cselect_b32 s70, s62, s70"); p("s_cselect_b32 s71, s63, s71")
        p("s_cmp_eq_u32 s4, 0")
        p("s_cselect_b32 s28, s66, s70"); p("s_cselect_b32 s29, s67, s71")
        p(f"s_mov_b32 s30, {512*1024}")
        p(f"s_cselect_b32 s30, {2048*2048}, s30")
        p("s_mov_b32 s31, 0x00020000")
        p("s_and_b32 s68, s68, 7")
        p("s_lshl_b32 s68, s68, 19")
        p("s_cselect_b32 s69, 1, 0")
        p("s_cmp_eq_u32 s4, 0")
        p("s_cselect_b32 s68, s68, 0")
        p("s_mov_b64 exec, 0xff")
        vm.issue("buffer_load_dword v192, v190, s[28:31], s68 offen sc1", "g")
        p("s_mov_b64 exec, -1")
    p("v_lshrrev_b32 v18, 1, v2")
    p("v_and_b32 v18, 7, v18")
    p("v_lshl_add_u32 v19, v2, 7, s6")
    for ks in range(4):
        p(f"v_add_u32 v20, {2*ks}, v1")
        p("v_xor_b32 v20, v20, v18")
        p(f"v_lshl_add_u32 v{XA+ks}, v20, 4, v19")
    p("v_bfe_u32 v18, v0, 2, 2")
    p("v_lshl_add_u32 v18, v1, 3, v18")
    p("v_mul_u32_u24 v18, 192, v18")
    p("v_bfe_u32 v19, v0, 4, 1")
    p("v_lshl_add_u32 v18, v19, 5, v18")
    p("v_and_b32 v19, 3, v0")
    p("v_lshl_add_u32 v18, v19, 3, v18")
    p(f"v_add_u32 v{WA}, {WR}, v18")
    p("v_and_b32 v13, 0x33, v0")
    p("v_bfe_u32 v19, v0, 2, 1")
    p("v_lshl_or_b32 v13, v19, 3, v13")
    p("v_bfe_u32 v19, v0, 3, 1")
    p("v_lshl_or_b32 v13, v19, 2, v13")
    p("v_lshlrev_b32 v13, 4, v13")
    p(f"v_add_u32 v13, {KF}, v13")
    p("v_bfe_u32 v14, v0, 4, 1")
    p("v_lshlrev_b32 v14, 16, v14")
    p("v_lshl_add_u32 v14, v1, 8, v14")
    p("v_and_b32 v20, 15, v0")
    p("v_lshl_add_u32 v14, v20, 4, v14")
    p(f"v_add_u32 v14, {VF}, v14")
    p("s_lshl_b32 s76, s7, 10")
    p("s_lshl_b32 s77, s35, 17")
    p("s_add_u32 s76, s76, s77")
    p("s_add_u32 s77, s76, 0x10000")
    srd(p, 16, 62, 512*1024)
    p("v_lshrrev_b32 v18, 3, v0")
    p("v_and_b32 v19, 7, v0")
    p("v_bfe_u32 v20, v0, 4, 1")
    p("v_lshlrev_b32 v20, 2, v20")
    p("v_xor_b32 v19, v19, v20")
    p("v_lshlrev_b32 v19, 4, v19")
    p("v_lshl_add_u32 v15, v18, 10, v19")
    ACC = [40, 56, 104]; FR = [120, 136]
    def rd0(kk):
        b = FR[kk & 1]; st = kk >> 2; ks = kk & 3; sl = st % 5
        p(f"ds_read_b128 {vr(b,4)}, v{XA+ks} offset:{sl * 4096}")
        for T in range(3):
            for e in range(2):
                p(f"ds_read_b64_tr_b16 {vr(b+4+4*T+2*e,2)}, v{WA} offset:{sl*12288 + ks*3072 + e*768 + T*64}")
    def mm0(kk):
        b = FR[kk & 1]
        c = [vr(a, 16) if kk else "0" for a in ACC]
        p(f"v_mfma_f32_32x32x16_bf16 {vr(ACC[0],16)}, {vr(b+4,4)}, {vr(b,4)}, {c[0]}")
        p(f"v_mfma_f32_32x32x16_bf16 {vr(ACC[1],16)}, {vr(b+8,4)}, {vr(b,4)}, {c[1]}")
        p(f"v_mfma_f32_32x32x16_bf16 {vr(ACC[2],16)}, {vr(b,4)}, {vr(b+12,4)}, {c[2]}")
    def gate_job():
        vm.drain()
        p("v_readfirstlane_b32 s32, v163")
        p("v_mov_b32 v180, 0")
        for i in range(8):
            p(f"v_dot2_f32_bf16 v180, v{164+i}, v{172+i}, v180")
        p("s_mul_i32 s32, s32, 0x9E3779B1")
        p("s_add_u32 s32, s32, 0x7F4A7C15")
        p("s_xor_b32 s33, s32, 0x5BD1E995")
        for sh in (8, 4, 2, 1):
            p(f"v_add_f32_dpp v180, v180, v180 row_ror:{sh} row_mask:0xf bank_mask:0xf")
        p("v_mov_b32 v181, v180")
        p("v_permlane16_swap_b32 v181, v180")
        p("v_add_f32 v180, v180, v181")
        p("v_cvt_pk_bf16_f32 v180, v180, v180")
        p("v_and_b32 v180, 0xffff0000, v180")
        p(f"v_mul_f32 v180, {f2u(-math.log2(math.e)):#x}, v180")
        p("v_exp_f32 v180, v180")
        p("v_add_f32 v180, 1.0, v180")
        p("v_rcp_f32 v180, v180")
        p("v_cvt_pk_bf16_f32 v180, v180, v180")
        p("v_and_b32 v180, 0xffff0000, v180")
        p("v_lshrrev_b32 v181, 3, v160")
        p("v_and_b32 v160, 7, v160")
        p("v_lshlrev_b32 v160, 2, v160")
        p("v_lshl_add_u32 v160, v181, 7, v160")
        p(f"s_mov_b32 s68, {GG}")
        p("buffer_store_dword v180, v160, s[12:15], s68 offen sc1")
        for i in range(4): p(f"v_mov_b32 v{184+i}, -1")
        p("s_lshl_b32 s68, s37, 3")
        p("s_lshl_b32 s69, s4, 1")
        p("s_add_u32 s68, s68, s69")
        p("s_lshl_b32 s68, s68, 15")
        p("s_lshl_b32 s69, s36, 10")
        p("s_add_u32 s68, s68, s69")
        p(f"s_add_u32 s68, s68, {OF}")
        p("s_add_u32 s69, s68, 0x8000")
        p("buffer_store_dwordx4 v[184:187], v3, s[12:15], s68 offen sc1")
        p("buffer_store_dwordx4 v[184:187], v3, s[12:15], s69 offen sc1")
    mk("pro")
    for st in range(8):
        k = 4 * st
        p("s_barrier")
        rd0(k); rd0(k + 1)
        p("s_waitcnt lgkmcnt(7)"); mm0(k); rd0(k + 2)
        p("s_waitcnt lgkmcnt(7)"); mm0(k + 1); rd0(k + 3)
        p("s_waitcnt lgkmcnt(7)"); mm0(k + 2)
        p("s_waitcnt lgkmcnt(0)"); mm0(k + 3)
        if st == 1: gate_job()
    mk("t1")
    p(f"s_mov_b32 s75, {f2u(QSCALE):#x}")
    p("s_lshl_b32 s68, s35, 12")
    p("s_lshl_b32 s69, s7, 6")
    p("s_add_u32 s68, s68, s69")
    p(f"s_add_u32 s68, s68, {FL1}")
    T = 120
    for hd in range(2):
        a = ACC[hd]
        for i in range(4):
            p(f"v_cvt_pk_bf16_f32 v{T+4+i}, v{a+8+2*i}, v{a+8+2*i+1}")
        p(f"buffer_store_dwordx4 {vr(T+4,4)}, v13, s[12:15], s{76+hd} offen sc1")
        T += 8
    T = 120
    for hd in range(2):
        a = ACC[hd]
        for i in range(4):
            p(f"v_cvt_pk_bf16_f32 v{T+i}, v{a+2*i}, v{a+2*i+1}")
        for i in range(4):
            p(f"v_lshlrev_b32 v{a+2*i}, 16, v{T+i}")
            p(f"v_and_b32 v{a+2*i+1}, 0xffff0000, v{T+i}")
        for i in range(8):
            p(f"v_mul_f32 v{a+i}, s75, v{a+i}")
        for i in range(4):
            p(f"v_cvt_pk_bf16_f32 v{T+i}, v{a+2*i}, v{a+2*i+1}")
        p(f"buffer_store_dwordx4 {vr(T,4)}, v3, s[12:15], s{76+hd} offen sc1")
        T += 8
        if hd == 0:
            a = ACC[2]
            for i in range(8):
                p(f"v_cvt_pk_bf16_f32 v{136+i}, v{a+2*i}, v{a+2*i+1}")
            p(f"buffer_store_dwordx4 {vr(136,4)}, v14, s[12:15], s76 offen sc1")
            p(f"buffer_store_dwordx4 {vr(140,4)}, v14, s[12:15], s76 offen offset:512 sc1")
    p("s_waitcnt vmcnt(0)")
    publish(p, 68)
    mk("pub")
    p("s_barrier")
    p("s_lshl_b32 s68, s4, 17")
    p("s_lshl_b32 s69, s39, 7")
    p("s_add_u32 s68, s68, s69")
    p("s_lshl_b32 s69, s4, 14")
    p(f"s_add_u32 s69, s69, {WQ}")
    p("s_and_b32 s70, s38, 3")
    p("s_lshl_b32 s70, s70, 2")
    for j in range(16):
        p("s_lshl_b32 s71, s70, 10")
        p("s_add_u32 m0, s69, s71")
        p("s_lshl_b32 s71, s70, 13")
        p("s_add_u32 s71, s71, s68")
        p("buffer_load_dwordx4 v15, s[16:19], s71 offen lds")
        if j < 15:
            p("s_add_u32 s70, s70, 1")
            p("s_and_b32 s70, s70, 15")
    p("s_branch L_ATT")

    p.label("L_G1")
    st1 = Stamps(p, 0); st1.n = 1
    vm = VM(p)
    XO = 240; WO = 244; BO = 247; XA1 = 224; BA = 228
    XF = 8; BF = [136, 144, 152]; RE = 168; IM = 184; L = 200; CAR = 208; LT = 210
    p("s_lshl_b32 s68, s7, 15")
    p("v_lshrrev_b32 v22, 3, v0")
    p("v_and_b32 v23, 7, v0")
    p("v_bfe_u32 v24, v22, 2, 1")
    p("v_and_b32 v25, 3, v22")
    p("v_lshl_add_u32 v24, v24, 4, v25")
    for j in range(4):
        p(f"v_add_u32 v18, {8*j}, v22")
        p("v_lshrrev_b32 v19, 1, v18")
        p("v_and_b32 v19, 7, v19")
        p("v_xor_b32 v19, v19, v23")
        p(f"v_lshlrev_b32 v{30+j}, 4, v19")
        p(f"v_lshl_add_u32 v20, v24, 10, v{30+j}")
        p(f"v_add_u32 v20, {j*4096 - j*1024}, v20")
        p(f"v_add_u32 v{XO+j}, s68, v20")
    if OPT["rot"]:
        p("s_and_b32 s80, s34, 3")
        p("s_lshl_b32 s80, s80, 1")
        p("s_add_u32 s80, s80, s35")
    else:
        p("s_mov_b32 s80, 0")
    p("s_mul_i32 s73, s4, 3072")
    p(f"s_add_u32 s73, s73, {WR}")
    def dma_x(st):
        p(f"s_add_u32 s74, s80, {st}")
        p("s_and_b32 s74, s74, 7")
        p(f"s_add_u32 m0, s6, {(st % 5) * 4096}")
        p("s_lshl_b32 s72, s74, 7")
        for j in range(4):
            vm.issue(f"buffer_load_dwordx4 v{XO+j}, s[8:11], s72 offen offset:{j*1024} lds", ("S", st))
    def dma_w(st):
        p(f"s_add_u32 m0, s73, {(st % 5) * 12288}")
        p(f"s_mul_i32 s72, s74, {64*3072}")
        for j in range(3):
            vm.issue(f"buffer_load_dwordx4 v{WO+j}, s[16:19], s72 offen offset:{j*1024} lds", ("S", st))
    def dma(st):
        if st < 8:
            dma_x(st); dma_w(st)
        else:
            p(f"s_add_u32 s74, s75, {2*(st-8)}")
            p("s_and_b32 s74, s74, 7")
            p(f"s_add_u32 m0, s6, {(st % 5) * 4096}")
            p("s_lshl_b32 s72, s74, 7")
            for j in range(4):
                vm.issue(f"buffer_load_dwordx4 v{BO+j}, s[20:23], s72 offen offset:{j*1024} lds", ("S", st))
    p("s_waitcnt lgkmcnt(0)")
    srd(p, 8, 40, 2048*1024)
    dma_x(0)
    p("s_lshl_b32 s70, s35, 6")
    p("s_mul_i32 s71, s4, 16*3072")
    p("s_add_u32 s70, s70, s71")
    p("s_movk_i32 s71, 3072")
    for j in range(3):
        p(f"v_add_u32 v18, {64*j}, v0")
        p("v_mul_u32_u24 v19, 43691, v18")
        p("v_lshrrev_b32 v19, 19, v19")
        p("v_mul_u32_u24 v20, 12, v19")
        p("v_sub_u32 v20, v18, v20")
        p("v_cmp_gt_u32 vcc, 8, v20")
        p("v_bfe_u32 v21, v20, 1, 1")
        p("v_lshlrev_b32 v21, 10, v21")
        p("v_lshrrev_b32 v26, 2, v20")
        p("v_lshl_add_u32 v21, v26, 5, v21")
        p("v_and_b32 v26, 1, v20")
        p("v_lshl_add_u32 v21, v26, 4, v21")
        p("v_lshlrev_b32 v26, 4, v20")
        p(f"v_add_u32 v26, {2048-128}, v26")
        p("v_cndmask_b32 v21, v26, v21, vcc")
        p("v_mad_u32_u24 v21, v19, s71, v21")
        if j: p(f"v_subrev_u32 v21, {j*1024}, v21")
        p(f"v_add_u32 v{WO+j}, s70, v21")
    srd(p, 16, 60, 512*3072)
    dma_w(0); dma(1)
    if OPT.get("wsbase"):
        p(f"s_add_u32 s58, s58, {OPT['wsbase']:#x}"); p("s_addc_u32 s59, s59, 0")
    srd(p, 12, 58, WS_USED)
    p("s_cmp_lt_u32 s4, 2")
    p("s_cselect_b32 s20, s46, s48")
    p("s_cselect_b32 s21, s47, s49")
    p(f"s_mov_b32 s22, {512*1024}")
    p("s_mov_b32 s23, 0x00020000")
    p("s_and_b32 s75, s4, 1")
    p("s_add_u32 s75, s75, s80")
    p("s_lshl_b32 s69, s35, 15")
    for j in range(4):
        p(f"v_lshl_add_u32 v20, v22, 10, v{30+j}")
        p(f"v_add_u32 v20, {j*8192 - j*1024}, v20")
        p(f"v_add_u32 v{BO+j}, s69, v20")
    p("v_lshlrev_b32 v18, 2, v0")
    p(f"v_add_u32 v18, {LF}, v18")
    p("v_mov_b32 v19, 0")
    p("ds_write_b32 v18, v19")
    DEP = OPT.get("dep", 2)
    for q in range(2, DEP): dma(q)
    p(f"s_mov_b32 s68, {EPO}")
    vm.issue("buffer_load_dword v163, off, s[12:15], s68", "lam")
    p("s_lshl_b32 s68, s35, 6")
    p("v_lshl_add_u32 v164, v2, 1, s68")
    srd(p, 24, 42, 1024)
    vm.issue(f"buffer_load_ushort v{LT}, v164, s[24:27], 0 offen", "lam")
    srd(p, 28, 44, 1024)
    vm.issue(f"buffer_load_ushort v{LT+1}, v164, s[28:31], 0 offen", "lam")
    p("s_mov_b32 s24, s54"); p("s_mov_b32 s25, s55")
    vm.issue(f"buffer_load_ushort v{LT+2}, v164, s[24:27], 0 offen", "lam")
    p("v_lshrrev_b32 v165, 1, v2")
    p("v_and_b32 v165, 7, v165")
    p("v_lshlrev_b32 v166, 7, v2")
    p("v_add_u32 v167, s6, v166")
    for ks in range(4):
        p(f"v_add_u32 v160, {2*ks}, v1")
        p("v_xor_b32 v160, v160, v165")
        p(f"v_lshl_add_u32 v{XA1+ks}, v160, 4, v167")
        p(f"v_lshl_add_u32 v{BA+ks}, v160, 4, v166")
        p(f"v_add_u32 v{BA+4+ks}, 40960, v{BA+ks}")
    mk("pro", st1)
    for st in range(8):
        vm.wait(("S", st), "lgkmcnt(0)")
        p("s_barrier")
        for ks in range(4):
            p(f"ds_read_b128 {vr(XF + 16*st + 4*ks, 4)}, v{XA1+ks} offset:{(st % 5) * 4096}")
        if st + DEP < 12: dma(st + DEP)
        if st == 5:
            p("v_readfirstlane_b32 s32, v163")
            lam_compute(p, L, LT)
            p("s_mul_i32 s32, s32, 0x9E3779B1")
            p("s_add_u32 s32, s32, 0x7F4A7C15")
            p("s_xor_b32 s33, s32, 0x5BD1E995")
    for q in range(8 + DEP, 12): dma(q)
    mk("t1", st1)
    p("s_cmp_lt_u32 s4, 2")
    p("s_cselect_b32 s24, s50, s52")
    p("s_cselect_b32 s25, s51, s53")
    p(f"s_mov_b32 s26, {512*1024}")
    p("s_lshr_b32 s68, s2, 3")
    p("s_lshl_b32 s68, s68, 1")
    p("s_and_b32 s69, s4, 1")
    p("s_add_u32 s68, s68, s69")
    p("s_lshl_b32 s68, s68, 13")
    vm.drain()
    p("s_barrier")
    slotq = [3, 4, 0, 1]
    def rd1(kk):
        b = BF[kk % 3]; s = kk >> 2; ks = kk & 3
        off = (s & 1) * 20480 + slotq[s >> 1] * 4096
        p(f"ds_read_b128 {vr(b,4)}, v{BA+ks} offset:{off}")
        p(f"ds_read_b128 {vr(b+4,4)}, v{BA+4+ks} offset:{off}")
    rd1(0); rd1(1)
    for kk in range(32):
        b = BF[kk % 3]
        if kk + 2 < 32:
            rd1(kk + 2); p("s_waitcnt lgkmcnt(4)")
        elif kk + 2 == 32: p("s_waitcnt lgkmcnt(2)")
        else: p("s_waitcnt lgkmcnt(0)")
        p(f"v_mfma_f32_32x32x16_bf16 {vr(RE,16)}, {vr(XF+4*kk,4)}, {vr(b,4)}, {vr(RE,16) if kk else 0}")
        p(f"v_mfma_f32_32x32x16_bf16 {vr(IM,16)}, {vr(XF+4*kk,4)}, {vr(b+4,4)}, {vr(IM,16) if kk else 0}")
        if OPT["cwarm"] and kk >= 8 and kk % 3 == 2:
            q = (kk - 8) // 3
            if q == 4: p("s_add_u32 s68, s68, 4096")
            p(f"buffer_load_dwordx4 v[240:243], v3, s[24:27], s68 offen offset:{(q & 3)*1024}")
    a0, a1 = 210, 212
    p("s_lshl_b32 s68, s4, 9")
    p(f"s_add_u32 s68, s68, {EXC}")
    p("v_lshl_add_u32 v18, v0, 3, s68")
    p(f"v_lshlrev_b32 v19, 3, v2")
    p(f"v_add_u32 v19, {EXC}, v19")
    p("s_lshl_b32 s68, s4, 1")
    p("v_add_u32 v20, s68, v1")
    p("s_lshl_b32 s68, s4, 2")
    p(f"s_add_u32 s68, s68, {LF}")
    p("v_mov_b32 v21, s68")
    p("v_mov_b32 v22, 1")
    p("v_and_b32 v23, 3, v0")
    p("v_lshlrev_b32 v23, 2, v23")
    p(f"v_add_u32 v23, {LF}, v23")
    p(f"v_add_f32 v{L+2}, v{L+2}, v{L+2}")
    p(f"v_add_f32 v{L+3}, v{L+3}, v{L+3}")
    hr, hi = RE, IM
    for r in range(16):
        p(f"v_mul_f32 v214, v{L+3}, v{IM+r}")
        p(f"v_mul_f32 v215, v{L+3}, v{RE+r}")
        p(f"v_fma_f32 v{RE+r}, v{L+2}, v{RE+r}, -v214")
        p(f"v_fma_f32 v{IM+r}, v{L+2}, v{IM+r}, v215")
        if r == 0: continue
        d = a0 if r & 1 else a1
        p(f"v_fma_f32 v{d}, v{L}, v{hr}, v{RE+r}")
        p(f"v_fma_f32 v{d+1}, v{L}, v{hi}, v{IM+r}")
        p(f"v_fma_f32 v{d}, -v{L+1}, v{hi}, v{d}")
        p(f"v_fmac_f32 v{d+1}, v{L+1}, v{hr}")
        hr, hi = d, d + 1
    p(f"ds_write_b64 v18, {vr(hr,2)}")
    p("s_waitcnt lgkmcnt(0)")
    p("ds_write_b32 v21, v22")
    mk("pub", st1)
    lds_spin(p, 23, 1)
    SUB = 136
    for j in range(8):
        p(f"ds_read_b64 {vr(SUB+2*j,2)}, v19 offset:{j*256}")
    PW = 214
    p(f"v_mov_b32 v{CAR}, 0"); p(f"v_mov_b32 v{CAR+1}, 0")
    p(f"v_mov_b32 v{PW}, 1.0"); p(f"v_mov_b32 v{PW+1}, 0")
    p("s_waitcnt lgkmcnt(0)")
    cr, ci = SUB, SUB + 1
    pr, pi = L + 4, L + 5
    for j in range(1, 8):
        p(f"v_cmp_eq_u32 vcc, {j}, v20")
        d = a0 if j & 1 else a1
        p(f"v_fma_f32 v{d}, v{L+4}, v{cr}, v{SUB+2*j}")
        p(f"v_fma_f32 v{d+1}, v{L+4}, v{ci}, v{SUB+2*j+1}")
        p(f"v_cndmask_b32 v{CAR}, v{CAR}, v{cr}, vcc")
        p(f"v_cndmask_b32 v{CAR+1}, v{CAR+1}, v{ci}, vcc")
        p(f"v_cndmask_b32 v{PW}, v{PW}, v{pr}, vcc")
        p(f"v_cndmask_b32 v{PW+1}, v{PW+1}, v{pi}, vcc")
        p(f"v_fma_f32 v{d}, -v{L+5}, v{ci}, v{d}")
        p(f"v_fmac_f32 v{d+1}, v{L+5}, v{cr}")
        cr, ci = d, d + 1
        if j < 7:
            q = 216 if j & 1 else 218
            cmul(p, q, q + 1, pr, pi, L + 4, L + 5)
            pr, pi = q, q + 1
    p("s_lshl_b32 s68, s35, 8")
    p("v_lshl_add_u32 v18, v2, 3, s68")
    p("s_lshl_b32 s68, s34, 12")
    p(f"s_add_u32 s68, s68, {EE}")
    p("s_cmp_eq_u32 s4, 0")
    p("s_cbranch_scc0 L_noE")
    p(f"buffer_store_dwordx2 {vr(cr,2)}, v18, s[12:15], s68 offen sc1")
    p.label("L_noE")
    p(f"v_mov_b32 v{L+4}, v{PW}"); p(f"v_mov_b32 v{L+5}, v{PW+1}")
    p("s_mul_i32 s68, s4, 2560")
    p(f"s_add_u32 s68, s68, {P2}")
    p("v_mul_u32_u24 v4, 80, v2")
    p("v_lshl_add_u32 v4, v1, 5, v4")
    p(f"v_add_u32 v{L+2}, s68, v4")
    p("v_bfe_u32 v4, v0, 2, 2")
    p("v_lshl_add_u32 v4, v1, 3, v4")
    p("v_mul_u32_u24 v4, 80, v4")
    p("v_and_b32 v5, 1, v0")
    p("v_lshl_add_u32 v4, v5, 5, v4")
    p("v_bfe_u32 v5, v0, 4, 1")
    p("v_lshl_add_u32 v4, v5, 4, v4")
    p("v_bfe_u32 v5, v0, 1, 1")
    p("v_lshl_add_u32 v4, v5, 3, v4")
    p(f"v_add_u32 v{L+3}, s68, v4")
    p("s_setprio 1")

    p.label("L_ATT")
    assert st_.n == st1.n or not STAMP
    S = [8, 24]; O = [40, 56]; Q = [72, 76]; K = [80, 84]; V = [88, 96]; IDX = 7; VL = 1; VV = 2
    WOR = 104; HA = 168
    kv = OPT["kvsc"]
    p("s_lshl_b32 s69, s37, 3")
    p("s_lshl_b32 s70, s4, 1")
    p("s_add_u32 s69, s69, s70")
    p("s_add_u32 s46, s69, s5")
    p("s_lshl_b32 s68, s5, 5")
    p("v_add_u32 v6, s68, v0")
    p("v_and_b32 v4, 1, v0")
    p("v_add_u32 v4, s69, v4")
    p("v_cmp_lt_u32 vcc, 31, v0")
    p("s_lshr_b32 s70, s36, 1")
    p("s_lshl_b32 s70, s70, 6")
    p("v_cndmask_b32 v6, v6, v4, vcc")
    p("v_add_u32 v6, s70, v6")
    p("v_subrev_u32 v4, 34, v0")
    p("v_and_b32 v4, 15, v4")
    p("v_and_b32 v5, 8, v4")
    p("v_bfe_u32 v8, v4, 2, 1")
    p("v_add_u32 v5, v5, v8")
    p("s_and_b32 s70, s46, 3")
    p("s_lshl_b32 s70, s70, 1")
    p("v_add_u32 v5, s70, v5")
    p("v_and_b32 v4, 3, v4")
    p("s_and_b32 s70, s46, 0x3c")
    p("v_add_u32 v4, s70, v4")
    p("v_cmp_lt_u32 vcc, 33, v0")
    p("v_lshl_add_u32 v4, v5, 6, v4")
    p(f"s_mov_b32 s70, {FL1}")
    p("v_cndmask_b32 v6, v6, v4, vcc")
    p("v_lshlrev_b32 v6, 6, v6")
    p("s_lshl_b32 s76, s36, 16")
    p("s_lshl_b32 s77, s69, 10")
    p("s_add_u32 s77, s77, s76")
    p("s_lshl_b32 s73, s5, 15")
    p("s_add_u32 s73, s73, s76")
    p("v_lshrrev_b32 v4, 5, v0")
    p("v_and_b32 v5, 15, v0")
    p("v_lshlrev_b32 v5, 4, v5")
    p("v_lshl_add_u32 v5, v4, 8, v5")
    p(f"v_add_u32 v5, {VF}, v5")
    p(f"v_mov_b32 v{VV}, v5")
    p(f"s_add_u32 s16, s58, {KF}")
    p("s_addc_u32 s17, s59, 0")
    p(f"s_mov_b32 s18, {WS_USED - KF}")
    p("s_mov_b32 s19, 0x00020000")
    p("s_lshl_b32 s68, s4, 4")
    p("s_lshl_b32 s70, s5, 2")
    p("s_add_u32 s68, s68, s70")
    p(f"s_add_u32 s68, s68, {LF + 128}")
    p("v_mov_b32 v1, s68")
    p("s_mov_b32 s74, 0")
    p(f"s_mov_b32 s70, {FL1}")
    p("v_and_b32 v4, 27, v0")
    p("v_mov_b32 v5, 0x3f803f80")
    p("v_cmp_eq_u32 vcc, 16, v4")
    p("s_mov_b32 s44, 0xffff"); p("s_mov_b32 s45, 0xffff")
    p("v_cndmask_b32 v4, 0, v5, vcc")
    for i in range(16): p(f"v_mov_b32 v{V[0]+i}, v4")
    p(f"v_mov_b32 v{IDX}, 0xdddddddd")
    for i in range(32): p(f"v_mov_b32 v{O[0]+i}, 0")
    for i in range(8, 16): p(f"v_mov_b32 v{S[1]+i}, 0")
    p("v_bfe_u32 v10, v0, 2, 2")
    p("v_lshrrev_b32 v8, 5, v0")
    p("v_lshl_add_u32 v8, v8, 2, v10")
    p("v_lshlrev_b32 v8, 7, v8")
    p("v_bfe_u32 v9, v0, 4, 1")
    p("v_lshl_add_u32 v8, v9, 5, v8")
    p("v_and_b32 v9, 3, v0")
    p("v_lshl_add_u32 v8, v9, 3, v8")
    p("v_lshrrev_b32 v10, 1, v10")
    p("v_lshl_add_u32 v8, v10, 6, v8")
    p("s_lshl_b32 s68, s4, 14")
    p(f"s_add_u32 s68, s68, {WQ}")
    p("v_add_u32 v8, s68, v8")
    p("v_xor_b32 v9, 64, v8")
    p("s_lshl_b32 s68, s4, 2")
    p(f"s_add_u32 s68, s68, {LF + 16}")
    p("v_mov_b32 v10, s68")
    p(f"v_mov_b32 v11, {LF + 32}")
    p("v_mov_b32 v12, 1")
    CO = 250
    p("s_cmp_lt_u32 s4, 2")
    p("s_cselect_b32 s20, s50, s52")
    p("s_cselect_b32 s21, s51, s53")
    p(f"s_mov_b32 s22, {512*1024}")
    p("s_mov_b32 s23, 0x00020000")
    p("v_lshrrev_b32 v4, 3, v0")
    p("v_and_b32 v5, 7, v0")
    for j in range(4):
        p(f"v_add_u32 v13, {8*j}, v4")
        p("v_bfe_u32 v13, v13, 1, 3")
        p("v_xor_b32 v13, v13, v5")
        p("v_lshlrev_b32 v13, 4, v13")
        p("v_lshl_add_u32 v13, v4, 10, v13")
        p(f"v_add_u32 v{CO+j}, {j*8192 - j*1024}, v13")
    p("s_lshl_b32 s47, s39, 1")
    p("s_add_u32 s47, s47, s5")
    p("s_lshl_b32 s47, s47, 15")
    p("s_and_b32 s69, s4, 1")
    p("s_lshl_b32 s69, s69, 9")
    p("s_add_u32 s47, s47, s69")
    p("s_lshl_b32 s40, s4, 15")
    p("s_lshl_b32 s69, s5, 14")
    p("s_add_u32 s40, s40, s69")
    p("s_lshl_b32 s49, s38, 1")
    p("s_add_u32 s49, s49, s5")
    poll(p, 6, 70)
    def loadK(b, so, extra=0):
        p(f"buffer_load_dwordx4 {vr(K[b],4)}, v3, s[16:19], s{so} offen offset:{extra} {kv}")
    def loadV(b, so, extra=0):
        p("s_mov_b64 exec, s[44:45]")
        for f in range(2):
            p(f"buffer_load_dwordx4 {vr(V[b]+4*f,4)}, v{VV}, s[12:15], s{so} offen offset:{extra+512*f} {kv}")
        p("s_mov_b64 exec, -1")
    p("s_cmp_eq_u32 s3, 4")
    p("s_cbranch_scc0 L_noEf")
    p("s_lshl_b32 s69, s35, 10")
    p("s_lshl_b32 s70, s34, 6")
    p("s_add_u32 s69, s69, s70")
    p(f"s_add_u32 s69, s69, {FLE}")
    publish(p, 69)
    p.label("L_noEf")
    loadK(0, 73)
    for c in range(2):
        p(f"buffer_load_dwordx4 {vr(Q[c],4)}, v3, s[12:15], s77 offen offset:{c*1024} sc1")
    loadV(0, 73); loadK(1, 73, 1024)
    p("s_cmp_eq_u32 s5, 0")
    p("s_cbranch_scc0 L_nowf")
    p("ds_write_b32 v10, v12")
    p.label("L_nowf")
    lds_spin(p, 10, 1)
    n = 0
    for hh in range(8):
        for jn in range(2):
            for e_ in range(2):
                p(f"ds_read_b64_tr_b16 {vr(WOR + 8*hh + 4*jn + 2*e_, 2)}, v{8+jn} offset:{hh*2048 + e_*1024}")
                n += 1
                if n % 8 == 0 and n > 8: p("s_waitcnt lgkmcnt(8)")
    p("s_waitcnt lgkmcnt(0)")
    p("s_mov_b64 exec, 1")
    p("ds_add_u32 v11, v12")
    p("s_mov_b64 exec, -1")
    p("s_waitcnt vmcnt(3) lgkmcnt(0)")
    p(f"v_mfma_f32_32x32x16_bf16 {vr(S[0],16)}, {vr(K[0],4)}, {vr(Q[0],4)}, 0")
    mk("att")
    p("s_nop 11")
    _lc = [0]
    ADP = OPT.get("adp", 1)
    NT = OPT.get("nt", 4)
    ACA = [168, 184]; HB = [200, 204]; CBF = [216, 224]; CA = 250
    def rdC(t):
        for jn in range(2):
            p(f"ds_read_b128 {vr(CBF[t & 1]+4*jn,4)}, v{CA + (t & 3)} offset:{jn*16384 + (t >> 2)*4096}")
    def ldH(t):
        p(f"buffer_load_dwordx4 {vr(HB[t & 1],4)}, v3, s[12:15], s47 offen offset:{(t & 3)*1024} sc1")
        if (t & 3) == 3: p("s_add_u32 s47, s47, 4096")
    def trip(dmav=False, tph=None):
        last = tph == NT - 1
        def dm(j):
            if dmav: p(f"buffer_load_dwordx4 v{CO+j}, s[20:23], s47 offen offset:{j*1024} lds")
        for it in range(2):
            b = it; nb = 1 - it
            t = None if tph is None else 2 * tph + it
            for c in range(2):
                s = S[c]; sn = S[1 - c]
                e = lambda i: p(f"v_exp_f32 v{s+i}, v{s+i}")
                e(0); e(1)
                pv = V[b] if c else V[nb]
                p(f"v_smfmac_f32_32x32x32_bf16 {vr(O[1-c],16)}, {vr(pv+4,4)}, {vr(sn+8,8)}, v{IDX}")
                if c == 0:
                    if not (last and it == 1): loadV(nb, 73, 1024 + it * 1024)
                elif last: p(f"s_waitcnt vmcnt({2 if it == 0 else 0})")
                else: p(f"s_waitcnt vmcnt({6 if dmav else 4 if t else 3})")
                e(2); e(3); e(4)
                kk = K[b] if c == 0 else K[nb]
                if not (last and it == 1 and c == 1):
                    p(f"v_mfma_f32_32x32x16_bf16 {vr(sn,16)}, {vr(kk,4)}, {vr(Q[1-c],4)}, 0")
                lg = " lgkmcnt(0)" if t is not None or (ADP and it == 1) else ""
                if c == 0:
                    if last: p(f"s_waitcnt vmcnt({4 if it == 0 else 0}){lg}")
                    else:
                        loadK(b, 73, 2048 + it * 1024)
                        p(f"s_waitcnt vmcnt({6 if dmav else 5 if t else 4}){lg}")
                    if dmav and it == 0: p("s_mov_b32 m0, s40")
                else:
                    dm(2 * it + 1)
                    if ADP and it == 0 and not last:
                        p("s_mov_b64 exec, 1")
                        p(f"ds_inc_u32 v1, v{IDX}")
                        p(f"ds_inc_u32 v1, v{IDX} offset:8")
                        p("s_mov_b64 exec, -1")
                    if ADP and it == 1 and not last:
                        n_ = _pc[0]; _pc[0] += 1
                        p("s_cmp_gt_u32 s74, s75")
                        p("s_setprio 0")
                        p(f"s_cbranch_scc1 Lpr{n_}")
                        p("s_setprio 1")
                        p.label(f"Lpr{n_}")
                e(5); e(6); e(7); e(8); e(9)
                p(f"v_smfmac_f32_32x32x32_bf16 {vr(O[c],16)}, {vr(V[b],4)}, {vr(s,8)}, v{IDX}")
                if c == 0: dm(2 * it)
                if ADP and c == 1 and it == 0 and not last:
                    p("ds_read_b32 v6, v1 offset:4")
                    p("s_add_u32 s74, s74, 1")
                if ADP and c == 0 and it == 1 and not last:
                    p("v_readfirstlane_b32 s75, v6")
                if c == 0 and t is not None and t + 1 < 2 * NT: rdC(t + 1)
                if it == 1 and c == 1:
                    p("s_add_u32 s73, s73, 2048")
                    if dmav:
                        p("s_add_u32 s40, s40, 4096")
                        p("s_add_u32 s47, s47, 128")
                    if tph is None: p("s_cmp_lg_u32 s73, s72")
                e(10); e(11); e(12)
                if t is not None:
                    p(f"v_mfma_f32_32x32x16_bf16 {vr(ACA[c],16)}, {vr(HB[t & 1],4)}, {vr(CBF[t & 1]+4*c,4)}, {vr(ACA[c],16) if t else 0}")
                    if c == 1 and t + 2 < 2 * NT: ldH(t + 2)
                e(13); e(14); e(15)
    def loop(cnt, dmav=False, drain=False):
        n0, n1 = cnt
        if n0 == 0 and n1 == 0: return
        k = _lc[0]; _lc[0] += 1
        if n0 == n1: p(f"s_add_u32 s72, s73, {n0*2048}")
        else:
            p("s_cmp_eq_u32 s5, 0")
            p(f"s_cselect_b32 s72, {n0}, {n1}")
            p("s_lshl_b32 s72, s72, 11")
            if min(n0, n1) == 0:
                p(f"s_cbranch_scc0 L_loopx{k}")
            p("s_add_u32 s72, s72, s73")
        if drain: p("s_waitcnt vmcnt(0)")
        p(".p2align 6")
        p.label(f"L_loop{k}")
        trip(dmav)
        if TRACE:
            p("s_cselect_b32 s98, 1, 0"); tr("trip"); p("s_cmp_eq_u32 s98, 1")
        p(f"s_cbranch_scc1 L_loop{k}")
        p.label(f"L_loopx{k}")

    EB = 210
    G8 = 232; X_ = 240; D_ = 248; OG = 249
    def g1only(name, fn):
        p("s_cmp_eq_u32 s5, 0")
        p(f"s_cbranch_scc1 L_no{name}")
        fn()
        p.label(f"L_no{name}")
    def check_or_poll(vaddr, soff, nnewer, dontcare=None, redo=None):
        n = _pc[0]; _pc[0] += 1
        p(f"s_waitcnt vmcnt({nnewer})")
        p("v_cmp_eq_u32 s[78:79], s32, v4")
        p("v_cmp_eq_u32 vcc, s33, v5")
        p("s_and_b64 s[78:79], s[78:79], vcc")
        if dontcare is not None: p(f"s_or_b64 s[78:79], s[78:79], s[{dontcare}:{dontcare+1}]")
        p("s_cmp_eq_u64 s[78:79], -1")
        p(f"s_cbranch_scc1 Lchk{n}")
        redo()
        poll(p, vaddr, soff, dontcare)
        p.label(f"Lchk{n}")
    def E2():
        p(f"v_mov_b32 v6, {LF + 32}")
        lds_spin(p, 6, 8)
    def E3a():
        p("v_min_u32 v6, 15, v0")
        p("v_cmp_le_u32 s[42:43], s34, v6")
        p("v_lshlrev_b32 v6, 6, v6")
        p("s_lshl_b32 s48, s35, 10")
        p(f"s_add_u32 s48, s48, {FLE}")
        p("buffer_load_dwordx2 v[4:5], v6, s[12:15], s48 offen sc1")
    def E3b():
        check_or_poll(6, 48, 6, 42, redo=E3a)
        p("v_and_b32 v6, 31, v0")
        p("s_lshl_b32 s68, s35, 8")
        p("v_lshl_add_u32 v6, v6, 3, s68")
        p(f"s_mov_b32 s68, {EE}")
        for c in range(15):
            p(f"s_cmp_le_u32 s34, {c}")
            p("s_cbranch_scc1 L_noE3b")
            p(f"buffer_load_dwordx2 {vr(EB+2*c,2)}, v6, s[12:15], s68 offen sc1")
            p("s_add_u32 s68, s68, 4096")
    def E4():
        p("s_waitcnt vmcnt(6)")
        p("v_mov_b32 v240, 0"); p("v_mov_b32 v241, 0")
        for c in range(15):
            p(f"s_cmp_le_u32 s34, {c}")
            p("s_cbranch_scc1 L_hin")
            p(f"v_fmac_f32 v{EB+2*c}, v{L+6}, v240")
            p(f"v_fmac_f32 v{EB+2*c+1}, v{L+6}, v241")
            p(f"v_fma_f32 v242, -v{L+7}, v241, v{EB+2*c}")
            p(f"v_fma_f32 v241, v{L+7}, v240, v{EB+2*c+1}")
            p("v_mov_b32 v240, v242")
        p.label("L_hin")
        p(f"v_fmac_f32 v{CAR}, v{L+4}, v240")
        p(f"v_fmac_f32 v{CAR+1}, v{L+4}, v241")
        p(f"v_fma_f32 v{CAR}, -v{L+5}, v241, v{CAR}")
        p(f"v_fmac_f32 v{CAR+1}, v{L+5}, v240")
        pr, pi = CAR, CAR + 1
        PK = 234
        for r in range(16):
            p(f"v_fmac_f32 v{RE+r}, v{L}, v{pr}")
            p(f"v_fmac_f32 v{IM+r}, v{L}, v{pi}")
            p(f"v_fma_f32 v{RE+r}, -v{L+1}, v{pi}, v{RE+r}")
            p(f"v_fmac_f32 v{IM+r}, v{L+1}, v{pr}")
            pr, pi = RE + r, IM + r
            if r & 1:
                p(f"v_cvt_pk_bf16_f32 v{PK + (r >> 1)}, v{RE+r-1}, v{RE+r}")
                p(f"v_cvt_pk_bf16_f32 v{PK + 8 + (r >> 1)}, -v{IM+r-1}, -v{IM+r}")
        p("s_lshl_b32 s68, s7, 16")
        p("s_lshl_b32 s69, s35, 11")
        p("s_add_u32 s68, s68, s69")
        p(f"s_add_u32 s68, s68, {HF}")
        p("s_add_u32 s69, s68, 0x8000")
        for pl in range(2):
            for q in range(2):
                p(f"ds_write_b128 v{L+2}, {vr(PK + 8*pl + 4*q, 4)} offset:{q*16}")
            for kl in range(2):
                for e_ in range(2):
                    p(f"ds_read_b64_tr_b16 {vr(210 + 8*pl + 4*kl + 2*e_, 2)}, v{L+3} offset:{(16*kl + 4*e_)*80}")
        for pl in range(2):
            p(f"s_waitcnt lgkmcnt({6 if pl == 0 else 0})")
            for kl in range(2):
                p(f"buffer_store_dwordx4 {vr(210 + 8*pl + 4*kl, 4)}, v3, s[12:15], s{68+pl} offen offset:{kl*1024} sc1")
    def E4b():
        p("s_lshl_b32 s68, s7, 10")
        p("s_lshl_b32 s69, s35, 6")
        p("s_add_u32 s68, s68, s69")
        p(f"s_add_u32 s68, s68, {FLH}")
        p("s_waitcnt vmcnt(6)")
        publish(p, 68)
    def E5a():
        p("v_and_b32 v4, 7, v0")
        p("v_and_b32 v5, 4, v4")
        p("v_and_b32 v4, 3, v4")
        p("v_lshl_add_u32 v4, v5, 1, v4")
        p("v_and_b32 v5, 3, v0")
        p("v_add_u32 v4, v4, v5")
        p("s_lshr_b32 s68, s49, 5")
        p("v_add_u32 v4, s68, v4")
        p("s_lshl_b32 s68, s4, 4")
        p("s_bfe_u32 s69, s49, 0x20003")
        p("s_lshl_b32 s69, s69, 2")
        p("s_add_u32 s68, s68, s69")
        p("s_bfe_u32 s69, s49, 0x20001")
        p("s_add_u32 s68, s68, s69")
        p("v_lshl_add_u32 v4, v4, 6, s68")
        p("s_lshl_b32 s68, s49, 4")
        p(f"s_add_u32 s68, s68, {(FLH - FL1) // 64}")
        p("v_cmp_gt_u32 vcc, 16, v0")
        p("v_add_u32 v5, s68, v0")
        p(f"s_mov_b32 s48, {FL1}")
        p("v_cndmask_b32 v6, v4, v5, vcc")
        p("v_lshlrev_b32 v6, 6, v6")
        p("buffer_load_dwordx2 v[4:5], v6, s[12:15], s48 offen sc1")
    def E5b():
        check_or_poll(6, 48, 6, redo=E5a)
        p("s_lshl_b32 s47, s49, 16")
        p("s_lshl_b32 s69, s4, 14")
        p("s_add_u32 s47, s47, s69")
        p(f"s_add_u32 s47, s47, {HF}")
        ldH(0); ldH(1)
        p("s_lshl_b32 s68, s39, 11")
        p("s_add_u32 s68, s68, s47")
        for t in range(2):
            p(f"buffer_load_dwordx4 {vr(208+4*t,4)}, v3, s[12:15], s68 offen offset:{t*1024} sc1")
        p("s_and_b32 s68, s4, 1")
        p("s_lshl_b32 s68, s68, 3")
        p("s_lshl_b32 s40, s49, 5")
        p("s_add_u32 s40, s40, s68")
        p("s_lshr_b32 s68, s4, 1")
        p("s_lshl_b32 s68, s68, 5")
        p("s_lshl_b32 s41, s39, 6")
        p("s_add_u32 s41, s41, s68")
        p("v_lshrrev_b32 v4, 5, v0")
        p("v_and_b32 v5, 31, v0")
        p("s_lshl_b32 s68, s40, 4")
        p(f"s_add_u32 s68, s68, {GG}")
        p("v_lshlrev_b32 v6, 8, v4")
        p(f"buffer_load_dwordx4 {vr(G8,4)}, v6, s[12:15], s68 offen sc1")
        p(f"buffer_load_dwordx4 {vr(G8+4,4)}, v6, s[12:15], s68 offen offset:16 sc1")
        srd(p, 24, 56, 1024)
        p("v_lshlrev_b32 v6, 1, v5")
        p("s_lshl_b32 s68, s41, 1")
        p(f"buffer_load_ushort v{D_}, v6, s[24:27], s68 offen")
        p("v_lshl_add_u32 v6, v4, 14, v6")
        p("s_lshl_b32 s69, s40, 10")
        p("s_add_u32 s68, s68, s69")
        for r in range(8):
            if r == 4: p("s_add_u32 s68, s68, 4096")
            p(f"buffer_load_ushort v{X_+r}, v6, s[8:11], s68 offen offset:{(r & 3)*1024}")
        p("v_bfe_u32 v4, v5, 2, 1")
        p("v_lshlrev_b32 v4, 4, v4")
        p("v_and_or_b32 v4, v5, 3, v4")
        p("v_lshrrev_b32 v5, 3, v5")
        p("v_lshl_add_u32 v4, v5, 2, v4")
        p("v_lshrrev_b32 v5, 3, v4")
        p("v_and_b32 v4, 7, v4")
        p("v_lshlrev_b32 v4, 2, v4")
        p("v_lshl_add_u32 v4, v5, 7, v4")
        p("s_lshl_b32 s68, s46, 9")
        p(f"s_add_u32 s68, s68, {GG}")
        p(f"buffer_load_dword v{OG}, v4, s[12:15], s68 offen sc1")
    def E6():
        p("s_lshl_b32 s68, s3, 2")
        p(f"s_add_u32 s68, s68, {LF + 36}")
        p("v_mov_b32 v216, s68")
        p("v_mov_b32 v217, 1")
        p("s_waitcnt vmcnt(6)")
        p("ds_write_b32 v216, v217")
    def TPH():
        p("s_xor_b32 s68, s3, 4")
        p("s_lshl_b32 s68, s68, 2")
        p(f"s_add_u32 s68, s68, {LF + 36}")
        p("v_mov_b32 v6, s68")
        lds_spin(p, 6, 1)
        p("v_lshrrev_b32 v4, 5, v0")
        p("v_and_b32 v5, 31, v0")
        p("v_bfe_u32 v6, v5, 1, 3")
        p("s_lshl_b32 s71, s4, 15")
        p("v_lshl_add_u32 v5, v5, 7, s71")
        for ks in range(4):
            p(f"v_add_u32 v216, {2*ks}, v4")
            p("v_xor_b32 v216, v216, v6")
            p(f"v_lshl_add_u32 v{CA+ks}, v216, 4, v5")
        rdC(0)
        for q in range(NT):
            if q == OPT.get("tp0", 99): p("s_setprio 0")
            if q == OPT.get("tp1", 99):
                g1only("TP1", lambda: p("s_setprio 1"))
            trip(False, q); tr("trip")
    sched = OPT["sched"]
    assert sum(x[0] for x in sched) == 16 - NT and sum(x[1] for x in sched) == 16 - NT, sched
    assert sched[-1][3] == '' and min(sched[-1][:2]) >= 1
    assert sum(x[0] for x in sched if x[2]) == 4 and sum(x[1] for x in sched if x[2]) == 4
    if OPT.get("noev"):
        loop((12, 12)); mk("nv"); p("s_setprio 0"); loop((4, 4))
        p("s_mov_b32 s40, 0"); p("s_mov_b32 s41, 0")
    else:
        for (n0, n1, dv, evs) in sched:
            loop((n0, n1), dv, drain=bool(dv))
            for ev in evs.split():
                tr(ev)
                if ev == "E2": E2()
                elif ev in ("E3a", "E3b", "E4", "E4b"):
                    assert n1 >= 1 or ev == "E3a"
                    g1only(ev, dict(E3a=E3a, E3b=E3b, E4=E4, E4b=E4b)[ev])
                elif ev == "E5a": E5a()
                elif ev == "E5b":
                    assert n0 >= 1 and n1 >= 1
                    E5b()
                elif ev == "P0": p("s_setprio 0")
                elif ev == "E6": E6()
                tr(ev + "x")
        TPH()
    p(f"v_smfmac_f32_32x32x32_bf16 {vr(O[1],16)}, {vr(V[1]+4,4)}, {vr(S[1]+8,8)}, v{IDX}")
    mk("loop")
    H2 = 200; G16 = 56; AV = X_; OA = 8; ACB = [40, 56]; CB = [72, 80, 88, 96]; R = O[0]
    for t in range(2 * NT, 16):
        p(f"buffer_load_dwordx4 {vr(H2+4*(t & 7),4)}, v3, s[12:15], s47 offen offset:{(t & 3)*1024} sc1")
        if (t & 3) == 3: p("s_add_u32 s47, s47, 4096")
    p("s_mul_i32 s68, s3, 2304")
    p(f"s_add_u32 s68, s68, {SCR}")
    p("v_add_u32 v4, s68, v3")
    p("v_lshl_add_u32 v5, v0, 2, s68")
    p("s_xor_b32 s68, s3, 4")
    p("s_mul_i32 s68, s68, 2304")
    p(f"s_add_u32 s68, s68, {SCR}")
    p("v_add_u32 v96, s68, v3")
    p("v_lshl_add_u32 v97, v0, 2, s68")
    p(f"v_sub_f32 v{OG}, 1.0, v{OG}")
    p("s_cmp_eq_u32 s5, 0")
    p("s_cbranch_scc0 L_red1")
    p(f"ds_write_b128 v4, {vr(O[1],4)}")
    p(f"ds_write_b128 v4, {vr(O[1]+4,4)} offset:1024")
    p(f"ds_write_b32 v5, v{O[1]+8} offset:2048")
    p("s_branch L_red2")
    p.label("L_red1")
    p(f"ds_write_b128 v4, {vr(O[0],4)}")
    p(f"ds_write_b128 v4, {vr(O[0]+4,4)} offset:1024")
    p(f"ds_write_b32 v5, v{O[0]+8} offset:2048")
    p("s_waitcnt lgkmcnt(0)")
    for i in range(9): p(f"v_mov_b32 v{O[0]+i}, v{O[1]+i}")
    p.label("L_red2")
    p(f"v_cvt_pk_bf16_f32 v{OG}, v{OG}, v{OG}")
    p("s_lshl_b32 s70, s46, 15")
    p("s_lshl_b32 s71, s36, 10")
    p("s_add_u32 s70, s70, s71")
    p(f"s_add_u32 s70, s70, {OF}")
    p(f"v_and_b32 v{OG}, 0xffff0000, v{OG}")
    p("s_lshl_b32 s47, s49, 15")
    p("s_lshl_b32 s74, s4, 13")
    p("s_add_u32 s47, s47, s74")
    p(f"s_add_u32 s47, s47, {OF}")
    p("s_add_u32 s48, s47, 4096")
    p("s_lshl_b32 s71, s49, 9")
    p(f"s_add_u32 s71, s71, {GG}")
    p("v_lshrrev_b32 v1, 5, v0")
    p("v_lshlrev_b32 v2, 8, v1")
    p(f"s_mov_b32 s68, {f2u(2.0**-40):#x}")
    p(f"s_mov_b32 s69, {f2u(2.0**40):#x}")
    p(f"s_mov_b32 s42, {f2u(2.0**120):#x}")
    p("s_waitcnt lgkmcnt(0)")
    p("s_barrier")
    tr("bar")
    p(f"ds_read_b128 v[12:15], v96")
    p(f"ds_read_b128 v[16:19], v96 offset:1024")
    p(f"ds_read_b32 v20, v97 offset:2048")
    p("s_waitcnt lgkmcnt(0)")
    for i in range(9): p(f"v_add_f32 v{R+i}, v{R+i}, v{12+i}")
    p(f"v_max3_f32 v6, |v{R}|, |v{R+1}|, |v{R+2}|")
    p(f"v_max3_f32 v6, v6, |v{R+3}|, |v{R+4}|")
    p(f"v_max3_f32 v6, v6, |v{R+5}|, |v{R+6}|")
    p(f"v_max_f32 v6, v6, |v{R+7}|")
    p(f"v_cmp_le_f32 s[78:79], s68, v{R+8}")
    p(f"v_cmp_ge_f32 s[80:81], s69, v{R+8}")
    p(f"v_cmp_ge_f32 vcc, s42, v6")
    p("s_and_b64 s[78:79], s[78:79], s[80:81]")
    p("s_and_b64 s[78:79], s[78:79], vcc")
    p("s_cmp_eq_u64 s[78:79], -1" if not OPT["fallback"] else "s_cmp_eq_u64 s[78:79], 1")
    p("s_cbranch_scc0 L_slow")
    p.label("L_fin")
    p(f"v_rcp_f32 v6, v{R+8}")
    p(f"v_mul_f32 v6, v{OG}, v6")
    for i in range(8): p(f"v_mul_f32 v{R+i}, v6, v{R+i}")
    for i in range(4): p(f"v_cvt_pk_bf16_f32 v{R+12+i}, v{R+2*i}, v{R+2*i+1}")
    for i in range(4): p(f"v_min_u32 v{R+12+i}, -2, v{R+12+i}")
    p(f"buffer_store_dwordx4 {vr(R+12,4)}, v3, s[12:15], s70 offen sc1")
    tr("ost")
    for q in range(4):
        p(f"buffer_load_dwordx4 {vr(G16+4*q,4)}, v2, s[12:15], s71 offen offset:{(q & 1)*16 + (q >> 1)*128} sc1")
    def loadO():
        for hh in range(8):
            p(f"buffer_load_dwordx4 {vr(OA+4*hh,4)}, v3, s[12:15], s{47 + (hh >> 2)} offen offset:{(hh & 3)*1024} sc1")
    def rdC2(t):
        for jn in range(2):
            p(f"ds_read_b128 {vr(CB[t & 3]+4*jn,4)}, v{CA + (t & 3)} offset:{jn*16384 + (t >> 2)*4096}")
    t0 = 2 * NT
    for t in range(t0, min(t0 + 3, 16)): rdC2(t)
    p(f"v_lshlrev_b32 v{D_}, 16, v{D_}")
    for i in range(8):
        p(f"v_lshlrev_b32 v{X_+i}, 16, v{X_+i}")
        p(f"v_mul_f32 v{X_+i}, v{D_}, v{X_+i}")
    p("s_waitcnt vmcnt(5)")
    extra = []
    for i in range(4): extra.append(f"v_cvt_pk_bf16_f32 v{40+i}, v{X_+2*i}, v{X_+2*i+1}")
    for i in range(4):
        extra.append(f"v_lshlrev_b32 v{X_+2*i}, 16, v{40+i}")
        extra.append(f"v_and_b32 v{X_+2*i+1}, 0xffff0000, v{40+i}")
    for i in range(8): extra.append(f"v_mul_f32 v{AV+i}, v{G8+i}, v{X_+i}")
    extra += ["s_lshl_b32 s68, s3, 13", "v_add_u32 v232, s68, v3", "s_lshl_b32 s68, s5, 15", "s_lshl_b32 s74, s4, 11", "s_add_u32 s68, s68, s74",
              "v_add_u32 v233, s68, v3", "v_and_b32 v5, 31, v0", "v_lshlrev_b32 v5, 2, v5", "v_lshl_add_u32 v234, v1, 15, v5", "v_add_u32 v235, 4096, v234",
              "s_lshl_b32 s40, s40, 11", "s_lshl_b32 s41, s41, 2", "s_add_u32 s40, s40, s41", "s_add_u32 s41, s40, 8192"]
    ot = OPT.get("oload_t", 12)
    for t in range(t0, 16):
        if t + 3 < 16:
            rdC2(t + 3); p("s_waitcnt lgkmcnt(6)")
        else: p(f"s_waitcnt lgkmcnt({2*(15-t)})")
        for jn in range(2):
            p(f"v_mfma_f32_32x32x16_bf16 {vr(ACA[jn],16)}, {vr(H2+4*(t & 7),4)}, {vr(CB[t & 3]+4*jn,4)}, {vr(ACA[jn],16)}")
            for _ in range(3):
                if extra: p(extra.pop(0))
        if t == ot: loadO()
    for x in extra: p(x)
    if ot < t0 or ot > 15: loadO()
    srd(p, 28, 66, 2048*2048)
    p("s_waitcnt vmcnt(8)")
    p("s_barrier")
    for jn in range(2):
        for r in range(16):
            p(f"v_mul_f32 v{ACA[jn]+r}, v{G16+r}, v{ACA[jn]+r}")
    mk("pre")
    p(f"s_mov_b32 s81, {SPIN}")
    p.label("L_opoll")
    for hh in range(8):
        p(f"s_waitcnt vmcnt({7-hh})")
        for jn in range(2):
            p(f"v_mfma_f32_32x32x16_bf16 {vr(ACB[jn],16)}, {vr(OA+4*hh,4)}, {vr(WOR+8*hh+4*jn,4)}, {vr(ACB[jn],16) if hh else vr(ACA[jn],16)}")
        if hh == 0:
            p(f"v_max3_u32 v4, v{OA}, v{OA+1}, v{OA+2}")
            p(f"v_max_u32 v4, v4, v{OA+3}")
        else:
            p(f"v_max3_u32 v4, v4, v{OA+4*hh}, v{OA+4*hh+1}")
            p(f"v_max3_u32 v4, v4, v{OA+4*hh+2}, v{OA+4*hh+3}")
    p("v_cmp_eq_u32 vcc, -1, v4")
    p("s_sub_u32 s81, s81, 1")
    p("s_cbranch_scc1 L_opollx")
    p("s_cbranch_vccz L_opollx")
    p(f"s_sleep {OPT.get('osleep', 1)}")
    loadO()
    p("s_branch L_opoll")
    p.label("L_opollx")
    tr("ook")
    for q in range(8):
        p(f"ds_write_b128 v232, {vr(40+4*q,4)} offset:{q*1024}")
    p("s_waitcnt lgkmcnt(0)")
    p("s_barrier")
    for k in range(4):
        p(f"ds_read_b128 {vr(72+8*k,4)}, v233 offset:{k*8192}")
        p(f"ds_read_b128 {vr(76+8*k,4)}, v233 offset:{k*8192+1024}")
    p("s_waitcnt lgkmcnt(4)")
    for i in range(8):
        p(f"v_add_f32 v{72+i}, v{72+i}, v{80+i}")
        p(f"v_add_f32 v{72+i}, v{72+i}, v{AV+i}")
    p("s_waitcnt lgkmcnt(0)")
    for i in range(8):
        p(f"v_add_f32 v{88+i}, v{88+i}, v{96+i}")
        p(f"v_add_f32 v{88+i}, v{72+i}, v{88+i}")
        p(f"buffer_store_dword v{88+i}, v{234 + ((i >> 1) & 1)}, s[28:31], s{40 if i < 4 else 41} offen offset:{(i & 1)*2048} {OPT.get('outsc', '')}")
    p("s_or_b32 s68, s2, s3")
    p("s_cmp_eq_u32 s68, 0")
    p("s_cbranch_scc0 L_noep")
    p(f"s_mov_b32 s68, {EPO}")
    p("v_mov_b32 v4, s32")
    p("s_mov_b64 exec, 1")
    p("buffer_store_dword v4, off, s[12:15], s68 sc1")
    p("s_mov_b64 exec, -1")
    p.label("L_noep")
    st_.end(12, 3, 8, 4)
    if TRACE:
        p("s_waitcnt vmcnt(0)"); tr("end")
        p("s_lshl_b32 s82, s2, 3"); p("s_add_u32 s82, s82, s3"); p("s_lshl_b32 s82, s82, 9"); p(f"s_add_u32 s82, s82, {STAMP_OFF}")
        p("v_lshlrev_b32 v4, 2, v0")
        p("buffer_store_dword v254, v4, s[12:15], s82 offen"); p("buffer_store_dword v255, v4, s[12:15], s82 offen offset:256")
        print("SITES", {v: k for k, v in sites.items()})
        open("sites.txt", "w").write(repr({v: k for k, v in sites.items()}))
    p.label("L_end")
    p("s_endpgm")
    p.label("L_slow")
    p("v_and_b32 v5, 15, v0")
    p("v_lshlrev_b32 v5, 4, v5")
    p("v_lshl_add_u32 v5, v1, 8, v5")
    p(f"v_add_u32 v2, {VF}, v5")
    p("s_lshl_b32 s68, s46, 10")
    p("s_add_u32 s68, s68, s76")
    p(f"buffer_load_dwordx4 {vr(Q[0],4)}, v3, s[12:15], s68 offen sc1")
    p("v_mov_b32 v6, 0xff800000")
    p("s_mov_b32 s73, s76")
    p("s_mov_b32 s72, 64")
    p.label("L_slow1")
    loadK(0, 73)
    p("s_add_u32 s73, s73, 1024")
    p("s_sub_u32 s72, s72, 1")
    p("s_waitcnt vmcnt(0)")
    p(f"v_mfma_f32_32x32x16_bf16 {vr(S[0],16)}, {vr(K[0],4)}, {vr(Q[0],4)}, 0")
    for i in range(8): p(f"v_max3_f32 v6, v6, v{S[0]+2*i}, v{S[0]+2*i+1}")
    p("s_cmp_lg_u32 s72, 0")
    p("s_cbranch_scc1 L_slow1")
    p("v_mov_b32 v4, v6")
    p("v_permlane32_swap_b32 v4, v6")
    p("v_max_f32 v6, v4, v6")
    for i in range(16): p(f"v_sub_f32 v{S[1]+i}, 0, v6")
    for i in range(16): p(f"v_mov_b32 v{R+i}, 0")
    p("s_mov_b32 s73, s76")
    p("s_mov_b32 s72, 64")
    p.label("L_slow2")
    loadK(0, 73); loadV(0, 73)
    p("s_add_u32 s73, s73, 1024")
    p("s_sub_u32 s72, s72, 1")
    p("s_waitcnt vmcnt(0)")
    p(f"v_mfma_f32_32x32x16_bf16 {vr(S[0],16)}, {vr(K[0],4)}, {vr(Q[0],4)}, {vr(S[1],16)}")
    for i in range(16): p(f"v_exp_f32 v{S[0]+i}, v{S[0]+i}")
    p(f"v_smfmac_f32_32x32x32_bf16 {vr(R,16)}, {vr(V[0],4)}, {vr(S[0],8)}, v{IDX}")
    p(f"v_smfmac_f32_32x32x32_bf16 {vr(R,16)}, {vr(V[0]+4,4)}, {vr(S[0]+8,8)}, v{IDX}")
    p("s_cmp_lg_u32 s72, 0")
    p("s_cbranch_scc1 L_slow2")
    p("v_lshlrev_b32 v2, 8, v1")
    p("s_nop 11")
    p("s_branch L_fin")
    return p

if __name__ == "__main__":
    p = build()
    p.fix_hazards(verbose="-v" in sys.argv)
    for lab in (None, "L_G1", "L_slow"):
        for e in p.check_waits(lab): print(f"  [wait:{lab}] {e}")
    NAME = "gated_mix__ssm_conv_s5__softmax_full_mha__prompt_kernel"
    b, d = kernel_text(NAME, p, None)
    out = HEADER + f"; @launch grid=(256,1,1) block=(512,1,1) lds={LDS_BYTES}\n" + '.amdgcn_target "amdgcn-amd-amdhsa--gfx950"\n.text\n' + b + '.section .rodata,"a"\n' + d
    dst = [a for a in sys.argv[1:] if not a.startswith("-")]
    fn = dst[0] if dst else "gated_mix__ssm_conv_s5__softmax_full_mha__prompt.s"
    open(fn, "w").write(out)
    import subprocess
    sys.path.insert(0, "cdna_kernels")
    from cdna_launch import with_harness_metadata, address_register_problem
    open("h.s", "w").write(with_harness_metadata(out, NAME, 16, launch_lists=True))
    r = subprocess.run(["clang", "-x", "assembler", "-target", "amdgcn-amd-amdhsa", "-mcpu=gfx950", "h.s", "-o", "h.co"], capture_output=True, text=True)
    if r.returncode: print("ASSEMBLY FAILED", r.stderr[:3000])
    else:
        pr = address_register_problem("h.co", NAME, None)
        if pr: print("CHECK:", pr)
```

```python
from asmlib import Prog, Ins

QF = 0x000000
KF = 0x200000
VF = 0x400000
OF = 0x1002000
ON = 0x600000
HF = 0x800000
CF = 0xC00000
WOF = 0xD00000
GG = 0xD80000
EE = 0xD90000
WS_USED = 0x1210000

A_X, A_LRE, A_LIM, A_BRE, A_BIM, A_CRE, A_CIM, A_LOGDT, A_DSKIP, A_BX, A_WQKV, A_WO, A_GATE, A_OUT, A_DBG, A_WS = [8 * i for i in range(16)]

class VM:
    def __init__(self, p): self.p = p; self.q = []
    def issue(self, text, tag=None):
        self.p(text); self.q.append(tag)
    def N(self, tags):
        if not isinstance(tags, (list, set)): tags = [tags]
        last = -1
        for i, t in enumerate(self.q):
            if t in tags: last = i
        return len(self.q) - 1 - last if last >= 0 else None
    def wait(self, tags, extra=""):
        n = self.N(tags)
        if n is None:
            if extra: self.p(f"s_waitcnt {extra}")
            return
        assert n <= 63
        self.p(f"s_waitcnt vmcnt({n}) {extra}".strip())
        self.q = self.q[len(self.q) - n:] if n else []
    def drain(self):
        self.p("s_waitcnt vmcnt(0)"); self.q = []

def srd(p, d, base, nbytes):
    p(f"s_mov_b32 s{d}, s{base}")
    p(f"s_and_b32 s{d+1}, s{base+1}, 0xffff" if False else f"s_mov_b32 s{d+1}, s{base+1}")
    p(f"s_mov_b32 s{d+2}, {nbytes:#x}")
    p(f"s_mov_b32 s{d+3}, 0x00020000")

def vr(a, n=1): return f"v{a}" if n == 1 else f"v[{a}:{a+n-1}]"
def sr(a, n=1): return f"s{a}" if n == 1 else f"s[{a}:{a+n-1}]"

def kernel_text(name, prog, vgpr=None, sgpr=None):
    mv, ms = prog.max_regs()
    vg = vgpr or mv
    assert vg >= mv, (name, vg, mv)
    vg = max(vg, 8)
    acc = (vg + 3) // 4 * 4
    sg = max(sgpr or ms, 16)
    body = f""".globl {name}
.p2align 8
.type {name},@function
{name}:
{prog.text()}"""
    desc = f""".p2align 6
.amdhsa_kernel {name}
  .amdhsa_next_free_vgpr {vg}
  .amdhsa_next_free_sgpr {min(sg, 102)}
  .amdhsa_accum_offset {acc}
  .amdhsa_group_segment_fixed_size 0
  .amdhsa_kernarg_size 128
  .amdhsa_user_sgpr_count 2
  .amdhsa_user_sgpr_kernarg_segment_ptr 1
  .amdhsa_system_sgpr_workgroup_id_x 1
.end_amdhsa_kernel
"""
    print(f"{name}: vgpr={mv} sgpr={ms} ninstr={sum(1 for x in prog.ins if x.kind not in ('label','dir'))}")
    return body, desc

HEADER = open("gated_mix__ssm_conv_s5__softmax_full_mha__prompt.s.ref").read().split("; Override launch")[0]

def file_text(kernels):
    out = HEADER
    for (name, prog, grid, block, lds, vg) in kernels:
        out += f"; @launch kernel={name} grid=({grid},1,1) block=({block},1,1) lds={lds}\n"
    out += '.amdgcn_target "amdgcn-amd-amdhsa--gfx950"\n.text\n'
    descs = ""
    seen = set()
    for (name, prog, grid, block, lds, vg) in kernels:
        if name in seen: continue
        seen.add(name)
        b, d = kernel_text(name, prog, vg)
        out += b; descs += d
    out += '.section .rodata,"a"\n' + descs
    return out

def finish(p, name):
    n = p.fix_hazards()
    errs = p.check_waits()
    for e in errs: print(f"  [wait] {name}: {e}")
    return p

import os
STAMP = os.environ.get("STAMP", "") != ""
STAMP_OFF = 0xE00000
class Stamps:
    def __init__(self, p, kid): self.p = p; self.n = 0; self.kid = kid
    def start(self): self.mark()
    def mark(self):
        if not STAMP: return
        assert self.n < 8
        p = self.p
        p("s_memtime s[100:101]"); p("s_memrealtime s[82:83]"); p("s_waitcnt lgkmcnt(0)")
        p(f"s_mov_b32 s{84+self.n}, s100"); p(f"s_mov_b32 s{92+self.n}, s82"); self.n += 1
    def end(self, srd_ws, wave_s, nwaves, vtmp):
        if not STAMP: return
        p = self.p
        p("s_waitcnt vmcnt(0)")
        self.mark()
        for k in range(self.n, 8):
            p(f"s_mov_b32 s{84+k}, 0"); p(f"s_mov_b32 s{92+k}, 0")
        if os.environ.get("STAMP") == "dbg":
            p("s_load_dwordx2 s[82:83], s[0:1], 112"); p("s_waitcnt lgkmcnt(0)")
            p("s_mov_b32 s8, s82"); p("s_mov_b32 s9, s83"); p("s_mov_b32 s10, 256"); p("s_mov_b32 s11, 0x00020000")
            p("s_mov_b64 exec, 1")
            p("s_not_b32 s82, s92")
            p(f"v_mov_b32 v{vtmp}, s82")
            p(f"buffer_atomic_umax v{vtmp}, off, s[8:11], 0")
            for i in range(1, 8):
                p(f"v_mov_b32 v{vtmp}, s{92+i}")
                p(f"buffer_atomic_umax v{vtmp}, off, s[8:11], 0 offset:{4*i}")
            p("s_cmp_eq_u32 s2, 37"); p("s_cbranch_scc0 L_nodbg")
            p(f"s_cmp_eq_u32 s{wave_s}, {int(os.environ.get('DBGW', '0'))}"); p("s_cbranch_scc0 L_nodbg")
            for i, sg in enumerate((92, 94, 96, 97, 84, 86, 88, 89)):
                p(f"v_mov_b32 v{vtmp}, s{sg}")
                p(f"buffer_store_dword v{vtmp}, off, s[8:11], 0 offset:{32+4*i}")
            p.label("L_nodbg")
            p("s_mov_b64 exec, -1")
            p("s_waitcnt vmcnt(0)")
            return
        p(f"s_mul_i32 s82, s2, {nwaves}")
        p(f"s_add_u32 s82, s82, s{wave_s}")
        p("s_lshl_b32 s82, s82, 6")
        p(f"s_add_u32 s82, s82, {STAMP_OFF + self.kid * 0x40000}")
        p(f"v_mov_b32 v{vtmp}, 0")
        for i in range(16):
            p(f"v_mov_b32 v{vtmp+1}, s{84+i}")
            p(f"buffer_store_dword v{vtmp+1}, v{vtmp}, s[{srd_ws}:{srd_ws+3}], s82 offen offset:{4*i}")
        p("s_waitcnt vmcnt(0)")
```

```python
import sys, os, math, struct
from common import *
from k_ssm import cmul, lam_compute
def f2u(x): return struct.unpack("<I", struct.pack("<f", x))[0]
QSCALE = 0.25 * math.log2(math.e)

FL1 = 0xDA0000
FLE = 0xDB0000
EPO = 0xDB8000
FLH = 0xDC0000
FL2 = 0xDD0000

WR = 49152
BR = 86016
SCR = 65536
EXC = SCR + 9216
P2 = 151552
LF = 161792
LDS_BYTES = 162048
SPIN = 400000

OPT = dict(fallback=False, rot=1, adp=1, psleep=6, pfirst=10,
           ev={1: "E3a", 2: "KVa PL:0 E3b", 3: "KVb", 4: "E4 PS:0", 5: "E4b PSb:0", 7: "W5a:0", 8: "W5b:0 E5a:0 W5a:1", 9: "E5b:0 W5b:1 E5a:1", 10: "E5b:1"}, t0=10)
OPT.update(eval(os.environ.get("OPT", "{}")))

def publish(p, soff, v=4):
    p(f"v_mov_b32 v{v}, s32"); p(f"v_mov_b32 v{v+1}, s33")
    p("s_mov_b64 exec, 1")
    p(f"buffer_store_dwordx2 v[{v}:{v+1}], off, s[12:15], s{soff} sc1")
    p("s_mov_b64 exec, -1")

_pc = [0]
def uid():
    _pc[0] += 1; return _pc[0]
def poll(p, vaddr, soff, dontcare=None, first=0, fr=4):
    n = uid()
    p(f"s_mov_b32 s81, {SPIN}")
    if first: p(f"s_sleep {first}")
    p.label(f"Lpoll{n}")
    p(f"buffer_load_dwordx2 v[{fr}:{fr+1}], v{vaddr}, s[12:15], s{soff} offen sc1")
    p("s_sub_u32 s81, s81, 1")
    p(f"s_cbranch_scc1 Lpollx{n}")
    p("s_waitcnt vmcnt(0)")
    p(f"v_cmp_eq_u32 s[78:79], s32, v{fr}")
    p(f"v_cmp_eq_u32 vcc, s33, v{fr+1}")
    p("s_and_b64 s[78:79], s[78:79], vcc")
    if dontcare is not None: p(f"s_or_b64 s[78:79], s[78:79], s[{dontcare}:{dontcare+1}]")
    p("s_cmp_eq_u64 s[78:79], -1")
    p(f"s_cbranch_scc1 Lpollx{n}")
    p(f"s_sleep {OPT['psleep']}")
    p(f"s_branch Lpoll{n}")
    p.label(f"Lpollx{n}")
    p("s_waitcnt vmcnt(0)")

def lds_spin(p, vaddr, want, t=6):
    n = uid()
    p(f"s_mov_b32 s81, {SPIN*8}")
    p.label(f"Lspin{n}")
    p(f"ds_read_b32 v{t}, v{vaddr}")
    p("s_sub_u32 s81, s81, 1")
    p(f"s_cbranch_scc1 Lspinx{n}")
    p("s_waitcnt lgkmcnt(0)")
    p(f"v_cmp_ne_u32 s[78:79], {want}, v{t}")
    p("s_cmp_eq_u64 s[78:79], 0")
    p(f"s_cbranch_scc1 Lspinx{n}")
    p("s_sleep 1")
    p(f"s_branch Lspin{n}")
    p.label(f"Lspinx{n}")
    p("s_waitcnt lgkmcnt(0)")

def build():
    p = Prog()
    st_ = Stamps(p, 0)
    MK = OPT.get("marks", ["pro", "t1", "pub", "att", "loop", "pre"])
    TRACE = OPT.get("trace")
    sites = {}
    def tr(name):
        if not TRACE: return
        i = sites.setdefault(name, len(sites) + 1)
        p("s_memtime s[100:101]"); p("s_waitcnt lgkmcnt(0)")
        p("s_mov_b64 exec, s[96:97]"); p("v_mov_b32 v254, s100"); p(f"v_mov_b32 v255, {i}"); p("s_mov_b64 exec, -1")
        p("s_lshl_b64 s[96:97], s[96:97], 1")
    def mk(name, st=None):
        if name in MK: (st or st_).mark()
        tr(name)
    p("s_cmp_ge_u32 s2, 256")
    p("s_cbranch_scc1 L_end")
    st_.start()
    if TRACE:
        p("s_mov_b64 s[96:97], 1"); p("v_mov_b32 v254, 0"); p("v_mov_b32 v255, 0"); tr("start")
    p("s_load_dwordx16 s[40:55], s[0:1], 0")
    p(f"s_load_dwordx16 s[56:71], s[0:1], {A_DSKIP}")
    p("v_lshrrev_b32 v1, 6, v0")
    p("v_and_b32 v0, 63, v0")
    p("s_and_b32 s72, s2, 7")
    p("v_readfirstlane_b32 s3, v1")
    p("s_lshr_b32 s73, s2, 3")
    p("s_lshr_b32 s74, s72, 1")
    p("s_lshl_b32 s74, s74, 2")
    p("s_and_b32 s75, s73, 3")
    p("s_add_u32 s34, s74, s75")
    p("s_and_b32 s74, s72, 1")
    p("s_lshl_b32 s74, s74, 3")
    p("s_lshr_b32 s39, s73, 2")
    p("s_add_u32 s35, s74, s39")
    p("s_lshl_b32 s74, s72, 2")
    p("s_add_u32 s38, s74, s75")
    p("s_lshr_b32 s75, s73, 3")
    p("s_add_u32 s36, s74, s75")
    p("s_and_b32 s37, s73, 7")
    p("s_and_b32 s4, s3, 3")
    p("s_lshr_b32 s5, s3, 2")
    p("v_lshrrev_b32 v1, 5, v0")
    p("v_and_b32 v2, 31, v0")
    p("v_lshlrev_b32 v3, 4, v0")
    p("s_mul_i32 s6, s4, 12288")
    p("s_lshl_b32 s7, s34, 2")
    p("s_add_u32 s7, s7, s4")
    p("s_cmp_eq_u32 s5, 0")
    p("s_cbranch_scc0 L_G1")

    S = [8, 24]; O = [40, 56]; Q = [72, 76]; K = [80, 84]; V = [88, 96]; IDX = 7; VA = 2; KA_ = 250
    WOR = 104; ACA = [168, 184]; TB = [200, 212]; G16 = 224; X_ = 240; D_ = 248; OG = 249
    RE = 168; IM = 184; L = 200; CAR = 208; EB = 210
    def att_setup():
        p("s_lshl_b32 s69, s37, 3")
        p("s_lshl_b32 s68, s4, 1")
        p("s_add_u32 s69, s69, s68")
        p("s_add_u32 s46, s69, s5")
        p("s_lshl_b32 s76, s36, 16")
        p("s_lshl_b32 s77, s69, 10")
        p("s_add_u32 s77, s77, s76")
        p(f"s_mul_i32 s72, s5, {BR}")
        p("v_lshrrev_b32 v4, 5, v0")
        p("v_and_b32 v5, 15, v0")
        p("v_lshlrev_b32 v5, 4, v5")
        p("v_lshl_add_u32 v5, v4, 8, v5")
        p(f"v_add_u32 v{VA}, s72, v5")
        p(f"v_add_u32 v{KA_}, s72, v3")
        p("s_lshl_b32 s68, s4, 4")
        p("s_lshl_b32 s69, s5, 2")
        p("s_add_u32 s68, s68, s69")
        p(f"s_add_u32 s68, s68, {LF + 128}")
        p("v_mov_b32 v1, s68")
        p("s_mov_b32 s74, 0")
        p("v_and_b32 v4, 27, v0")
        p("v_mov_b32 v5, 0x3f803f80")
        p("v_cmp_eq_u32 vcc, 16, v4")
        p("s_mov_b32 s44, 0xffff"); p("s_mov_b32 s45, 0xffff")
        p("v_cndmask_b32 v4, 0, v5, vcc")
        for i in range(16): p(f"v_mov_b32 v{V[0]+i}, v4")
        p(f"v_mov_b32 v{IDX}, 0xdddddddd")
        for i in range(32): p(f"v_mov_b32 v{O[0]+i}, 0")
        for i in range(8, 16): p(f"v_mov_b32 v{S[1]+i}, 0")
        p("s_lshl_b32 s49, s38, 1")
        p("s_add_u32 s49, s49, s5")
    def fl1_addr():
        p("s_sub_u32 s69, s46, s5")
        p("s_lshl_b32 s68, s5, 5")
        p("v_add_u32 v6, s68, v0")
        p("v_and_b32 v4, 1, v0")
        p("v_add_u32 v4, s69, v4")
        p("v_cmp_lt_u32 vcc, 31, v0")
        p("s_lshr_b32 s68, s36, 1")
        p("s_lshl_b32 s68, s68, 6")
        p("v_cndmask_b32 v6, v6, v4, vcc")
        p("v_add_u32 v6, s68, v6")
        p("v_subrev_u32 v4, 34, v0")
        p("v_bfe_u32 v5, v4, 2, 2")
        p("v_mul_u32_u24 v5, 5, v5")
        p("v_and_b32 v5, 9, v5")
        p("s_and_b32 s68, s46, 3")
        p("s_lshl_b32 s68, s68, 1")
        p("v_add_u32 v5, s68, v5")
        p("v_and_b32 v4, 3, v4")
        p("s_and_b32 s68, s46, 0x3c")
        p("v_add_u32 v4, s68, v4")
        p("v_cmp_lt_u32 vcc, 33, v0")
        p("v_lshl_add_u32 v4, v5, 6, v4")
        p(f"s_mov_b32 s48, {FL1}")
        p("v_cndmask_b32 v6, v6, v4, vcc")
        p("v_lshlrev_b32 v6, 6, v6")
    def rdK(b, blk): p(f"ds_read_b128 {vr(K[b],4)}, v{KA_} offset:{blk*2048}")
    def rdV(b, blk):
        p("s_mov_b64 exec, s[44:45]")
        for f in range(2): p(f"ds_read_b128 {vr(V[b]+4*f,4)}, v{VA} offset:{blk*2048 + 1024 + 512*f}")
        p("s_mov_b64 exec, -1")
    def lds_count(word):
        p(f"v_mov_b32 v6, s68" if word is None else f"v_mov_b32 v6, {word}")
        p("s_mov_b64 exec, 1")
        p(f"ds_inc_u32 v6, v{IDX}")
        p("s_mov_b64 exec, -1")
    NC0 = OPT.get("nc0", 1)
    def kv_dma(chunks):
        for c in chunks:
            for u in range(2):
                p(f"s_add_u32 s70, s62, {8*c + u}")
                p("s_and_b32 s70, s70, 31")
                p("s_lshl_b32 s70, s70, 10")
                p("s_add_u32 s70, s70, s73")
                p(f"s_add_u32 m0, s63, {(8*c + u)*2048}")
                p(f"s_add_u32 s71, s70, {VF - KF - 1024}")
                p("buffer_load_dwordx4 v3, s[12:15], s70 offen sc1 lds")
                p("buffer_load_dwordx4 v3, s[12:15], s71 offen offset:1024 sc1 lds")
    def att_start(st):
        for c in range(2):
            p(f"buffer_load_dwordx4 {vr(Q[c],4)}, v3, s[12:15], s77 offen offset:{c*1024} sc1")
        p("s_lshl_b32 s73, s5, 15")
        p("s_add_u32 s73, s73, s76")
        p(f"s_add_u32 s73, s73, {KF}")
        p("s_lshl_b32 s68, s37, 2")
        p("s_lshl_b32 s69, s4, 1")
        p("s_add_u32 s68, s68, s69")
        p("s_lshl_b32 s69, s4, 12")
        p("s_add_u32 s69, s69, s72")
        p("s_mov_b32 s62, s68"); p("s_mov_b32 s63, s69")
        kv_dma(range(NC0))
        p("s_lshl_b32 s68, s5, 3")
        p(f"s_add_u32 s68, s68, {LF + 16}")
        p(f"s_waitcnt vmcnt({4 * (NC0 - 1)})")
        lds_count(None)
        p("v_mov_b32 v5, s68")
        lds_spin(p, 5, 4)
        rdK(0, 0); rdV(0, 0); rdK(1, 1)
        p("s_waitcnt lgkmcnt(0)")
        p(f"v_mfma_f32_32x32x16_bf16 {vr(S[0],16)}, {vr(K[0],4)}, {vr(Q[0],4)}, 0")
        mk("att", st)
        kv_dma(range(NC0, 4))
        p("s_nop 7")

    vm = VM(p)
    XA = 8; WA = 12
    p("s_lshl_b32 s72, s34, 7")
    p("s_and_b32 s73, s35, 7")
    p("s_lshl_b32 s73, s73, 4")
    p("s_add_u32 s72, s72, s73")
    p("s_and_b32 s73, s35, 8")
    p("s_add_u32 s72, s72, s73")
    p("s_lshl_b32 s73, s4, 1")
    p("s_add_u32 s72, s72, s73")
    p("v_add_u32 v200, s72, v1")
    p("v_lshlrev_b32 v201, 5, v2")
    p("v_lshl_add_u32 v202, v200, 10, v201")
    p("v_lshlrev_b32 v228, 10, v2")
    p("v_lshl_add_u32 v228, v1, 4, v228")
    p("v_lshlrev_b32 v229, 1, v2")
    p("v_lshl_add_u32 v229, v1, 12, v229")
    p("v_add_u32 v230, 8192, v229")
    p("s_lshl_b32 s72, s35, 15")
    p("s_lshl_b32 s73, s7, 5")
    p("s_and_b32 s73, s73, 1023")
    p("s_add_u32 s72, s72, s73")
    p("s_lshr_b32 s73, s7, 1")
    p("s_lshl_b32 s73, s73, 14")
    p("s_lshl_b32 s74, s35, 6")
    p("s_add_u32 s73, s73, s74")
    p("s_waitcnt lgkmcnt(0)")
    srd(p, 8, 40, 2048*1024)
    srd(p, 12, 70, WS_USED)
    srd(p, 24, 64, 1024)
    p("s_cmp_lt_u32 s34, 8")
    p("s_cselect_b32 s20, s50, s52")
    p("s_cselect_b32 s21, s51, s53")
    p(f"s_mov_b32 s22, {512*1024}")
    p("s_mov_b32 s23, 0x00020000")
    srd(p, 16, 62, 512*1024)
    p(f"s_mov_b32 s68, {EPO}")
    vm.issue("buffer_load_dword v203, off, s[12:15], s68", "g")
    vm.issue("buffer_load_dwordx4 v[204:207], v202, s[8:11], 0 offen", "g")
    vm.issue("buffer_load_dwordx4 v[208:211], v202, s[8:11], 0 offen offset:16", "g")
    vm.issue("buffer_load_dwordx4 v[212:215], v201, s[24:27], 0 offen", "g")
    vm.issue("buffer_load_dwordx4 v[216:219], v201, s[24:27], 0 offen offset:16", "g")
    p("s_mov_b32 s64, s72"); p("s_mov_b32 s65, s73")
    p("s_cmp_eq_u32 s4, 1")
    p("s_cselect_b32 s28, s44, s42"); p("s_cselect_b32 s29, s45, s43")
    p("s_cmp_eq_u32 s4, 2")
    p("s_cselect_b32 s28, s54, s28"); p("s_cselect_b32 s29, s55, s29")
    p("s_movk_i32 s30, 1024")
    p("s_mov_b32 s31, 0x00020000")
    p("s_lshl_b32 s68, s35, 6")
    vm.issue("buffer_load_ushort v231, off, s[28:31], s68", "g")
    if OPT.get("bwarm", 0):
        p("s_cmp_lt_u32 s4, 2")
        p("s_cselect_b32 s28, s46, s48")
        p("s_cselect_b32 s29, s47, s49")
        p(f"s_mov_b32 s30, {512*1024}")
        p("s_mov_b32 s31, 0x00020000")
        p("s_lshl_b32 s68, s35, 3")
        p("s_and_b32 s69, s34, 3")
        p("s_lshl_b32 s69, s69, 1")
        p("s_add_u32 s68, s68, s69")
        p("s_and_b32 s69, s4, 1")
        p("s_add_u32 s68, s68, s69")
        p("s_lshl_b32 s68, s68, 12")
        if OPT.get("bdelay"): p(f"s_sleep {OPT['bdelay']}")
        for q in range(4):
            vm.issue(f"buffer_load_dwordx4 v[232:235], v3, s[28:31], s68 offen offset:{q*1024}", "g")
    p("v_lshrrev_b32 v18, 1, v2")
    p("v_and_b32 v18, 7, v18")
    p("v_lshl_add_u32 v19, v2, 7, s6")
    for ks in range(4):
        p(f"v_add_u32 v20, {2*ks}, v1")
        p("v_xor_b32 v20, v20, v18")
        p(f"v_lshl_add_u32 v{XA+ks}, v20, 4, v19")
    p("v_bfe_u32 v18, v0, 2, 2")
    p("v_lshl_add_u32 v18, v1, 3, v18")
    p("v_mul_u32_u24 v18, 192, v18")
    p("v_bfe_u32 v19, v0, 4, 1")
    p("v_lshl_add_u32 v18, v19, 5, v18")
    p("v_and_b32 v19, 3, v0")
    p("v_lshl_add_u32 v18, v19, 3, v18")
    p(f"v_add_u32 v{WA}, {WR}, v18")
    p("v_and_b32 v13, 0x33, v0")
    p("v_bfe_u32 v19, v0, 2, 1")
    p("v_lshl_or_b32 v13, v19, 3, v13")
    p("v_bfe_u32 v19, v0, 3, 1")
    p("v_lshl_or_b32 v13, v19, 2, v13")
    p("v_lshlrev_b32 v13, 4, v13")
    p(f"v_add_u32 v13, {KF}, v13")
    p("v_bfe_u32 v14, v0, 4, 1")
    p("v_lshlrev_b32 v14, 16, v14")
    p("v_lshl_add_u32 v14, v1, 8, v14")
    p("v_and_b32 v20, 15, v0")
    p("v_lshl_add_u32 v14, v20, 4, v14")
    p(f"v_add_u32 v14, {VF}, v14")
    p("s_lshl_b32 s42, s7, 10")
    p("s_lshl_b32 s43, s35, 17")
    p("s_add_u32 s42, s42, s43")
    p("s_add_u32 s43, s42, 0x10000")
    p("s_lshl_b32 s41, s35, 6")
    p("s_add_u32 s41, s41, s7")
    att_setup()
    ACC = [104, 120, 136]; FR = [152, 168, 184]
    def rd0(kk):
        b = FR[kk % 3]; st = kk >> 2; ks = kk & 3; sl = st % 3
        p(f"ds_read_b128 {vr(b,4)}, v{XA+ks} offset:{sl * 4096}")
        for T in range(3):
            for e in range(2):
                p(f"ds_read_b64_tr_b16 {vr(b+4+4*T+2*e,2)}, v{WA} offset:{sl*12288 + ks*3072 + e*768 + T*64}")
    def mm0(kk):
        b = FR[kk % 3]
        c = [vr(a, 16) if kk else "0" for a in ACC]
        p(f"v_mfma_f32_32x32x16_bf16 {vr(ACC[0],16)}, {vr(b+4,4)}, {vr(b,4)}, {c[0]}")
        p(f"v_mfma_f32_32x32x16_bf16 {vr(ACC[1],16)}, {vr(b+8,4)}, {vr(b,4)}, {c[1]}")
        p(f"v_mfma_f32_32x32x16_bf16 {vr(ACC[2],16)}, {vr(b,4)}, {vr(b+12,4)}, {c[2]}")
    def side_jobs():
        vm.drain()
        p("v_readfirstlane_b32 s32, v203")
        p("v_mov_b32 v220, 0")
        for i in range(8):
            p(f"v_dot2_f32_bf16 v220, v{204+i}, v{212+i}, v220")
        p("s_mul_i32 s32, s32, 0x9E3779B1")
        p("s_add_u32 s32, s32, 0x7F4A7C15")
        p("s_xor_b32 s33, s32, 0x5BD1E995")
        for i in range(4): p(f"v_mov_b32 v{224+i}, -1")
        p("s_lshl_b32 s68, s46, 15")
        p("s_lshl_b32 s69, s36, 10")
        p("s_add_u32 s68, s68, s69")
        p(f"s_add_u32 s68, s68, {OF}")
        p("s_add_u32 s69, s68, 0x8000")
        p("buffer_store_dwordx4 v[224:227], v3, s[12:15], s68 offen sc1")
        p("buffer_store_dwordx4 v[224:227], v3, s[12:15], s69 offen sc1")
        for sh in (8, 4, 2, 1):
            p(f"v_add_f32_dpp v220, v220, v220 row_ror:{sh} row_mask:0xf bank_mask:0xf")
        p("v_mov_b32 v221, v220")
        p("v_permlane16_swap_b32 v221, v220")
        p("v_add_f32 v220, v220, v221")
        p("v_cvt_pk_bf16_f32 v220, v220, v220")
        p("v_and_b32 v220, 0xffff0000, v220")
        p(f"v_mul_f32 v220, {f2u(-math.log2(math.e)):#x}, v220")
        p("v_exp_f32 v220, v220")
        p("v_add_f32 v220, 1.0, v220")
        p("v_rcp_f32 v220, v220")
        p("v_cvt_pk_bf16_f32 v220, v220, v220")
        p("v_and_b32 v220, 0xffff0000, v220")
        p("v_lshrrev_b32 v221, 3, v200")
        p("v_and_b32 v200, 7, v200")
        p("v_lshlrev_b32 v200, 2, v200")
        p("v_lshl_add_u32 v200, v221, 7, v200")
        p(f"s_mov_b32 s68, {GG}")
        p("buffer_store_dword v220, v200, s[12:15], s68 offen sc1")
    if OPT.get("side_st", 1) < 0: side_jobs()
    mk("pro")
    p("s_barrier")
    rd0(0); rd0(1)
    for st in range(8):
        k = 4 * st
        p("s_waitcnt lgkmcnt(7)"); mm0(k); rd0(k + 2)
        p("s_waitcnt lgkmcnt(7)"); mm0(k + 1); rd0(k + 3)
        p("s_waitcnt lgkmcnt(7)"); mm0(k + 2)
        p("s_waitcnt lgkmcnt(0)")
        p("s_barrier")
        tr("b")
        if st < 7: rd0(k + 4)
        mm0(k + 3)
        if st < 7: rd0(k + 5)
        if st == OPT.get("side_st", 1): side_jobs()
    mk("t1")
    p(f"s_mov_b32 s71, {f2u(QSCALE):#x}")
    T = 152
    for hd in range(2):
        a = ACC[hd]
        for i in range(4):
            p(f"v_cvt_pk_bf16_f32 v{T+4+i}, v{a+8+2*i}, v{a+8+2*i+1}")
        p(f"buffer_store_dwordx4 {vr(T+4,4)}, v13, s[12:15], s{42+hd} offen sc1")
        T += 8
    a = ACC[2]
    for i in range(8):
        p(f"v_cvt_pk_bf16_f32 v{T+i}, v{a+2*i}, v{a+2*i+1}")
    p(f"buffer_store_dwordx4 {vr(T,4)}, v14, s[12:15], s42 offen sc1")
    p(f"buffer_store_dwordx4 {vr(T+4,4)}, v14, s[12:15], s42 offen offset:512 sc1")
    T = 152
    for hd in range(2):
        a = ACC[hd]
        for i in range(4):
            p(f"v_cvt_pk_bf16_f32 v{T+i}, v{a+2*i}, v{a+2*i+1}")
        for i in range(4):
            p(f"v_lshlrev_b32 v{a+2*i}, 16, v{T+i}")
            p(f"v_and_b32 v{a+2*i+1}, 0xffff0000, v{T+i}")
        for i in range(8):
            p(f"v_mul_f32 v{a+i}, s71, v{a+i}")
        for i in range(4):
            p(f"v_cvt_pk_bf16_f32 v{T+i}, v{a+2*i}, v{a+2*i+1}")
        p(f"buffer_store_dwordx4 {vr(T,4)}, v3, s[12:15], s{42+hd} offen sc1")
        T += 8
    p("s_lshl_b32 s40, s41, 6")
    p(f"s_add_u32 s40, s40, {FL1}")
    fl1_addr()
    p("s_waitcnt vmcnt(0)")
    publish(p, 40)
    mk("pub")
    poll(p, 6, 48, first=OPT["pfirst"])
    tr("p1")
    att_start(st_)
    p("s_branch L_SCHED")

    p.label("L_G1")
    st1 = Stamps(p, 0); st1.n = 1
    vm = VM(p)
    XO = 240; WO = 244; BO = 247; XA1 = 224; BA = 228
    XF = 8; BF = [136, 144, 152]; LT = 210
    p("s_lshl_b32 s72, s7, 15")
    p("v_lshrrev_b32 v22, 3, v0")
    p("v_and_b32 v23, 7, v0")
    p("v_bfe_u32 v24, v22, 2, 1")
    p("v_and_b32 v25, 3, v22")
    p("v_lshl_add_u32 v24, v24, 4, v25")
    for j in range(4):
        p(f"v_add_u32 v18, {8*j}, v22")
        p("v_bfe_u32 v19, v18, 1, 3")
        p("v_xor_b32 v19, v19, v23")
        p(f"v_lshlrev_b32 v{30+j}, 4, v19")
        p(f"v_lshl_add_u32 v20, v24, 10, v{30+j}")
        p(f"v_add_u32 v20, {j*4096 - j*1024}, v20")
        p(f"v_add_u32 v{XO+j}, s72, v20")
    if OPT["rot"]:
        p("s_and_b32 s80, s34, 3")
        p("s_lshl_b32 s80, s80, 1")
        p("s_add_u32 s80, s80, s35")
    else:
        p("s_mov_b32 s80, 0")
    p("s_mul_i32 s73, s4, 3072")
    p(f"s_add_u32 s73, s73, {WR}")
    def dma(st, mid=None):
        p(f"s_add_u32 s74, s80, {st}")
        p("s_and_b32 s74, s74, 7")
        p(f"s_add_u32 m0, s6, {(st % 3) * 4096}")
        p("s_lshl_b32 s72, s74, 7")
        for j in range(4):
            vm.issue(f"buffer_load_dwordx4 v{XO+j}, s[8:11], s72 offen offset:{j*1024} lds", ("S", st))
        if mid: mid()
        p(f"s_add_u32 m0, s73, {(st % 3) * 12288}")
        p(f"s_mul_i32 s72, s74, {64*3072}")
        for j in range(3):
            vm.issue(f"buffer_load_dwordx4 v{WO+j}, s[16:19], s72 offen offset:{j*1024} lds", ("S", st))
    def dma_b(q):
        p(f"s_add_u32 s74, s75, {2*q}")
        p("s_and_b32 s74, s74, 7")
        p(f"s_add_u32 m0, s77, {q * 8192}")
        p("s_lshl_b32 s72, s74, 7")
        for j in range(4):
            vm.issue(f"buffer_load_dwordx4 v{BO+j}, s[20:23], s72 offen offset:{j*1024} lds", ("B", q))
    p("s_waitcnt lgkmcnt(0)")
    srd(p, 8, 40, 2048*1024)
    def wcalc():
        p("s_lshl_b32 s76, s35, 6")
        p("s_mul_i32 s77, s4, 16*3072")
        p("s_add_u32 s76, s76, s77")
        p("s_movk_i32 s77, 3072")
        for j in range(3):
            p(f"v_add_u32 v18, {64*j}, v0")
            p("v_mul_u32_u24 v19, 43691, v18")
            p("v_lshrrev_b32 v19, 19, v19")
            p("v_mul_u32_u24 v20, 12, v19")
            p("v_sub_u32 v20, v18, v20")
            p("v_cmp_gt_u32 vcc, 8, v20")
            p("v_bfe_u32 v21, v20, 1, 1")
            p("v_lshlrev_b32 v21, 10, v21")
            p("v_lshrrev_b32 v26, 2, v20")
            p("v_lshl_add_u32 v21, v26, 5, v21")
            p("v_and_b32 v26, 1, v20")
            p("v_lshl_add_u32 v21, v26, 4, v21")
            p("v_lshlrev_b32 v26, 4, v20")
            p(f"v_add_u32 v26, {2048-128}, v26")
            p("v_cndmask_b32 v21, v26, v21, vcc")
            p("v_mad_u32_u24 v21, v19, s77, v21")
            if j: p(f"v_subrev_u32 v21, {j*1024}, v21")
            p(f"v_add_u32 v{WO+j}, s76, v21")
        srd(p, 16, 60, 512*3072)
    dma(0, wcalc); dma(1)
    srd(p, 12, 70, WS_USED)
    p("s_cmp_lt_u32 s4, 2")
    p("s_cselect_b32 s20, s46, s48")
    p("s_cselect_b32 s21, s47, s49")
    p(f"s_mov_b32 s22, {512*1024}")
    p("s_mov_b32 s23, 0x00020000")
    p("s_and_b32 s75, s4, 1")
    p("s_lshl_b32 s77, s75, 12")
    p("s_add_u32 s75, s75, s80")
    p("s_lshr_b32 s76, s4, 1")
    p("s_lshl_b32 s76, s76, 15")
    p("s_add_u32 s77, s77, s76")
    p(f"s_add_u32 s77, s77, {BR}")
    p("s_lshl_b32 s69, s35, 15")
    for j in range(4):
        p(f"v_lshl_add_u32 v20, v22, 10, v{30+j}")
        p(f"v_add_u32 v20, {j*8192 - j*1024}, v20")
        p(f"v_add_u32 v{BO+j}, s69, v20")
    p("v_lshlrev_b32 v18, 2, v0")
    p(f"v_add_u32 v18, {LF}, v18")
    p("v_mov_b32 v19, 0")
    p("ds_write_b32 v18, v19")
    p("v_bfe_u32 v165, v2, 1, 3")
    p("v_lshlrev_b32 v166, 7, v2")
    p("v_add_u32 v167, s6, v166")
    p(f"v_add_u32 v166, {BR}, v166")
    for ks in range(4):
        p(f"v_add_u32 v160, {2*ks}, v1")
        p("v_xor_b32 v160, v160, v165")
        p(f"v_lshl_add_u32 v{XA1+ks}, v160, 4, v167")
        p(f"v_lshl_add_u32 v{BA+ks}, v160, 4, v166")
    def small_loads():
        p(f"s_mov_b32 s68, {EPO}")
        vm.issue("buffer_load_dword v163, off, s[12:15], s68", "lam")
        p("s_lshl_b32 s68, s35, 6")
        p("v_lshl_add_u32 v164, v2, 1, s68")
        srd(p, 24, 42, 1024)
        vm.issue(f"buffer_load_ushort v{LT}, v164, s[24:27], 0 offen", "lam")
        srd(p, 28, 44, 1024)
        vm.issue(f"buffer_load_ushort v{LT+1}, v164, s[28:31], 0 offen", "lam")
        p("s_mov_b32 s24, s54"); p("s_mov_b32 s25, s55")
        vm.issue(f"buffer_load_ushort v{LT+2}, v164, s[24:27], 0 offen", "lam")
    mk("pro", st1)
    B0 = OPT.get("b0", 6)
    for st in range(8):
        vm.wait([("S", st)] + ([("B", 3)] if st == 7 and B0 < 5 else []), "lgkmcnt(0)")
        p("s_barrier")
        for ks in range(4):
            p(f"ds_read_b128 {vr(XF + 16*st + 4*ks, 4)}, v{XA1+ks} offset:{(st % 3) * 4096}")
        if st + 2 < 8: dma(st + 2)
        if st == 2: small_loads()
        if B0 <= st < B0 + 4 and B0 < 5: dma_b(st - B0)

        if B0 == 6 and st == 6: dma_b(0)
        if st == 5:
            vm.wait("lam")
            p("v_readfirstlane_b32 s32, v163")
            lam_compute(p, L, LT)
            p("s_mul_i32 s32, s32, 0x9E3779B1")
            p("s_add_u32 s32, s32, 0x7F4A7C15")
            p("s_xor_b32 s33, s32, 0x5BD1E995")
    def rd1(kk):
        b = BF[kk % 3]; s = kk >> 2; ks = kk & 3
        p(f"ds_read_b128 {vr(b,4)}, v{BA+ks} offset:{s*4096}")
        p(f"ds_read_b128 {vr(b+4,4)}, v{BA+ks} offset:{s*4096 + 32768}")
    p("s_waitcnt lgkmcnt(0)")
    if B0 < 5: rd1(0); rd1(1)
    p("s_barrier")
    mk("t1", st1)
    p("s_setprio 1")
    if B0 >= 5:
        for q in range(1 if B0 == 6 else 0, 4): dma_b(q)
        p(f"v_mov_b32 v160, {LF + 4}")
        p("v_mov_b32 v161, -1")
        vm.drain()
        p("s_mov_b64 exec, 1")
        p("ds_inc_u32 v160, v161")
        p("s_mov_b64 exec, -1")
        lds_spin(p, 160, 4)
        tr("bok")
        rd1(0); rd1(1)
    for kk in range(32):
        b = BF[kk % 3]
        if kk + 2 < 32:
            rd1(kk + 2); p("s_waitcnt lgkmcnt(4)")
        elif kk + 2 == 32: p("s_waitcnt lgkmcnt(2)")
        else: p("s_waitcnt lgkmcnt(0)")
        p(f"v_mfma_f32_32x32x16_bf16 {vr(RE,16)}, {vr(XF+4*kk,4)}, {vr(b,4)}, {vr(RE,16) if kk else 0}")
        p(f"v_mfma_f32_32x32x16_bf16 {vr(IM,16)}, {vr(XF+4*kk,4)}, {vr(b+4,4)}, {vr(IM,16) if kk else 0}")
    a0, a1 = 210, 212
    p("s_lshl_b32 s68, s4, 9")
    p(f"s_add_u32 s68, s68, {EXC}")
    p("v_lshl_add_u32 v18, v0, 3, s68")
    p(f"v_lshlrev_b32 v19, 3, v2")
    p(f"v_add_u32 v19, {EXC}, v19")
    p("s_lshl_b32 s68, s4, 1")
    p("v_add_u32 v20, s68, v1")
    p(f"v_mov_b32 v21, {LF}")
    p("v_mov_b32 v22, -1")
    p(f"v_add_f32 v{L+2}, v{L+2}, v{L+2}")
    p(f"v_add_f32 v{L+3}, v{L+3}, v{L+3}")
    hr, hi = RE, IM
    for r in range(16):
        p(f"v_mul_f32 v214, v{L+3}, v{IM+r}")
        p(f"v_mul_f32 v215, v{L+3}, v{RE+r}")
        p(f"v_fma_f32 v{RE+r}, v{L+2}, v{RE+r}, -v214")
        p(f"v_fma_f32 v{IM+r}, v{L+2}, v{IM+r}, v215")
        if r == 0: continue
        d = a0 if r & 1 else a1
        p(f"v_fma_f32 v{d}, v{L}, v{hr}, v{RE+r}")
        p(f"v_fma_f32 v{d+1}, v{L}, v{hi}, v{IM+r}")
        p(f"v_fma_f32 v{d}, -v{L+1}, v{hi}, v{d}")
        p(f"v_fmac_f32 v{d+1}, v{L+1}, v{hr}")
        hr, hi = d, d + 1
    p(f"ds_write_b64 v18, {vr(hr,2)}")
    p("s_waitcnt lgkmcnt(0)")
    p("s_mov_b64 exec, 1")
    p("ds_inc_u32 v21, v22")
    p("s_mov_b64 exec, -1")
    lds_spin(p, 21, 4)
    SUB = 136
    for j in range(8):
        p(f"ds_read_b64 {vr(SUB+2*j,2)}, v19 offset:{j*256}")
    PW = 214
    p(f"v_mov_b32 v{CAR}, 0"); p(f"v_mov_b32 v{CAR+1}, 0")
    p(f"v_mov_b32 v{PW}, 1.0"); p(f"v_mov_b32 v{PW+1}, 0")
    p("s_waitcnt lgkmcnt(0)")
    cr, ci = SUB, SUB + 1
    pr, pi = L + 4, L + 5
    for j in range(1, 8):
        p(f"v_cmp_eq_u32 vcc, {j}, v20")
        d = a0 if j & 1 else a1
        p(f"v_fma_f32 v{d}, v{L+4}, v{cr}, v{SUB+2*j}")
        p(f"v_fma_f32 v{d+1}, v{L+4}, v{ci}, v{SUB+2*j+1}")
        p(f"v_cndmask_b32 v{CAR}, v{CAR}, v{cr}, vcc")
        p(f"v_cndmask_b32 v{CAR+1}, v{CAR+1}, v{ci}, vcc")
        p(f"v_cndmask_b32 v{PW}, v{PW}, v{pr}, vcc")
        p(f"v_cndmask_b32 v{PW+1}, v{PW+1}, v{pi}, vcc")
        p(f"v_fma_f32 v{d}, -v{L+5}, v{ci}, v{d}")
        p(f"v_fmac_f32 v{d+1}, v{L+5}, v{cr}")
        cr, ci = d, d + 1
        if j < 7:
            q = 216 if j & 1 else 218
            cmul(p, q, q + 1, pr, pi, L + 4, L + 5)
            pr, pi = q, q + 1
    p("s_lshl_b32 s68, s35, 8")
    p("v_lshl_add_u32 v18, v2, 3, s68")
    p("s_lshl_b32 s68, s34, 12")
    p(f"s_add_u32 s68, s68, {EE}")
    p("s_cmp_eq_u32 s4, 0")
    p("s_cbranch_scc0 L_noE")
    p(f"buffer_store_dwordx2 {vr(cr,2)}, v18, s[12:15], s68 offen sc1")
    p.label("L_noE")
    p(f"v_mov_b32 v{L+4}, v{PW}"); p(f"v_mov_b32 v{L+5}, v{PW+1}")
    p("s_mul_i32 s68, s4, 2560")
    p(f"s_add_u32 s68, s68, {P2}")
    p("v_mul_u32_u24 v4, 80, v2")
    p("v_lshl_add_u32 v4, v1, 5, v4")
    p(f"v_add_u32 v{L+2}, s68, v4")
    p("v_bfe_u32 v4, v0, 2, 2")
    p("v_lshl_add_u32 v4, v1, 3, v4")
    p("v_mul_u32_u24 v4, 80, v4")
    p("v_and_b32 v5, 1, v0")
    p("v_lshl_add_u32 v4, v5, 5, v4")
    p("v_bfe_u32 v5, v0, 4, 1")
    p("v_lshl_add_u32 v4, v5, 4, v4")
    p("v_bfe_u32 v5, v0, 1, 1")
    p("v_lshl_add_u32 v4, v5, 3, v4")
    p(f"v_add_u32 v{L+3}, s68, v4")
    att_setup()
    fl1_addr()
    p("s_cmp_eq_u32 s4, 0")
    p("s_cbranch_scc0 L_noEf")
    p("s_lshl_b32 s69, s35, 10")
    p("s_lshl_b32 s70, s34, 6")
    p("s_add_u32 s69, s69, s70")
    p(f"s_add_u32 s69, s69, {FLE}")
    p("s_waitcnt vmcnt(0)")
    publish(p, 69)
    p.label("L_noEf")
    mk("pub", st1)
    poll(p, 6, 48)
    tr("p1")
    att_start(st1)

    p.label("L_SCHED")
    assert st_.n == st1.n or not STAMP
    ADP = OPT["adp"]; T0 = OPT["t0"]
    def ldT(t):
        b = TB[t & 1]; o = (t & 3) * 1024
        p(f"buffer_load_dwordx4 {vr(b,4)}, v3, s[12:15], s47 offen offset:{o} sc1")
        p(f"buffer_load_dwordx4 {vr(b+4,4)}, v3, s[12:15], s64 offen offset:{o} sc1")
        p(f"buffer_load_dwordx4 {vr(b+8,4)}, v3, s[12:15], s65 offen offset:{o} sc1")
        if (t & 3) == 3:
            p("s_add_u32 s47, s47, 4096"); p("s_add_u32 s64, s64, 4096"); p("s_add_u32 s65, s65, 4096")
    def trip(q):
        for it in range(2):
            i = 2 * q + it; b = it; nb = 1 - it
            t = i - 2 * T0 if q >= T0 else None
            for c in range(2):
                s = S[c]; sn = S[1 - c]
                e = lambda k: p(f"v_exp_f32 v{s+k}, v{s+k}")
                e(0); e(1)
                pv = V[b] if c else V[nb]
                p(f"v_smfmac_f32_32x32x32_bf16 {vr(O[1-c],16)}, {vr(pv+4,4)}, {vr(sn+8,8)}, v{IDX}")
                if c == 0:
                    if i + 1 < 32: rdV(nb, i + 1)
                else: p("s_waitcnt lgkmcnt(0)")
                e(2); e(3); e(4)
                kk = K[b] if c == 0 else K[nb]
                if not (i == 31 and c == 1):
                    p(f"v_mfma_f32_32x32x16_bf16 {vr(sn,16)}, {vr(kk,4)}, {vr(Q[1-c],4)}, 0")
                if c == 0 and i + 2 < 32: rdK(b, i + 2)
                if ADP and q < 15 and c == 1:
                    if it == 0:
                        p("s_mov_b64 exec, 1")
                        p(f"ds_inc_u32 v1, v{IDX}")
                        p(f"ds_inc_u32 v1, v{IDX} offset:8")
                        p("s_mov_b64 exec, -1")
                    else: p("v_readfirstlane_b32 s75, v6")
                e(5); e(6); e(7); e(8); e(9)
                p(f"v_smfmac_f32_32x32x32_bf16 {vr(O[c],16)}, {vr(V[b],4)}, {vr(s,8)}, v{IDX}")
                if t is not None and c == 0: p(f"s_waitcnt vmcnt({3 if t < 15 else 0})")
                if ADP and q < 15 and c == 1:
                    if it == 0: p("ds_read_b32 v6, v1 offset:4")
                    else:
                        n_ = uid()
                        p(f"s_cmp_lt_u32 s75, {q + 1}")
                        p("s_setprio 0")
                        p(f"s_cbranch_scc1 Lpr{n_}")
                        p("s_setprio 1")
                        p.label(f"Lpr{n_}")
                e(10); e(11); e(12)
                if t is not None:
                    p(f"v_mfma_f32_32x32x16_bf16 {vr(ACA[c],16)}, {vr(TB[t & 1],4)}, {vr(TB[t & 1]+4+4*c,4)}, {vr(ACA[c],16) if t else 0}")
                    if c == 1 and t + 2 < 16: ldT(t + 2)
                e(13); e(14); e(15)
    def check_or_poll(soff, fr, dontcare=None, redo=None):
        n = uid()
        p("s_waitcnt vmcnt(0)")
        p(f"v_cmp_eq_u32 s[78:79], s32, v{fr}")
        p(f"v_cmp_eq_u32 vcc, s33, v{fr+1}")
        p("s_and_b64 s[78:79], s[78:79], vcc")
        if dontcare is not None: p(f"s_or_b64 s[78:79], s[78:79], s[{dontcare}:{dontcare+1}]")
        p("s_cmp_eq_u64 s[78:79], -1")
        p(f"s_cbranch_scc1 Lchk{n}")
        redo()
        poll(p, 6, soff, dontcare, fr=fr)
        p.label(f"Lchk{n}")
    def KVa():
        p("s_lshl_b32 s68, s5, 3")
        p(f"s_add_u32 s68, s68, {LF + 20}")
        p("s_waitcnt vmcnt(0)")
        lds_count(None)
    def KVb():
        p("s_lshl_b32 s68, s5, 3")
        p(f"s_add_u32 s68, s68, {LF + 20}")
        p("v_mov_b32 v251, s68")
        lds_spin(p, 251, 4)
    def PL():
        p("buffer_load_dwordx4 v[232:235], v228, s[20:23], s64 offen")
        p("s_bitcmp1_b32 s4, 0")
        p("s_cbranch_scc1 L_nowo1")
        for j in range(8):
            p(f"buffer_load_ushort v{236+j}, v{229 + (j >> 2)}, s[16:19], s65 offen offset:{(j & 3)*1024}")
        p.label("L_nowo1")
    def PS():
        p("s_waitcnt vmcnt(0)")
        p("s_lshl_b32 s68, s41, 10")
        p(f"s_add_u32 s68, s68, {CF}")
        p("buffer_store_dwordx4 v[232:235], v3, s[12:15], s68 offen sc1")
        p("s_bitcmp1_b32 s4, 0")
        p("s_cbranch_scc1 L_nowo2")
        for i in range(4): p(f"v_lshl_or_b32 v{244+i}, v{237+2*i}, 16, v{236+2*i}")
        p("s_lshl_b32 s68, s41, 9")
        p(f"s_add_u32 s68, s68, {WOF}")
        p("buffer_store_dwordx4 v[244:247], v3, s[12:15], s68 offen sc1")
        p.label("L_nowo2")
    def PSb():
        p(f"s_add_u32 s40, s40, {FL2 - FL1}")
        p("s_waitcnt vmcnt(0)")
        publish(p, 40)
    def W5a():
        p("v_and_b32 v6, 15, v0")
        p("v_bfe_u32 v252, v0, 4, 1")
        p("v_lshl_add_u32 v6, v252, 6, v6")
        p("v_lshlrev_b32 v6, 6, v6")
        p("s_lshl_b32 s41, s39, 13")
        p("s_lshl_b32 s68, s4, 10")
        p("s_add_u32 s41, s41, s68")
        p(f"s_add_u32 s41, s41, {FL2}")
        p("buffer_load_dwordx2 v[252:253], v6, s[12:15], s41 offen sc1")
    def W5b():
        check_or_poll(41, 252, redo=W5a)
        p("s_lshl_b32 s68, s39, 16")
        p("s_lshl_b32 s69, s4, 13")
        p("s_add_u32 s68, s68, s69")
        p(f"s_add_u32 s68, s68, {WOF}")
        for jn in range(2):
            for hh in range(8):
                p(f"buffer_load_dwordx4 {vr(WOR + 8*hh + 4*jn, 4)}, v3, s[12:15], s68 offen offset:{(hh & 3)*1024} sc1")
                if hh == 3: p("s_add_u32 s68, s68, 4096")
            if jn == 0: p(f"s_add_u32 s68, s68, {32768 - 4096}")
    def E3a():
        p("v_min_u32 v6, 15, v0")
        p("v_cmp_le_u32 s[42:43], s34, v6")
        p("v_lshlrev_b32 v6, 6, v6")
        p("s_lshl_b32 s48, s35, 10")
        p(f"s_add_u32 s48, s48, {FLE}")
        p("buffer_load_dwordx2 v[4:5], v6, s[12:15], s48 offen sc1")
    def E3b():
        check_or_poll(48, 4, 42, redo=E3a)
        p("v_and_b32 v6, 31, v0")
        p("s_lshl_b32 s68, s35, 8")
        p("v_lshl_add_u32 v6, v6, 3, s68")
        p(f"s_mov_b32 s68, {EE}")
        for c in range(15):
            p(f"s_cmp_le_u32 s34, {c}")
            p("s_cbranch_scc1 L_E3bx")
            p(f"buffer_load_dwordx2 {vr(EB+2*c,2)}, v6, s[12:15], s68 offen sc1")
            p("s_add_u32 s68, s68, 4096")
        p.label("L_E3bx")
    def E4():
        p("s_waitcnt vmcnt(0)")
        p("v_mov_b32 v240, 0"); p("v_mov_b32 v241, 0")
        for c in range(15):
            p(f"s_cmp_le_u32 s34, {c}")
            p("s_cbranch_scc1 L_hin")
            p(f"v_fmac_f32 v{EB+2*c}, v{L+6}, v240")
            p(f"v_fmac_f32 v{EB+2*c+1}, v{L+6}, v241")
            p(f"v_fma_f32 v242, -v{L+7}, v241, v{EB+2*c}")
            p(f"v_fma_f32 v241, v{L+7}, v240, v{EB+2*c+1}")
            p("v_mov_b32 v240, v242")
        p.label("L_hin")
        p(f"v_fmac_f32 v{CAR}, v{L+4}, v240")
        p(f"v_fmac_f32 v{CAR+1}, v{L+4}, v241")
        p(f"v_fma_f32 v{CAR}, -v{L+5}, v241, v{CAR}")
        p(f"v_fmac_f32 v{CAR+1}, v{L+5}, v240")
        pr, pi = CAR, CAR + 1
        PK = 234
        for r in range(16):
            p(f"v_fmac_f32 v{RE+r}, v{L}, v{pr}")
            p(f"v_fmac_f32 v{IM+r}, v{L}, v{pi}")
            p(f"v_fma_f32 v{RE+r}, -v{L+1}, v{pi}, v{RE+r}")
            p(f"v_fmac_f32 v{IM+r}, v{L+1}, v{pr}")
            pr, pi = RE + r, IM + r
            if r & 1:
                p(f"v_cvt_pk_bf16_f32 v{PK + (r >> 1)}, v{RE+r-1}, v{RE+r}")
                p(f"v_cvt_pk_bf16_f32 v{PK + 8 + (r >> 1)}, -v{IM+r-1}, -v{IM+r}")
        p("s_lshl_b32 s68, s7, 16")
        p("s_lshl_b32 s69, s35, 11")
        p("s_add_u32 s68, s68, s69")
        p(f"s_add_u32 s68, s68, {HF}")
        p("s_add_u32 s69, s68, 0x8000")
        for pl in range(2):
            for q in range(2):
                p(f"ds_write_b128 v{L+2}, {vr(PK + 8*pl + 4*q, 4)} offset:{q*16}")
            for kl in range(2):
                for e_ in range(2):
                    p(f"ds_read_b64_tr_b16 {vr(210 + 8*pl + 4*kl + 2*e_, 2)}, v{L+3} offset:{(16*kl + 4*e_)*80}")
        for pl in range(2):
            p(f"s_waitcnt lgkmcnt({6 if pl == 0 else 0})")
            for kl in range(2):
                p(f"buffer_store_dwordx4 {vr(210 + 8*pl + 4*kl, 4)}, v3, s[12:15], s{68+pl} offen offset:{kl*1024} sc1")
    def E4b():
        p("s_lshl_b32 s68, s7, 10")
        p("s_lshl_b32 s69, s35, 6")
        p("s_add_u32 s68, s68, s69")
        p(f"s_add_u32 s68, s68, {FLH}")
        p("s_waitcnt vmcnt(0)")
        publish(p, 68)
    def E5a():
        p("v_and_b32 v4, 7, v0")
        p("v_and_b32 v5, 4, v4")
        p("v_and_b32 v4, 3, v4")
        p("v_lshl_add_u32 v4, v5, 1, v4")
        p("v_and_b32 v5, 3, v0")
        p("v_add_u32 v4, v4, v5")
        p("s_lshr_b32 s68, s49, 5")
        p("v_add_u32 v4, s68, v4")
        p("s_lshl_b32 s68, s4, 4")
        p("s_bfe_u32 s69, s49, 0x20003")
        p("s_lshl_b32 s69, s69, 2")
        p("s_add_u32 s68, s68, s69")
        p("s_bfe_u32 s69, s49, 0x20001")
        p("s_add_u32 s68, s68, s69")
        p("v_lshl_add_u32 v4, v4, 6, s68")
        p("s_lshl_b32 s68, s49, 4")
        p(f"s_add_u32 s68, s68, {(FLH - FL1) // 64}")
        p("v_cmp_gt_u32 vcc, 16, v0")
        p("v_add_u32 v5, s68, v0")
        p(f"s_mov_b32 s48, {FL1}")
        p("v_cndmask_b32 v6, v4, v5, vcc")
        p("v_lshlrev_b32 v6, 6, v6")
        p("buffer_load_dwordx2 v[4:5], v6, s[12:15], s48 offen sc1")
    def E5b():
        check_or_poll(48, 4, redo=E5a)
        p("s_lshl_b32 s69, s4, 14")
        p("s_lshl_b32 s47, s49, 16")
        p("s_add_u32 s47, s47, s69")
        p(f"s_add_u32 s47, s47, {HF}")
        p("s_lshl_b32 s64, s39, 17")
        p("s_add_u32 s64, s64, s69")
        p(f"s_add_u32 s64, s64, {CF}")
        p("s_add_u32 s65, s64, 0x10000")
        p("s_and_b32 s68, s4, 1")
        p("s_lshl_b32 s68, s68, 3")
        p("s_lshl_b32 s40, s49, 5")
        p("s_add_u32 s40, s40, s68")
        p("s_lshr_b32 s68, s4, 1")
        p("s_lshl_b32 s68, s68, 5")
        p("s_lshl_b32 s41, s39, 6")
        p("s_add_u32 s41, s41, s68")
        p("v_lshrrev_b32 v4, 5, v0")
        p("v_and_b32 v5, 31, v0")
        p("s_lshl_b32 s68, s49, 9")
        p(f"s_add_u32 s68, s68, {GG}")
        p("v_lshlrev_b32 v6, 8, v4")
        for q in range(4):
            p(f"buffer_load_dwordx4 {vr(G16+4*q,4)}, v6, s[12:15], s68 offen offset:{(q & 1)*16 + (q >> 1)*128} sc1")
        srd(p, 24, 56, 1024)
        p("v_lshlrev_b32 v6, 1, v5")
        p("s_lshl_b32 s68, s41, 1")
        p(f"buffer_load_ushort v{D_}, v6, s[24:27], s68 offen")
        p("v_lshl_add_u32 v6, v4, 14, v6")
        p("s_lshl_b32 s69, s40, 10")
        p("s_add_u32 s68, s68, s69")
        for r in range(8):
            if r == 4: p("s_add_u32 s68, s68, 4096")
            p(f"buffer_load_ushort v{X_+r}, v6, s[8:11], s68 offen offset:{(r & 3)*1024}")
        p("v_bfe_u32 v4, v5, 2, 1")
        p("v_lshlrev_b32 v4, 4, v4")
        p("v_and_or_b32 v4, v5, 3, v4")
        p("v_lshrrev_b32 v5, 3, v5")
        p("v_lshl_add_u32 v4, v5, 2, v4")
        p("v_lshrrev_b32 v5, 3, v4")
        p("v_and_b32 v4, 7, v4")
        p("v_lshlrev_b32 v4, 2, v4")
        p("v_lshl_add_u32 v4, v5, 7, v4")
        p("s_lshl_b32 s68, s46, 9")
        p(f"s_add_u32 s68, s68, {GG}")
        p(f"buffer_load_dword v{OG}, v4, s[12:15], s68 offen sc1")
        ldT(0); ldT(1)
    fns = dict(PL=PL, PS=PS, PSb=PSb, KVa=KVa, KVb=KVb, W5a=W5a, W5b=W5b, E3a=E3a, E3b=E3b, E4=E4, E4b=E4b, E5a=E5a, E5b=E5b)
    for q in range(16):
        for ev in OPT["ev"].get(q, "").split():
            name, _, grp = ev.partition(":")
            if name in ("E3a", "E3b", "E4", "E4b"): grp = "1"
            if OPT.get("trev"): tr(name)
            if grp == "": fns[name]()
            else:
                lab = f"L_no{name}{grp}"
                p(f"s_cmp_eq_u32 s5, {grp}")
                p(f"s_cbranch_scc0 {lab}")
                fns[name]()
                p.label(lab)
            if OPT.get("trev"): tr(name + "x")
        trip(q); tr("trip")
    p(f"v_smfmac_f32_32x32x32_bf16 {vr(O[1],16)}, {vr(V[1]+4,4)}, {vr(S[1]+8,8)}, v{IDX}")
    mk("loop")
    AV = X_; OA = 8; ACB = [40, 56]; R = O[0]
    p("s_mul_i32 s68, s3, 2304")
    p(f"s_add_u32 s68, s68, {SCR}")
    p("v_add_u32 v4, s68, v3")
    p("v_lshl_add_u32 v5, v0, 2, s68")
    p("s_xor_b32 s68, s3, 4")
    p("s_mul_i32 s68, s68, 2304")
    p(f"s_add_u32 s68, s68, {SCR}")
    p("v_add_u32 v96, s68, v3")
    p("v_lshl_add_u32 v97, v0, 2, s68")
    p(f"v_sub_f32 v{OG}, 1.0, v{OG}")
    p("s_cmp_eq_u32 s5, 0")
    p("s_cbranch_scc0 L_red1")
    p(f"ds_write_b128 v4, {vr(O[1],4)}")
    p(f"ds_write_b128 v4, {vr(O[1]+4,4)} offset:1024")
    p(f"ds_write_b32 v5, v{O[1]+8} offset:2048")
    p("s_branch L_red2")
    p.label("L_red1")
    p(f"ds_write_b128 v4, {vr(O[0],4)}")
    p(f"ds_write_b128 v4, {vr(O[0]+4,4)} offset:1024")
    p(f"ds_write_b32 v5, v{O[0]+8} offset:2048")
    p("s_waitcnt lgkmcnt(0)")
    for i in range(9): p(f"v_mov_b32 v{O[0]+i}, v{O[1]+i}")
    p.label("L_red2")
    p(f"v_cvt_pk_bf16_f32 v{OG}, v{OG}, v{OG}")
    p("s_lshl_b32 s70, s46, 15")
    p("s_lshl_b32 s71, s36, 10")
    p("s_add_u32 s70, s70, s71")
    p(f"s_add_u32 s70, s70, {OF}")
    p(f"v_and_b32 v{OG}, 0xffff0000, v{OG}")
    p(f"s_mov_b32 s68, {f2u(2.0**-40):#x}")
    p(f"s_mov_b32 s69, {f2u(2.0**40):#x}")
    p(f"s_mov_b32 s42, {f2u(2.0**120):#x}")
    p("s_waitcnt lgkmcnt(0)")
    p("s_barrier")
    tr("bar")
    p(f"ds_read_b128 v[12:15], v96")
    p(f"ds_read_b128 v[16:19], v96 offset:1024")
    p(f"ds_read_b32 v20, v97 offset:2048")
    p("s_waitcnt lgkmcnt(0)")
    for i in range(9): p(f"v_add_f32 v{R+i}, v{R+i}, v{12+i}")
    p(f"v_max3_f32 v6, |v{R}|, |v{R+1}|, |v{R+2}|")
    p(f"v_max3_f32 v6, v6, |v{R+3}|, |v{R+4}|")
    p(f"v_max3_f32 v6, v6, |v{R+5}|, |v{R+6}|")
    p(f"v_max_f32 v6, v6, |v{R+7}|")
    p(f"v_cmp_le_f32 s[78:79], s68, v{R+8}")
    p(f"v_cmp_ge_f32 s[80:81], s69, v{R+8}")
    p(f"v_cmp_ge_f32 vcc, s42, v6")
    p("s_and_b64 s[78:79], s[78:79], s[80:81]")
    p("s_and_b64 s[78:79], s[78:79], vcc")
    p("s_cmp_eq_u64 s[78:79], -1" if not OPT["fallback"] else "s_cmp_eq_u64 s[78:79], 1")
    p("s_cbranch_scc0 L_slow")
    p.label("L_fin")
    p(f"v_rcp_f32 v6, v{R+8}")
    p(f"v_mul_f32 v6, v{OG}, v6")
    for i in range(8): p(f"v_mul_f32 v{R+i}, v6, v{R+i}")
    for i in range(4): p(f"v_cvt_pk_bf16_f32 v{88+i}, v{R+2*i}, v{R+2*i+1}")
    for i in range(4): p(f"v_min_u32 v{88+i}, -2, v{88+i}")
    p(f"buffer_store_dwordx4 {vr(88,4)}, v3, s[12:15], s70 offen sc1")
    tr("ost")
    def loadO():
        for hh in range(8):
            p(f"buffer_load_dwordx4 {vr(OA+4*hh,4)}, v3, s[12:15], s{47 + (hh >> 2)} offen offset:{(hh & 3)*1024} sc1")
    for t in range(32 - 2 * T0, 16):
        p(f"s_waitcnt vmcnt({(4 if t < 34 - 2 * T0 else 3) if t < 15 else (1 if T0 == 8.5 else 0)})" if t + 1 < 16 or True else "")
        for c in range(2):
            p(f"v_mfma_f32_32x32x16_bf16 {vr(ACA[c],16)}, {vr(TB[t & 1],4)}, {vr(TB[t & 1]+4+4*c,4)}, {vr(ACA[c],16)}")
        if t + 2 < 16: ldT(t + 2)
    p("s_lshl_b32 s47, s49, 15")
    p("s_lshl_b32 s74, s4, 13")
    p("s_add_u32 s47, s47, s74")
    p(f"s_add_u32 s47, s47, {OF}")
    p("s_add_u32 s48, s47, 4096")
    p(f"v_lshlrev_b32 v{D_}, 16, v{D_}")
    for i in range(8):
        p(f"v_lshlrev_b32 v{X_+i}, 16, v{X_+i}")
        p(f"v_mul_f32 v{X_+i}, v{D_}, v{X_+i}")
    for i in range(4): p(f"v_cvt_pk_bf16_f32 v{40+i}, v{X_+2*i}, v{X_+2*i+1}")
    p("s_bitcmp1_b32 s4, 0")
    p("s_cselect_b64 vcc, -1, 0")
    for i in range(4):
        p(f"v_lshlrev_b32 v{X_+2*i}, 16, v{40+i}")
        p(f"v_and_b32 v{X_+2*i+1}, 0xffff0000, v{40+i}")
    for i in range(8): p(f"v_cndmask_b32 v{44+i}, v{G16+i}, v{G16+8+i}, vcc")
    for i in range(8): p(f"v_mul_f32 v{AV+i}, v{44+i}, v{X_+i}")
    loadO()
    for jn in range(2):
        for r in range(16):
            p(f"v_mul_f32 v{ACA[jn]+r}, v{G16+r}, v{ACA[jn]+r}")
    p("s_lshl_b32 s68, s3, 13")
    p("v_add_u32 v232, s68, v3")
    p("s_lshl_b32 s68, s5, 15")
    p("s_lshl_b32 s74, s4, 11")
    p("s_add_u32 s68, s68, s74")
    p("v_add_u32 v233, s68, v3")
    p("v_lshrrev_b32 v4, 5, v0")
    p("v_and_b32 v5, 31, v0")
    p("v_lshlrev_b32 v5, 2, v5")
    p("v_lshl_add_u32 v234, v4, 15, v5")
    p("v_add_u32 v235, 4096, v234")
    p("s_lshl_b32 s40, s40, 11")
    p("s_lshl_b32 s41, s41, 2")
    p("s_add_u32 s40, s40, s41")
    p("s_add_u32 s41, s40, 8192")
    srd(p, 28, 66, 2048*2048)
    mk("pre")
    p(f"s_mov_b32 s81, {SPIN}")
    p.label("L_opoll")
    for hh in range(8):
        p(f"s_waitcnt vmcnt({7-hh})")
        for jn in range(2):
            p(f"v_mfma_f32_32x32x16_bf16 {vr(ACB[jn],16)}, {vr(OA+4*hh,4)}, {vr(WOR+8*hh+4*jn,4)}, {vr(ACB[jn],16) if hh else vr(ACA[jn],16)}")
        if hh == 0:
            p(f"v_max3_u32 v4, v{OA}, v{OA+1}, v{OA+2}")
            p(f"v_max_u32 v4, v4, v{OA+3}")
        else:
            p(f"v_max3_u32 v4, v4, v{OA+4*hh}, v{OA+4*hh+1}")
            p(f"v_max3_u32 v4, v4, v{OA+4*hh+2}, v{OA+4*hh+3}")
    p("v_cmp_eq_u32 s[78:79], -1, v4")
    p("s_sub_u32 s81, s81, 1")
    p("s_cbranch_scc1 L_opollx")
    p("s_cmp_eq_u64 s[78:79], 0")
    p("s_cbranch_scc1 L_opollx")
    p(f"s_sleep {OPT.get('osleep', 1)}")
    loadO()
    p("s_branch L_opoll")
    p.label("L_opollx")
    tr("ook")
    for q in range(8):
        p(f"ds_write_b128 v232, {vr(40+4*q,4)} offset:{q*1024}")
    p("s_waitcnt lgkmcnt(0)")
    p("s_barrier")
    for k in range(4):
        p(f"ds_read_b128 {vr(72+8*k,4)}, v233 offset:{k*8192}")
        p(f"ds_read_b128 {vr(76+8*k,4)}, v233 offset:{k*8192+1024}")
    p("s_waitcnt lgkmcnt(4)")
    for i in range(8):
        p(f"v_add_f32 v{72+i}, v{72+i}, v{80+i}")
        p(f"v_add_f32 v{72+i}, v{72+i}, v{AV+i}")
    p("s_waitcnt lgkmcnt(0)")
    for i in range(8):
        p(f"v_add_f32 v{88+i}, v{88+i}, v{96+i}")
        p(f"v_add_f32 v{88+i}, v{72+i}, v{88+i}")
        p(f"buffer_store_dword v{88+i}, v{234 + ((i >> 1) & 1)}, s[28:31], s{40 if i < 4 else 41} offen offset:{(i & 1)*2048} {OPT.get('outsc', '')}")
    p("s_or_b32 s68, s2, s3")
    p("s_cmp_eq_u32 s68, 0")
    p("s_cbranch_scc0 L_noep")
    p(f"s_mov_b32 s68, {EPO}")
    p("v_mov_b32 v4, s32")
    p("s_mov_b64 exec, 1")
    p("buffer_store_dword v4, off, s[12:15], s68 sc1")
    p("s_mov_b64 exec, -1")
    p.label("L_noep")
    st_.end(12, 3, 8, 4)
    if TRACE:
        p("s_waitcnt vmcnt(0)"); tr("end")
        p("s_lshl_b32 s82, s2, 3"); p("s_add_u32 s82, s82, s3"); p("s_lshl_b32 s82, s82, 9"); p(f"s_add_u32 s82, s82, {STAMP_OFF}")
        p("v_lshlrev_b32 v4, 2, v0")
        p("buffer_store_dword v254, v4, s[12:15], s82 offen"); p("buffer_store_dword v255, v4, s[12:15], s82 offen offset:256")
        open("sites.txt", "w").write(repr({v: k for k, v in sites.items()}))
    p.label("L_end")
    p("s_endpgm")
    p.label("L_slow")
    p("v_lshrrev_b32 v4, 5, v0")
    p("v_and_b32 v5, 15, v0")
    p("v_lshlrev_b32 v5, 4, v5")
    p("v_lshl_add_u32 v5, v4, 8, v5")
    p(f"v_add_u32 v2, {VF}, v5")
    p(f"v_add_u32 v1, {KF}, v3")
    def gK(): p(f"buffer_load_dwordx4 {vr(K[0],4)}, v1, s[12:15], s73 offen sc1")
    def gV():
        p("s_mov_b64 exec, s[44:45]")
        for f in range(2): p(f"buffer_load_dwordx4 {vr(V[0]+4*f,4)}, v2, s[12:15], s73 offen offset:{512*f} sc1")
        p("s_mov_b64 exec, -1")
    p("s_lshl_b32 s68, s46, 10")
    p("s_add_u32 s68, s68, s76")
    p(f"buffer_load_dwordx4 {vr(Q[0],4)}, v3, s[12:15], s68 offen sc1")
    p("v_mov_b32 v6, 0xff800000")
    p("s_mov_b32 s73, s76")
    p("s_mov_b32 s72, 64")
    p.label("L_slow1")
    gK()
    p("s_add_u32 s73, s73, 1024")
    p("s_sub_u32 s72, s72, 1")
    p("s_waitcnt vmcnt(0)")
    p(f"v_mfma_f32_32x32x16_bf16 {vr(S[0],16)}, {vr(K[0],4)}, {vr(Q[0],4)}, 0")
    for i in range(8): p(f"v_max3_f32 v6, v6, v{S[0]+2*i}, v{S[0]+2*i+1}")
    p("s_cmp_lg_u32 s72, 0")
    p("s_cbranch_scc1 L_slow1")
    p("v_mov_b32 v4, v6")
    p("v_permlane32_swap_b32 v4, v6")
    p("v_max_f32 v6, v4, v6")
    for i in range(16): p(f"v_sub_f32 v{S[1]+i}, 0, v6")
    for i in range(16): p(f"v_mov_b32 v{R+i}, 0")
    p("s_mov_b32 s73, s76")
    p("s_mov_b32 s72, 64")
    p.label("L_slow2")
    gK(); gV()
    p("s_add_u32 s73, s73, 1024")
    p("s_sub_u32 s72, s72, 1")
    p("s_waitcnt vmcnt(0)")
    p(f"v_mfma_f32_32x32x16_bf16 {vr(S[0],16)}, {vr(K[0],4)}, {vr(Q[0],4)}, {vr(S[1],16)}")
    for i in range(16): p(f"v_exp_f32 v{S[0]+i}, v{S[0]+i}")
    p(f"v_smfmac_f32_32x32x32_bf16 {vr(R,16)}, {vr(V[0],4)}, {vr(S[0],8)}, v{IDX}")
    p(f"v_smfmac_f32_32x32x32_bf16 {vr(R,16)}, {vr(V[0]+4,4)}, {vr(S[0]+8,8)}, v{IDX}")
    p("s_cmp_lg_u32 s72, 0")
    p("s_cbranch_scc1 L_slow2")
    p("s_nop 11")
    p("s_branch L_fin")
    return p

if __name__ == "__main__":
    p = build()
    p.fix_hazards(verbose="-v" in sys.argv)
    for lab in (None, "L_G1", "L_slow"):
        for e in p.check_waits(lab): print(f"  [wait:{lab}] {e}")
    NAME = "gated_mix__ssm_conv_s5__softmax_full_mha__prompt_kernel"
    b, d = kernel_text(NAME, p, None)
    out = HEADER + f"; @launch grid=(256,1,1) block=(512,1,1) lds={LDS_BYTES}\n" + '.amdgcn_target "amdgcn-amd-amdhsa--gfx950"\n.text\n' + b + '.section .rodata,"a"\n' + d
    dst = [a for a in sys.argv[1:] if not a.startswith("-")]
    fn = dst[0] if dst else "gated_mix__ssm_conv_s5__softmax_full_mha__prompt.s"
    open(fn, "w").write(out)
    import subprocess
    sys.path.insert(0, "cdna_kernels")
    from cdna_launch import with_harness_metadata, address_register_problem
    open("h.s", "w").write(with_harness_metadata(out, NAME, 16, launch_lists=True))
    r = subprocess.run(["clang", "-x", "assembler", "-target", "amdgcn-amd-amdhsa", "-mcpu=gfx950", "h.s", "-o", "h.co"], capture_output=True, text=True)
    if r.returncode: print("ASSEMBLY FAILED", r.stderr[:3000])
    else:
        pr = address_register_problem("h.co", NAME, None)
        if pr: print("CHECK:", pr)
```

```python
import sys, os, math, struct
from common import *
from k_ssm import cmul, lam_compute
def f2u(x): return struct.unpack("<I", struct.pack("<f", x))[0]
QSCALE = 0.25 * math.log2(math.e)

FL1 = 0xDA0000
FLE = 0xDB0000
EPO = 0xDB8000
FLH = 0xDC0000
FL2 = 0xDD0000

WR = 49152
BR = 86016
SCR = 65536
EXC = SCR + 9216
P2 = 151552
LF = 161792
LDS_BYTES = 162048
SPIN = 400000

OPT = dict(fallback=False, rot=1, adp=1, psleep=6, pfirst=10,
           ev={1: "E3a", 2: "KVa PL:0 E3b", 3: "KVb", 4: "E4 PS:0", 5: "E4b PSb:0", 7: "W5a:0", 8: "W5b:0 E5a:0 W5a:1", 9: "E5b:0 W5b:1 E5a:1", 10: "E5b:1"}, t0=10)
OPT.update(eval(os.environ.get("OPT", "{}")))

def publish(p, soff, v=4):
    p(f"v_mov_b32 v{v}, s32"); p(f"v_mov_b32 v{v+1}, s33")
    p("s_mov_b64 exec, 1")
    p(f"buffer_store_dwordx2 v[{v}:{v+1}], off, s[12:15], s{soff} sc1")
    p("s_mov_b64 exec, -1")

_pc = [0]
def uid():
    _pc[0] += 1; return _pc[0]
def poll(p, vaddr, soff, dontcare=None, first=0, fr=4):
    n = uid()
    p(f"s_mov_b32 s81, {SPIN}")
    if first: p(f"s_sleep {first}")
    p.label(f"Lpoll{n}")
    p(f"buffer_load_dwordx2 v[{fr}:{fr+1}], v{vaddr}, s[12:15], s{soff} offen sc1")
    p("s_sub_u32 s81, s81, 1")
    p(f"s_cbranch_scc1 Lpollx{n}")
    p("s_waitcnt vmcnt(0)")
    p(f"v_cmp_eq_u32 s[78:79], s32, v{fr}")
    p(f"v_cmp_eq_u32 vcc, s33, v{fr+1}")
    p("s_and_b64 s[78:79], s[78:79], vcc")
    if dontcare is not None: p(f"s_or_b64 s[78:79], s[78:79], s[{dontcare}:{dontcare+1}]")
    p("s_cmp_eq_u64 s[78:79], -1")
    p(f"s_cbranch_scc1 Lpollx{n}")
    p(f"s_sleep {OPT['psleep']}")
    p(f"s_branch Lpoll{n}")
    p.label(f"Lpollx{n}")
    p("s_waitcnt vmcnt(0)")

def lds_spin(p, vaddr, want, t=6):
    n = uid()
    p(f"s_mov_b32 s81, {SPIN*8}")
    p.label(f"Lspin{n}")
    p(f"ds_read_b32 v{t}, v{vaddr}")
    p("s_sub_u32 s81, s81, 1")
    p(f"s_cbranch_scc1 Lspinx{n}")
    p("s_waitcnt lgkmcnt(0)")
    p(f"v_cmp_ne_u32 s[78:79], {want}, v{t}")
    p("s_cmp_eq_u64 s[78:79], 0")
    p(f"s_cbranch_scc1 Lspinx{n}")
    p("s_sleep 1")
    p(f"s_branch Lspin{n}")
    p.label(f"Lspinx{n}")
    p("s_waitcnt lgkmcnt(0)")

def build():
    p = Prog()
    st_ = Stamps(p, 0)
    MK = OPT.get("marks", ["pro", "t1", "pub", "att", "loop", "pre"])
    TRACE = OPT.get("trace")
    sites = {}
    def tr(name):
        if not TRACE: return
        i = sites.setdefault(name, len(sites) + 1)
        p("s_memtime s[100:101]"); p("s_waitcnt lgkmcnt(0)")
        p("s_mov_b64 exec, s[96:97]"); p("v_mov_b32 v254, s100"); p(f"v_mov_b32 v255, {i}"); p("s_mov_b64 exec, -1")
        p("s_lshl_b64 s[96:97], s[96:97], 1")
    def mk(name, st=None):
        if name in MK: (st or st_).mark()
        tr(name)
    p("s_cmp_ge_u32 s2, 256")
    p("s_cbranch_scc1 L_end")
    st_.start()
    if TRACE:
        p("s_mov_b64 s[96:97], 1"); p("v_mov_b32 v254, 0"); p("v_mov_b32 v255, 0"); tr("start")
    p("s_load_dwordx16 s[40:55], s[0:1], 0")
    p(f"s_load_dwordx16 s[56:71], s[0:1], {A_DSKIP}")
    p("v_lshrrev_b32 v1, 6, v0")
    p("v_and_b32 v0, 63, v0")
    p("s_and_b32 s72, s2, 7")
    p("v_readfirstlane_b32 s3, v1")
    p("s_lshr_b32 s73, s2, 3")
    p("s_lshr_b32 s74, s72, 1")
    p("s_lshl_b32 s74, s74, 2")
    p("s_and_b32 s75, s73, 3")
    p("s_add_u32 s34, s74, s75")
    p("s_and_b32 s74, s72, 1")
    p("s_lshl_b32 s74, s74, 3")
    p("s_lshr_b32 s39, s73, 2")
    p("s_add_u32 s35, s74, s39")
    p("s_lshl_b32 s74, s72, 2")
    p("s_add_u32 s38, s74, s75")
    p("s_lshr_b32 s75, s73, 3")
    p("s_add_u32 s36, s74, s75")
    p("s_and_b32 s37, s73, 7")
    p("s_and_b32 s4, s3, 3")
    p("s_lshr_b32 s5, s3, 2")
    p("v_lshrrev_b32 v1, 5, v0")
    p("v_and_b32 v2, 31, v0")
    p("v_lshlrev_b32 v3, 4, v0")
    p("s_mul_i32 s6, s4, 12288")
    p("s_lshl_b32 s7, s34, 2")
    p("s_add_u32 s7, s7, s4")
    p("s_cmp_eq_u32 s5, 0")
    p("s_cbranch_scc0 L_G1")

    S = [8, 24]; O = [40, 56]; Q = [72, 76]; K = [80, 84]; V = [88, 96]; IDX = 7; VA = 2; KA_ = 250
    WOR = 104; ACA = [168, 184]; TB = [200, 212]; G16 = 224; X_ = 240; D_ = 248; OG = 249
    RE = 168; IM = 184; L = 200; CAR = 208; EB = 210
    def att_setup():
        p("s_lshl_b32 s69, s37, 3")
        p("s_lshl_b32 s68, s4, 1")
        p("s_add_u32 s69, s69, s68")
        p("s_add_u32 s46, s69, s5")
        p("s_lshl_b32 s76, s36, 16")
        p("s_lshl_b32 s77, s69, 10")
        p("s_add_u32 s77, s77, s76")
        p(f"s_mul_i32 s72, s5, {BR}")
        p("v_lshrrev_b32 v4, 5, v0")
        p("v_and_b32 v5, 15, v0")
        p("v_lshlrev_b32 v5, 4, v5")
        p("v_lshl_add_u32 v5, v4, 8, v5")
        p(f"v_add_u32 v{VA}, s72, v5")
        p(f"v_add_u32 v{KA_}, s72, v3")
        p("s_lshl_b32 s68, s4, 4")
        p("s_lshl_b32 s69, s5, 2")
        p("s_add_u32 s68, s68, s69")
        p(f"s_add_u32 s68, s68, {LF + 128}")
        p("v_mov_b32 v1, s68")
        p("s_mov_b32 s74, 0")
        p("v_and_b32 v4, 27, v0")
        p("v_mov_b32 v5, 0x3f803f80")
        p("v_cmp_eq_u32 vcc, 16, v4")
        p("s_mov_b32 s44, 0xffff"); p("s_mov_b32 s45, 0xffff")
        p("v_cndmask_b32 v4, 0, v5, vcc")
        for i in range(16): p(f"v_mov_b32 v{V[0]+i}, v4")
        p(f"v_mov_b32 v{IDX}, 0xdddddddd")
        for i in range(32): p(f"v_mov_b32 v{O[0]+i}, 0")
        for i in range(8, 16): p(f"v_mov_b32 v{S[1]+i}, 0")
        p("s_lshl_b32 s49, s38, 1")
        p("s_add_u32 s49, s49, s5")
    def fl1_addr():
        p("s_sub_u32 s69, s46, s5")
        p("s_lshl_b32 s68, s5, 5")
        p("v_add_u32 v6, s68, v0")
        p("v_and_b32 v4, 1, v0")
        p("v_add_u32 v4, s69, v4")
        p("v_cmp_lt_u32 vcc, 31, v0")
        p("s_lshr_b32 s68, s36, 1")
        p("s_lshl_b32 s68, s68, 6")
        p("v_cndmask_b32 v6, v6, v4, vcc")
        p("v_add_u32 v6, s68, v6")
        p("v_subrev_u32 v4, 34, v0")
        p("v_bfe_u32 v5, v4, 2, 2")
        p("v_mul_u32_u24 v5, 5, v5")
        p("v_and_b32 v5, 9, v5")
        p("s_and_b32 s68, s46, 3")
        p("s_lshl_b32 s68, s68, 1")
        p("v_add_u32 v5, s68, v5")
        p("v_and_b32 v4, 3, v4")
        p("s_and_b32 s68, s46, 0x3c")
        p("v_add_u32 v4, s68, v4")
        p("v_cmp_lt_u32 vcc, 33, v0")
        p("v_lshl_add_u32 v4, v5, 6, v4")
        p(f"s_mov_b32 s48, {FL1}")
        p("v_cndmask_b32 v6, v6, v4, vcc")
        p("v_lshlrev_b32 v6, 6, v6")
    def rdK(b, blk): p(f"ds_read_b128 {vr(K[b],4)}, v{KA_} offset:{blk*2048}")
    def rdV(b, blk):
        p("s_mov_b64 exec, s[44:45]")
        for f in range(2): p(f"ds_read_b128 {vr(V[b]+4*f,4)}, v{VA} offset:{blk*2048 + 1024 + 512*f}")
        p("s_mov_b64 exec, -1")
    def lds_count(word):
        p(f"v_mov_b32 v6, s68" if word is None else f"v_mov_b32 v6, {word}")
        p("s_mov_b64 exec, 1")
        p(f"ds_inc_u32 v6, v{IDX}")
        p("s_mov_b64 exec, -1")
    NC0 = OPT.get("nc0", 1)
    def kv_dma(chunks):
        for c in chunks:
            for u in range(2):
                p(f"s_add_u32 s70, s62, {8*c + u}")
                p("s_and_b32 s70, s70, 31")
                p("s_lshl_b32 s70, s70, 10")
                p("s_add_u32 s70, s70, s73")
                p(f"s_add_u32 m0, s63, {(8*c + u)*2048}")
                p(f"s_add_u32 s71, s70, {VF - KF - 1024}")
                p("buffer_load_dwordx4 v3, s[12:15], s70 offen sc1 lds")
                p("buffer_load_dwordx4 v3, s[12:15], s71 offen offset:1024 sc1 lds")
    def att_start(st):
        for c in range(2):
            p(f"buffer_load_dwordx4 {vr(Q[c],4)}, v3, s[12:15], s77 offen offset:{c*1024} sc1")
        p("s_lshl_b32 s73, s5, 15")
        p("s_add_u32 s73, s73, s76")
        p(f"s_add_u32 s73, s73, {KF}")
        p("s_lshl_b32 s68, s37, 2")
        p("s_lshl_b32 s69, s4, 1")
        p("s_add_u32 s68, s68, s69")
        p("s_lshl_b32 s69, s4, 12")
        p("s_add_u32 s69, s69, s72")
        p("s_mov_b32 s62, s68"); p("s_mov_b32 s63, s69")
        kv_dma(range(NC0))
        p("s_lshl_b32 s68, s5, 3")
        p(f"s_add_u32 s68, s68, {LF + 16}")
        p(f"s_waitcnt vmcnt({4 * (NC0 - 1)})")
        lds_count(None)
        p("v_mov_b32 v5, s68")
        lds_spin(p, 5, 4)
        rdK(0, 0); rdV(0, 0); rdK(1, 1)
        p("s_waitcnt lgkmcnt(0)")
        p(f"v_mfma_f32_32x32x16_bf16 {vr(S[0],16)}, {vr(K[0],4)}, {vr(Q[0],4)}, 0")
        mk("att", st)
        kv_dma(range(NC0, 4))
        p("s_nop 7")

    vm = VM(p)
    XA = 8; WA = 12
    p("s_lshl_b32 s72, s34, 7")
    p("s_and_b32 s73, s35, 7")
    p("s_lshl_b32 s73, s73, 4")
    p("s_add_u32 s72, s72, s73")
    p("s_and_b32 s73, s35, 8")
    p("s_add_u32 s72, s72, s73")
    p("s_lshl_b32 s73, s4, 1")
    p("s_add_u32 s72, s72, s73")
    p("v_add_u32 v200, s72, v1")
    p("v_lshlrev_b32 v201, 5, v2")
    p("v_lshl_add_u32 v202, v200, 10, v201")
    p("v_lshlrev_b32 v228, 10, v2")
    p("v_lshl_add_u32 v228, v1, 4, v228")
    p("v_lshlrev_b32 v229, 1, v2")
    p("v_lshl_add_u32 v229, v1, 12, v229")
    p("v_add_u32 v230, 8192, v229")
    p("s_lshl_b32 s72, s35, 15")
    p("s_lshl_b32 s73, s7, 5")
    p("s_and_b32 s73, s73, 1023")
    p("s_add_u32 s72, s72, s73")
    p("s_lshr_b32 s73, s7, 1")
    p("s_lshl_b32 s73, s73, 14")
    p("s_lshl_b32 s74, s35, 6")
    p("s_add_u32 s73, s73, s74")
    p("s_waitcnt lgkmcnt(0)")
    srd(p, 8, 40, 2048*1024)
    srd(p, 12, 70, WS_USED)
    srd(p, 24, 64, 1024)
    p("s_cmp_lt_u32 s34, 8")
    p("s_cselect_b32 s20, s50, s52")
    p("s_cselect_b32 s21, s51, s53")
    p(f"s_mov_b32 s22, {512*1024}")
    p("s_mov_b32 s23, 0x00020000")
    srd(p, 16, 62, 512*1024)
    p(f"s_mov_b32 s68, {EPO}")
    vm.issue("buffer_load_dword v203, off, s[12:15], s68", "g")
    vm.issue("buffer_load_dwordx4 v[204:207], v202, s[8:11], 0 offen", "g")
    vm.issue("buffer_load_dwordx4 v[208:211], v202, s[8:11], 0 offen offset:16", "g")
    vm.issue("buffer_load_dwordx4 v[212:215], v201, s[24:27], 0 offen", "g")
    vm.issue("buffer_load_dwordx4 v[216:219], v201, s[24:27], 0 offen offset:16", "g")
    p("s_mov_b32 s64, s72"); p("s_mov_b32 s65, s73")
    p("s_cmp_eq_u32 s4, 1")
    p("s_cselect_b32 s28, s44, s42"); p("s_cselect_b32 s29, s45, s43")
    p("s_cmp_eq_u32 s4, 2")
    p("s_cselect_b32 s28, s54, s28"); p("s_cselect_b32 s29, s55, s29")
    p("s_movk_i32 s30, 1024")
    p("s_mov_b32 s31, 0x00020000")
    p("s_lshl_b32 s68, s35, 6")
    vm.issue("buffer_load_ushort v231, off, s[28:31], s68", "g")
    if OPT.get("bwarm", 0):
        p("s_cmp_lt_u32 s4, 2")
        p("s_cselect_b32 s28, s46, s48")
        p("s_cselect_b32 s29, s47, s49")
        p(f"s_mov_b32 s30, {512*1024}")
        p("s_mov_b32 s31, 0x00020000")
        p("s_lshl_b32 s68, s35, 3")
        p("s_and_b32 s69, s34, 3")
        p("s_lshl_b32 s69, s69, 1")
        p("s_add_u32 s68, s68, s69")
        p("s_and_b32 s69, s4, 1")
        p("s_add_u32 s68, s68, s69")
        p("s_lshl_b32 s68, s68, 12")
        if OPT.get("bdelay"): p(f"s_sleep {OPT['bdelay']}")
        for q in range(4):
            vm.issue(f"buffer_load_dwordx4 v[232:235], v3, s[28:31], s68 offen offset:{q*1024}", "g")
    p("v_lshrrev_b32 v18, 1, v2")
    p("v_and_b32 v18, 7, v18")
    p("v_lshl_add_u32 v19, v2, 7, s6")
    for ks in range(4):
        p(f"v_add_u32 v20, {2*ks}, v1")
        p("v_xor_b32 v20, v20, v18")
        p(f"v_lshl_add_u32 v{XA+ks}, v20, 4, v19")
    p("v_bfe_u32 v18, v0, 2, 2")
    p("v_lshl_add_u32 v18, v1, 3, v18")
    p("v_mul_u32_u24 v18, 192, v18")
    p("v_bfe_u32 v19, v0, 4, 1")
    p("v_lshl_add_u32 v18, v19, 5, v18")
    p("v_and_b32 v19, 3, v0")
    p("v_lshl_add_u32 v18, v19, 3, v18")
    p(f"v_add_u32 v{WA}, {WR}, v18")
    p("v_and_b32 v13, 0x33, v0")
    p("v_bfe_u32 v19, v0, 2, 1")
    p("v_lshl_or_b32 v13, v19, 3, v13")
    p("v_bfe_u32 v19, v0, 3, 1")
    p("v_lshl_or_b32 v13, v19, 2, v13")
    p("v_lshlrev_b32 v13, 4, v13")
    p(f"v_add_u32 v13, {KF}, v13")
    p("v_bfe_u32 v14, v0, 4, 1")
    p("v_lshlrev_b32 v14, 16, v14")
    p("v_lshl_add_u32 v14, v1, 8, v14")
    p("v_and_b32 v20, 15, v0")
    p("v_lshl_add_u32 v14, v20, 4, v14")
    p(f"v_add_u32 v14, {VF}, v14")
    p("s_lshl_b32 s42, s7, 10")
    p("s_lshl_b32 s43, s35, 17")
    p("s_add_u32 s42, s42, s43")
    p("s_add_u32 s43, s42, 0x10000")
    p("s_lshl_b32 s41, s35, 6")
    p("s_add_u32 s41, s41, s7")
    att_setup()
    ACC = [104, 120, 136]; FR = [152, 168, 184]
    def rd0(kk):
        b = FR[kk % 3]; st = kk >> 2; ks = kk & 3; sl = st % 3
        p(f"ds_read_b128 {vr(b,4)}, v{XA+ks} offset:{sl * 4096}")
        for T in range(3):
            for e in range(2):
                p(f"ds_read_b64_tr_b16 {vr(b+4+4*T+2*e,2)}, v{WA} offset:{sl*12288 + ks*3072 + e*768 + T*64}")
    def mm0(kk):
        b = FR[kk % 3]
        c = [vr(a, 16) if kk else "0" for a in ACC]
        p(f"v_mfma_f32_32x32x16_bf16 {vr(ACC[0],16)}, {vr(b+4,4)}, {vr(b,4)}, {c[0]}")
        p(f"v_mfma_f32_32x32x16_bf16 {vr(ACC[1],16)}, {vr(b+8,4)}, {vr(b,4)}, {c[1]}")
        p(f"v_mfma_f32_32x32x16_bf16 {vr(ACC[2],16)}, {vr(b,4)}, {vr(b+12,4)}, {c[2]}")
    def side_jobs():
        vm.drain()
        p("v_readfirstlane_b32 s32, v203")
        p("v_mov_b32 v220, 0")
        for i in range(8):
            p(f"v_dot2_f32_bf16 v220, v{204+i}, v{212+i}, v220")
        p("s_mul_i32 s32, s32, 0x9E3779B1")
        p("s_add_u32 s32, s32, 0x7F4A7C15")
        p("s_xor_b32 s33, s32, 0x5BD1E995")
        for i in range(4): p(f"v_mov_b32 v{224+i}, -1")
        p("s_lshl_b32 s68, s46, 15")
        p("s_lshl_b32 s69, s36, 10")
        p("s_add_u32 s68, s68, s69")
        p(f"s_add_u32 s68, s68, {OF}")
        p("s_add_u32 s69, s68, 0x8000")
        p("buffer_store_dwordx4 v[224:227], v3, s[12:15], s68 offen sc1")
        p("buffer_store_dwordx4 v[224:227], v3, s[12:15], s69 offen sc1")
        for sh in (8, 4, 2, 1):
            p(f"v_add_f32_dpp v220, v220, v220 row_ror:{sh} row_mask:0xf bank_mask:0xf")
        p("v_mov_b32 v221, v220")
        p("v_permlane16_swap_b32 v221, v220")
        p("v_add_f32 v220, v220, v221")
        p("v_cvt_pk_bf16_f32 v220, v220, v220")
        p("v_and_b32 v220, 0xffff0000, v220")
        p(f"v_mul_f32 v220, {f2u(-math.log2(math.e)):#x}, v220")
        p("v_exp_f32 v220, v220")
        p("v_add_f32 v220, 1.0, v220")
        p("v_rcp_f32 v220, v220")
        p("v_cvt_pk_bf16_f32 v220, v220, v220")
        p("v_and_b32 v220, 0xffff0000, v220")
        p("v_lshrrev_b32 v221, 3, v200")
        p("v_and_b32 v200, 7, v200")
        p("v_lshlrev_b32 v200, 2, v200")
        p("v_lshl_add_u32 v200, v221, 7, v200")
        p(f"s_mov_b32 s68, {GG}")
        p("buffer_store_dword v220, v200, s[12:15], s68 offen sc1")
    if OPT.get("side_st", 1) < 0: side_jobs()
    mk("pro")
    p("s_barrier")
    rd0(0); rd0(1)
    for st in range(8):
        k = 4 * st
        p("s_waitcnt lgkmcnt(7)"); mm0(k); rd0(k + 2)
        p("s_waitcnt lgkmcnt(7)"); mm0(k + 1); rd0(k + 3)
        p("s_waitcnt lgkmcnt(7)"); mm0(k + 2)
        p("s_waitcnt lgkmcnt(0)")
        p("s_barrier")
        tr("b")
        if st < 7: rd0(k + 4)
        mm0(k + 3)
        if st < 7: rd0(k + 5)
        if st == OPT.get("side_st", 1): side_jobs()
    mk("t1")
    p(f"s_mov_b32 s71, {f2u(QSCALE):#x}")
    T = 152
    for hd in range(2):
        a = ACC[hd]
        for i in range(4):
            p(f"v_cvt_pk_bf16_f32 v{T+4+i}, v{a+8+2*i}, v{a+8+2*i+1}")
        p(f"buffer_store_dwordx4 {vr(T+4,4)}, v13, s[12:15], s{42+hd} offen sc1")
        T += 8
    a = ACC[2]
    for i in range(8):
        p(f"v_cvt_pk_bf16_f32 v{T+i}, v{a+2*i}, v{a+2*i+1}")
    p(f"buffer_store_dwordx4 {vr(T,4)}, v14, s[12:15], s42 offen sc1")
    p(f"buffer_store_dwordx4 {vr(T+4,4)}, v14, s[12:15], s42 offen offset:512 sc1")
    T = 152
    for hd in range(2):
        a = ACC[hd]
        for i in range(4):
            p(f"v_cvt_pk_bf16_f32 v{T+i}, v{a+2*i}, v{a+2*i+1}")
        for i in range(4):
            p(f"v_lshlrev_b32 v{a+2*i}, 16, v{T+i}")
            p(f"v_and_b32 v{a+2*i+1}, 0xffff0000, v{T+i}")
        for i in range(8):
            p(f"v_mul_f32 v{a+i}, s71, v{a+i}")
        for i in range(4):
            p(f"v_cvt_pk_bf16_f32 v{T+i}, v{a+2*i}, v{a+2*i+1}")
        p(f"buffer_store_dwordx4 {vr(T,4)}, v3, s[12:15], s{42+hd} offen sc1")
        T += 8
    p("s_lshl_b32 s40, s41, 6")
    p(f"s_add_u32 s40, s40, {FL1}")
    fl1_addr()
    p("s_waitcnt vmcnt(0)")
    publish(p, 40)
    if OPT.get("b0", 7) == 7:
        p(f"v_mov_b32 v5, {LF + 8}")
        p("s_mov_b64 exec, 1")
        p(f"ds_inc_u32 v5, v{IDX}")
        p("s_mov_b64 exec, -1")
    mk("pub")
    poll(p, 6, 48, first=OPT["pfirst"])
    tr("p1")
    att_start(st_)
    p("s_branch L_SCHED")

    p.label("L_G1")
    st1 = Stamps(p, 0); st1.n = 1
    vm = VM(p)
    XO = 240; WO = 244; BO = 247; XA1 = 224; BA = 228
    XF = 8; BF = [136, 144, 152]; LT = 210
    p("s_lshl_b32 s72, s7, 15")
    p("v_lshrrev_b32 v22, 3, v0")
    p("v_and_b32 v23, 7, v0")
    p("v_bfe_u32 v24, v22, 2, 1")
    p("v_and_b32 v25, 3, v22")
    p("v_lshl_add_u32 v24, v24, 4, v25")
    for j in range(4):
        p(f"v_add_u32 v18, {8*j}, v22")
        p("v_bfe_u32 v19, v18, 1, 3")
        p("v_xor_b32 v19, v19, v23")
        p(f"v_lshlrev_b32 v{30+j}, 4, v19")
        p(f"v_lshl_add_u32 v20, v24, 10, v{30+j}")
        p(f"v_add_u32 v20, {j*4096 - j*1024}, v20")
        p(f"v_add_u32 v{XO+j}, s72, v20")
    if OPT["rot"]:
        p("s_and_b32 s80, s34, 3")
        p("s_lshl_b32 s80, s80, 1")
        p("s_add_u32 s80, s80, s35")
    else:
        p("s_mov_b32 s80, 0")
    p("s_mul_i32 s73, s4, 3072")
    p(f"s_add_u32 s73, s73, {WR}")
    def dma(st, mid=None):
        p(f"s_add_u32 s74, s80, {st}")
        p("s_and_b32 s74, s74, 7")
        p(f"s_add_u32 m0, s6, {(st % 3) * 4096}")
        p("s_lshl_b32 s72, s74, 7")
        for j in range(4):
            vm.issue(f"buffer_load_dwordx4 v{XO+j}, s[8:11], s72 offen offset:{j*1024} lds", ("S", st))
        if mid: mid()
        p(f"s_add_u32 m0, s73, {(st % 3) * 12288}")
        p(f"s_mul_i32 s72, s74, {64*3072}")
        for j in range(3):
            vm.issue(f"buffer_load_dwordx4 v{WO+j}, s[16:19], s72 offen offset:{j*1024} lds", ("S", st))
    def dma_b(q):
        p(f"s_add_u32 s74, s75, {2*q}")
        p("s_and_b32 s74, s74, 7")
        p(f"s_add_u32 m0, s77, {q * 8192}")
        p("s_lshl_b32 s72, s74, 7")
        for j in range(4):
            vm.issue(f"buffer_load_dwordx4 v{BO+j}, s[20:23], s72 offen offset:{j*1024} lds", ("B", q))
    p("s_waitcnt lgkmcnt(0)")
    srd(p, 8, 40, 2048*1024)
    def wcalc():
        p("s_lshl_b32 s76, s35, 6")
        p("s_mul_i32 s77, s4, 16*3072")
        p("s_add_u32 s76, s76, s77")
        p("s_movk_i32 s77, 3072")
        for j in range(3):
            p(f"v_add_u32 v18, {64*j}, v0")
            p("v_mul_u32_u24 v19, 43691, v18")
            p("v_lshrrev_b32 v19, 19, v19")
            p("v_mul_u32_u24 v20, 12, v19")
            p("v_sub_u32 v20, v18, v20")
            p("v_cmp_gt_u32 vcc, 8, v20")
            p("v_bfe_u32 v21, v20, 1, 1")
            p("v_lshlrev_b32 v21, 10, v21")
            p("v_lshrrev_b32 v26, 2, v20")
            p("v_lshl_add_u32 v21, v26, 5, v21")
            p("v_and_b32 v26, 1, v20")
            p("v_lshl_add_u32 v21, v26, 4, v21")
            p("v_lshlrev_b32 v26, 4, v20")
            p(f"v_add_u32 v26, {2048-128}, v26")
            p("v_cndmask_b32 v21, v26, v21, vcc")
            p("v_mad_u32_u24 v21, v19, s77, v21")
            if j: p(f"v_subrev_u32 v21, {j*1024}, v21")
            p(f"v_add_u32 v{WO+j}, s76, v21")
        srd(p, 16, 60, 512*3072)
    dma(0, wcalc); dma(1)
    srd(p, 12, 70, WS_USED)
    p("s_cmp_lt_u32 s4, 2")
    p("s_cselect_b32 s20, s46, s48")
    p("s_cselect_b32 s21, s47, s49")
    p(f"s_mov_b32 s22, {512*1024}")
    p("s_mov_b32 s23, 0x00020000")
    p("s_and_b32 s75, s4, 1")
    p("s_lshl_b32 s77, s75, 12")
    p("s_add_u32 s75, s75, s80")
    p("s_lshr_b32 s76, s4, 1")
    p("s_lshl_b32 s76, s76, 15")
    p("s_add_u32 s77, s77, s76")
    p(f"s_add_u32 s77, s77, {BR}")
    p("s_lshl_b32 s69, s35, 15")
    for j in range(4):
        p(f"v_lshl_add_u32 v20, v22, 10, v{30+j}")
        p(f"v_add_u32 v20, {j*8192 - j*1024}, v20")
        p(f"v_add_u32 v{BO+j}, s69, v20")
    p("v_lshlrev_b32 v18, 2, v0")
    p(f"v_add_u32 v18, {LF}, v18")
    p("v_mov_b32 v19, 0")
    p("ds_write_b32 v18, v19")
    p("v_bfe_u32 v165, v2, 1, 3")
    p("v_lshlrev_b32 v166, 7, v2")
    p("v_add_u32 v167, s6, v166")
    p(f"v_add_u32 v166, {BR}, v166")
    for ks in range(4):
        p(f"v_add_u32 v160, {2*ks}, v1")
        p("v_xor_b32 v160, v160, v165")
        p(f"v_lshl_add_u32 v{XA1+ks}, v160, 4, v167")
        p(f"v_lshl_add_u32 v{BA+ks}, v160, 4, v166")
    def small_loads():
        p(f"s_mov_b32 s68, {EPO}")
        vm.issue("buffer_load_dword v163, off, s[12:15], s68", "lam")
        p("s_lshl_b32 s68, s35, 6")
        p("v_lshl_add_u32 v164, v2, 1, s68")
        srd(p, 24, 42, 1024)
        vm.issue(f"buffer_load_ushort v{LT}, v164, s[24:27], 0 offen", "lam")
        srd(p, 28, 44, 1024)
        vm.issue(f"buffer_load_ushort v{LT+1}, v164, s[28:31], 0 offen", "lam")
        p("s_mov_b32 s24, s54"); p("s_mov_b32 s25, s55")
        vm.issue(f"buffer_load_ushort v{LT+2}, v164, s[24:27], 0 offen", "lam")
    mk("pro", st1)
    B0 = OPT.get("b0", 7)
    for st in range(8):
        vm.wait([("S", st)] + ([("B", 3)] if st == 7 and B0 < 5 else []), "lgkmcnt(0)")
        p("s_barrier")
        for ks in range(4):
            p(f"ds_read_b128 {vr(XF + 16*st + 4*ks, 4)}, v{XA1+ks} offset:{(st % 3) * 4096}")
        if st + 2 < 8: dma(st + 2)
        if st == 2: small_loads()
        if B0 <= st < B0 + 4 and B0 < 5: dma_b(st - B0)

        if B0 == 6 and st == 6: dma_b(0)
        if st == 5:
            vm.wait("lam")
            p("v_readfirstlane_b32 s32, v163")
            lam_compute(p, L, LT)
            p("s_mul_i32 s32, s32, 0x9E3779B1")
            p("s_add_u32 s32, s32, 0x7F4A7C15")
            p("s_xor_b32 s33, s32, 0x5BD1E995")
    def rd1(kk):
        b = BF[kk % 3]; s = kk >> 2; ks = kk & 3
        p(f"ds_read_b128 {vr(b,4)}, v{BA+ks} offset:{s*4096}")
        p(f"ds_read_b128 {vr(b+4,4)}, v{BA+ks} offset:{s*4096 + 32768}")
    p("s_waitcnt lgkmcnt(0)")
    if B0 < 5: rd1(0); rd1(1)
    p("s_barrier")
    mk("t1", st1)
    p("s_setprio 1")
    if B0 == 7:
        p(f"v_mov_b32 v160, {LF + 8}")
        lds_spin(p, 160, 4)
    if B0 >= 5:
        for q in range(1 if B0 == 6 else 0, 4): dma_b(q)
        p(f"v_mov_b32 v160, {LF + 4}")
        p("v_mov_b32 v161, -1")
        vm.drain()
        p("s_mov_b64 exec, 1")
        p("ds_inc_u32 v160, v161")
        p("s_mov_b64 exec, -1")
        lds_spin(p, 160, 4)
        tr("bok")
        rd1(0); rd1(1)
    for kk in range(32):
        b = BF[kk % 3]
        if kk + 2 < 32:
            rd1(kk + 2); p("s_waitcnt lgkmcnt(4)")
        elif kk + 2 == 32: p("s_waitcnt lgkmcnt(2)")
        else: p("s_waitcnt lgkmcnt(0)")
        p(f"v_mfma_f32_32x32x16_bf16 {vr(RE,16)}, {vr(XF+4*kk,4)}, {vr(b,4)}, {vr(RE,16) if kk else 0}")
        p(f"v_mfma_f32_32x32x16_bf16 {vr(IM,16)}, {vr(XF+4*kk,4)}, {vr(b+4,4)}, {vr(IM,16) if kk else 0}")
    a0, a1 = 210, 212
    p("s_lshl_b32 s68, s4, 9")
    p(f"s_add_u32 s68, s68, {EXC}")
    p("v_lshl_add_u32 v18, v0, 3, s68")
    p(f"v_lshlrev_b32 v19, 3, v2")
    p(f"v_add_u32 v19, {EXC}, v19")
    p("s_lshl_b32 s68, s4, 1")
    p("v_add_u32 v20, s68, v1")
    p(f"v_mov_b32 v21, {LF}")
    p("v_mov_b32 v22, -1")
    p(f"v_add_f32 v{L+2}, v{L+2}, v{L+2}")
    p(f"v_add_f32 v{L+3}, v{L+3}, v{L+3}")
    hr, hi = RE, IM
    for r in range(16):
        p(f"v_mul_f32 v214, v{L+3}, v{IM+r}")
        p(f"v_mul_f32 v215, v{L+3}, v{RE+r}")
        p(f"v_fma_f32 v{RE+r}, v{L+2}, v{RE+r}, -v214")
        p(f"v_fma_f32 v{IM+r}, v{L+2}, v{IM+r}, v215")
        if r == 0: continue
        d = a0 if r & 1 else a1
        p(f"v_fma_f32 v{d}, v{L}, v{hr}, v{RE+r}")
        p(f"v_fma_f32 v{d+1}, v{L}, v{hi}, v{IM+r}")
        p(f"v_fma_f32 v{d}, -v{L+1}, v{hi}, v{d}")
        p(f"v_fmac_f32 v{d+1}, v{L+1}, v{hr}")
        hr, hi = d, d + 1
    p(f"ds_write_b64 v18, {vr(hr,2)}")
    p("s_waitcnt lgkmcnt(0)")
    p("s_mov_b64 exec, 1")
    p("ds_inc_u32 v21, v22")
    p("s_mov_b64 exec, -1")
    lds_spin(p, 21, 4)
    SUB = 136
    for j in range(8):
        p(f"ds_read_b64 {vr(SUB+2*j,2)}, v19 offset:{j*256}")
    PW = 214
    p(f"v_mov_b32 v{CAR}, 0"); p(f"v_mov_b32 v{CAR+1}, 0")
    p(f"v_mov_b32 v{PW}, 1.0"); p(f"v_mov_b32 v{PW+1}, 0")
    p("s_waitcnt lgkmcnt(0)")
    cr, ci = SUB, SUB + 1
    pr, pi = L + 4, L + 5
    for j in range(1, 8):
        p(f"v_cmp_eq_u32 vcc, {j}, v20")
        d = a0 if j & 1 else a1
        p(f"v_fma_f32 v{d}, v{L+4}, v{cr}, v{SUB+2*j}")
        p(f"v_fma_f32 v{d+1}, v{L+4}, v{ci}, v{SUB+2*j+1}")
        p(f"v_cndmask_b32 v{CAR}, v{CAR}, v{cr}, vcc")
        p(f"v_cndmask_b32 v{CAR+1}, v{CAR+1}, v{ci}, vcc")
        p(f"v_cndmask_b32 v{PW}, v{PW}, v{pr}, vcc")
        p(f"v_cndmask_b32 v{PW+1}, v{PW+1}, v{pi}, vcc")
        p(f"v_fma_f32 v{d}, -v{L+5}, v{ci}, v{d}")
        p(f"v_fmac_f32 v{d+1}, v{L+5}, v{cr}")
        cr, ci = d, d + 1
        if j < 7:
            q = 216 if j & 1 else 218
            cmul(p, q, q + 1, pr, pi, L + 4, L + 5)
            pr, pi = q, q + 1
    p("s_lshl_b32 s68, s35, 8")
    p("v_lshl_add_u32 v18, v2, 3, s68")
    p("s_lshl_b32 s68, s34, 12")
    p(f"s_add_u32 s68, s68, {EE}")
    p("s_cmp_eq_u32 s4, 0")
    p("s_cbranch_scc0 L_noE")
    p(f"buffer_store_dwordx2 {vr(cr,2)}, v18, s[12:15], s68 offen sc1")
    p.label("L_noE")
    p(f"v_mov_b32 v{L+4}, v{PW}"); p(f"v_mov_b32 v{L+5}, v{PW+1}")
    p("s_mul_i32 s68, s4, 2560")
    p(f"s_add_u32 s68, s68, {P2}")
    p("v_mul_u32_u24 v4, 80, v2")
    p("v_lshl_add_u32 v4, v1, 5, v4")
    p(f"v_add_u32 v{L+2}, s68, v4")
    p("v_bfe_u32 v4, v0, 2, 2")
    p("v_lshl_add_u32 v4, v1, 3, v4")
    p("v_mul_u32_u24 v4, 80, v4")
    p("v_and_b32 v5, 1, v0")
    p("v_lshl_add_u32 v4, v5, 5, v4")
    p("v_bfe_u32 v5, v0, 4, 1")
    p("v_lshl_add_u32 v4, v5, 4, v4")
    p("v_bfe_u32 v5, v0, 1, 1")
    p("v_lshl_add_u32 v4, v5, 3, v4")
    p(f"v_add_u32 v{L+3}, s68, v4")
    att_setup()
    fl1_addr()
    p("s_cmp_eq_u32 s4, 0")
    p("s_cbranch_scc0 L_noEf")
    p("s_lshl_b32 s69, s35, 10")
    p("s_lshl_b32 s70, s34, 6")
    p("s_add_u32 s69, s69, s70")
    p(f"s_add_u32 s69, s69, {FLE}")
    p("s_waitcnt vmcnt(0)")
    publish(p, 69)
    p.label("L_noEf")
    mk("pub", st1)
    poll(p, 6, 48)
    tr("p1")
    att_start(st1)

    p.label("L_SCHED")
    assert st_.n == st1.n or not STAMP
    ADP = OPT["adp"]; T0 = OPT["t0"]
    def ldT(t):
        b = TB[t & 1]; o = (t & 3) * 1024
        p(f"buffer_load_dwordx4 {vr(b,4)}, v3, s[12:15], s47 offen offset:{o} sc1")
        p(f"buffer_load_dwordx4 {vr(b+4,4)}, v3, s[12:15], s64 offen offset:{o} sc1")
        p(f"buffer_load_dwordx4 {vr(b+8,4)}, v3, s[12:15], s65 offen offset:{o} sc1")
        if (t & 3) == 3:
            p("s_add_u32 s47, s47, 4096"); p("s_add_u32 s64, s64, 4096"); p("s_add_u32 s65, s65, 4096")
    def trip(q):
        for it in range(2):
            i = 2 * q + it; b = it; nb = 1 - it
            t = i - 2 * T0 if q >= T0 else None
            for c in range(2):
                s = S[c]; sn = S[1 - c]
                e = lambda k: p(f"v_exp_f32 v{s+k}, v{s+k}")
                e(0); e(1)
                pv = V[b] if c else V[nb]
                p(f"v_smfmac_f32_32x32x32_bf16 {vr(O[1-c],16)}, {vr(pv+4,4)}, {vr(sn+8,8)}, v{IDX}")
                if c == 0:
                    if i + 1 < 32: rdV(nb, i + 1)
                else: p("s_waitcnt lgkmcnt(0)")
                e(2); e(3); e(4)
                kk = K[b] if c == 0 else K[nb]
                if not (i == 31 and c == 1):
                    p(f"v_mfma_f32_32x32x16_bf16 {vr(sn,16)}, {vr(kk,4)}, {vr(Q[1-c],4)}, 0")
                if c == 0 and i + 2 < 32: rdK(b, i + 2)
                if ADP and q < 15 and c == 1:
                    if it == 0:
                        p("s_mov_b64 exec, 1")
                        p(f"ds_inc_u32 v1, v{IDX}")
                        p(f"ds_inc_u32 v1, v{IDX} offset:8")
                        p("s_mov_b64 exec, -1")
                    else: p("v_readfirstlane_b32 s75, v6")
                e(5); e(6); e(7); e(8); e(9)
                p(f"v_smfmac_f32_32x32x32_bf16 {vr(O[c],16)}, {vr(V[b],4)}, {vr(s,8)}, v{IDX}")
                if t is not None and c == 0: p(f"s_waitcnt vmcnt({3 if t < 15 else 0})")
                if ADP and q < 15 and c == 1:
                    if it == 0: p("ds_read_b32 v6, v1 offset:4")
                    else:
                        n_ = uid()
                        p(f"s_cmp_lt_u32 s75, {q + 1}")
                        p("s_setprio 0")
                        p(f"s_cbranch_scc1 Lpr{n_}")
                        p("s_setprio 1")
                        p.label(f"Lpr{n_}")
                e(10); e(11); e(12)
                if t is not None:
                    p(f"v_mfma_f32_32x32x16_bf16 {vr(ACA[c],16)}, {vr(TB[t & 1],4)}, {vr(TB[t & 1]+4+4*c,4)}, {vr(ACA[c],16) if t else 0}")
                    if c == 1 and t + 2 < 16: ldT(t + 2)
                e(13); e(14); e(15)
    def check_or_poll(soff, fr, dontcare=None, redo=None):
        n = uid()
        p("s_waitcnt vmcnt(0)")
        p(f"v_cmp_eq_u32 s[78:79], s32, v{fr}")
        p(f"v_cmp_eq_u32 vcc, s33, v{fr+1}")
        p("s_and_b64 s[78:79], s[78:79], vcc")
        if dontcare is not None: p(f"s_or_b64 s[78:79], s[78:79], s[{dontcare}:{dontcare+1}]")
        p("s_cmp_eq_u64 s[78:79], -1")
        p(f"s_cbranch_scc1 Lchk{n}")
        redo()
        poll(p, 6, soff, dontcare, fr=fr)
        p.label(f"Lchk{n}")
    def KVa():
        p("s_lshl_b32 s68, s5, 3")
        p(f"s_add_u32 s68, s68, {LF + 20}")
        p("s_waitcnt vmcnt(0)")
        lds_count(None)
    def KVb():
        p("s_lshl_b32 s68, s5, 3")
        p(f"s_add_u32 s68, s68, {LF + 20}")
        p("v_mov_b32 v251, s68")
        lds_spin(p, 251, 4)
    def PL():
        p("buffer_load_dwordx4 v[232:235], v228, s[20:23], s64 offen")
        p("s_bitcmp1_b32 s4, 0")
        p("s_cbranch_scc1 L_nowo1")
        for j in range(8):
            p(f"buffer_load_ushort v{236+j}, v{229 + (j >> 2)}, s[16:19], s65 offen offset:{(j & 3)*1024}")
        p.label("L_nowo1")
    def PS():
        p("s_waitcnt vmcnt(0)")
        p("s_lshl_b32 s68, s41, 10")
        p(f"s_add_u32 s68, s68, {CF}")
        p("buffer_store_dwordx4 v[232:235], v3, s[12:15], s68 offen sc1")
        p("s_bitcmp1_b32 s4, 0")
        p("s_cbranch_scc1 L_nowo2")
        for i in range(4): p(f"v_lshl_or_b32 v{244+i}, v{237+2*i}, 16, v{236+2*i}")
        p("s_lshl_b32 s68, s41, 9")
        p(f"s_add_u32 s68, s68, {WOF}")
        p("buffer_store_dwordx4 v[244:247], v3, s[12:15], s68 offen sc1")
        p.label("L_nowo2")
    def PSb():
        p(f"s_add_u32 s40, s40, {FL2 - FL1}")
        p("s_waitcnt vmcnt(0)")
        publish(p, 40)
    def W5a():
        p("v_and_b32 v6, 15, v0")
        p("v_bfe_u32 v252, v0, 4, 1")
        p("v_lshl_add_u32 v6, v252, 6, v6")
        p("v_lshlrev_b32 v6, 6, v6")
        p("s_lshl_b32 s41, s39, 13")
        p("s_lshl_b32 s68, s4, 10")
        p("s_add_u32 s41, s41, s68")
        p(f"s_add_u32 s41, s41, {FL2}")
        p("buffer_load_dwordx2 v[252:253], v6, s[12:15], s41 offen sc1")
    def W5b():
        check_or_poll(41, 252, redo=W5a)
        p("s_lshl_b32 s68, s39, 16")
        p("s_lshl_b32 s69, s4, 13")
        p("s_add_u32 s68, s68, s69")
        p(f"s_add_u32 s68, s68, {WOF}")
        for jn in range(2):
            for hh in range(8):
                p(f"buffer_load_dwordx4 {vr(WOR + 8*hh + 4*jn, 4)}, v3, s[12:15], s68 offen offset:{(hh & 3)*1024} sc1")
                if hh == 3: p("s_add_u32 s68, s68, 4096")
            if jn == 0: p(f"s_add_u32 s68, s68, {32768 - 4096}")
    def E3a():
        p("v_min_u32 v6, 15, v0")
        p("v_cmp_le_u32 s[42:43], s34, v6")
        p("v_lshlrev_b32 v6, 6, v6")
        p("s_lshl_b32 s48, s35, 10")
        p(f"s_add_u32 s48, s48, {FLE}")
        p("buffer_load_dwordx2 v[4:5], v6, s[12:15], s48 offen sc1")
    def E3b():
        check_or_poll(48, 4, 42, redo=E3a)
        p("v_and_b32 v6, 31, v0")
        p("s_lshl_b32 s68, s35, 8")
        p("v_lshl_add_u32 v6, v6, 3, s68")
        p(f"s_mov_b32 s68, {EE}")
        for c in range(15):
            p(f"s_cmp_le_u32 s34, {c}")
            p("s_cbranch_scc1 L_E3bx")
            p(f"buffer_load_dwordx2 {vr(EB+2*c,2)}, v6, s[12:15], s68 offen sc1")
            p("s_add_u32 s68, s68, 4096")
        p.label("L_E3bx")
    def E4():
        p("s_waitcnt vmcnt(0)")
        p("v_mov_b32 v240, 0"); p("v_mov_b32 v241, 0")
        for c in range(15):
            p(f"s_cmp_le_u32 s34, {c}")
            p("s_cbranch_scc1 L_hin")
            p(f"v_fmac_f32 v{EB+2*c}, v{L+6}, v240")
            p(f"v_fmac_f32 v{EB+2*c+1}, v{L+6}, v241")
            p(f"v_fma_f32 v242, -v{L+7}, v241, v{EB+2*c}")
            p(f"v_fma_f32 v241, v{L+7}, v240, v{EB+2*c+1}")
            p("v_mov_b32 v240, v242")
        p.label("L_hin")
        p(f"v_fmac_f32 v{CAR}, v{L+4}, v240")
        p(f"v_fmac_f32 v{CAR+1}, v{L+4}, v241")
        p(f"v_fma_f32 v{CAR}, -v{L+5}, v241, v{CAR}")
        p(f"v_fmac_f32 v{CAR+1}, v{L+5}, v240")
        pr, pi = CAR, CAR + 1
        PK = 234
        for r in range(16):
            p(f"v_fmac_f32 v{RE+r}, v{L}, v{pr}")
            p(f"v_fmac_f32 v{IM+r}, v{L}, v{pi}")
            p(f"v_fma_f32 v{RE+r}, -v{L+1}, v{pi}, v{RE+r}")
            p(f"v_fmac_f32 v{IM+r}, v{L+1}, v{pr}")
            pr, pi = RE + r, IM + r
            if r & 1:
                p(f"v_cvt_pk_bf16_f32 v{PK + (r >> 1)}, v{RE+r-1}, v{RE+r}")
                p(f"v_cvt_pk_bf16_f32 v{PK + 8 + (r >> 1)}, -v{IM+r-1}, -v{IM+r}")
        p("s_lshl_b32 s68, s7, 16")
        p("s_lshl_b32 s69, s35, 11")
        p("s_add_u32 s68, s68, s69")
        p(f"s_add_u32 s68, s68, {HF}")
        p("s_add_u32 s69, s68, 0x8000")
        for pl in range(2):
            for q in range(2):
                p(f"ds_write_b128 v{L+2}, {vr(PK + 8*pl + 4*q, 4)} offset:{q*16}")
            for kl in range(2):
                for e_ in range(2):
                    p(f"ds_read_b64_tr_b16 {vr(210 + 8*pl + 4*kl + 2*e_, 2)}, v{L+3} offset:{(16*kl + 4*e_)*80}")
        for pl in range(2):
            p(f"s_waitcnt lgkmcnt({6 if pl == 0 else 0})")
            for kl in range(2):
                p(f"buffer_store_dwordx4 {vr(210 + 8*pl + 4*kl, 4)}, v3, s[12:15], s{68+pl} offen offset:{kl*1024} sc1")
    def E4b():
        p("s_lshl_b32 s68, s7, 10")
        p("s_lshl_b32 s69, s35, 6")
        p("s_add_u32 s68, s68, s69")
        p(f"s_add_u32 s68, s68, {FLH}")
        p("s_waitcnt vmcnt(0)")
        publish(p, 68)
    def E5a():
        p("v_and_b32 v4, 7, v0")
        p("v_and_b32 v5, 4, v4")
        p("v_and_b32 v4, 3, v4")
        p("v_lshl_add_u32 v4, v5, 1, v4")
        p("v_and_b32 v5, 3, v0")
        p("v_add_u32 v4, v4, v5")
        p("s_lshr_b32 s68, s49, 5")
        p("v_add_u32 v4, s68, v4")
        p("s_lshl_b32 s68, s4, 4")
        p("s_bfe_u32 s69, s49, 0x20003")
        p("s_lshl_b32 s69, s69, 2")
        p("s_add_u32 s68, s68, s69")
        p("s_bfe_u32 s69, s49, 0x20001")
        p("s_add_u32 s68, s68, s69")
        p("v_lshl_add_u32 v4, v4, 6, s68")
        p("s_lshl_b32 s68, s49, 4")
        p(f"s_add_u32 s68, s68, {(FLH - FL1) // 64}")
        p("v_cmp_gt_u32 vcc, 16, v0")
        p("v_add_u32 v5, s68, v0")
        p(f"s_mov_b32 s48, {FL1}")
        p("v_cndmask_b32 v6, v4, v5, vcc")
        p("v_lshlrev_b32 v6, 6, v6")
        p("buffer_load_dwordx2 v[4:5], v6, s[12:15], s48 offen sc1")
    def E5b():
        check_or_poll(48, 4, redo=E5a)
        p("s_lshl_b32 s69, s4, 14")
        p("s_lshl_b32 s47, s49, 16")
        p("s_add_u32 s47, s47, s69")
        p(f"s_add_u32 s47, s47, {HF}")
        p("s_lshl_b32 s64, s39, 17")
        p("s_add_u32 s64, s64, s69")
        p(f"s_add_u32 s64, s64, {CF}")
        p("s_add_u32 s65, s64, 0x10000")
        p("s_and_b32 s68, s4, 1")
        p("s_lshl_b32 s68, s68, 3")
        p("s_lshl_b32 s40, s49, 5")
        p("s_add_u32 s40, s40, s68")
        p("s_lshr_b32 s68, s4, 1")
        p("s_lshl_b32 s68, s68, 5")
        p("s_lshl_b32 s41, s39, 6")
        p("s_add_u32 s41, s41, s68")
        p("v_lshrrev_b32 v4, 5, v0")
        p("v_and_b32 v5, 31, v0")
        p("s_lshl_b32 s68, s49, 9")
        p(f"s_add_u32 s68, s68, {GG}")
        p("v_lshlrev_b32 v6, 8, v4")
        for q in range(4):
            p(f"buffer_load_dwordx4 {vr(G16+4*q,4)}, v6, s[12:15], s68 offen offset:{(q & 1)*16 + (q >> 1)*128} sc1")
        srd(p, 24, 56, 1024)
        p("v_lshlrev_b32 v6, 1, v5")
        p("s_lshl_b32 s68, s41, 1")
        p(f"buffer_load_ushort v{D_}, v6, s[24:27], s68 offen")
        p("v_lshl_add_u32 v6, v4, 14, v6")
        p("s_lshl_b32 s69, s40, 10")
        p("s_add_u32 s68, s68, s69")
        for r in range(8):
            if r == 4: p("s_add_u32 s68, s68, 4096")
            p(f"buffer_load_ushort v{X_+r}, v6, s[8:11], s68 offen offset:{(r & 3)*1024}")
        p("v_bfe_u32 v4, v5, 2, 1")
        p("v_lshlrev_b32 v4, 4, v4")
        p("v_and_or_b32 v4, v5, 3, v4")
        p("v_lshrrev_b32 v5, 3, v5")
        p("v_lshl_add_u32 v4, v5, 2, v4")
        p("v_lshrrev_b32 v5, 3, v4")
        p("v_and_b32 v4, 7, v4")
        p("v_lshlrev_b32 v4, 2, v4")
        p("v_lshl_add_u32 v4, v5, 7, v4")
        p("s_lshl_b32 s68, s46, 9")
        p(f"s_add_u32 s68, s68, {GG}")
        p(f"buffer_load_dword v{OG}, v4, s[12:15], s68 offen sc1")
        ldT(0); ldT(1)
    fns = dict(PL=PL, PS=PS, PSb=PSb, KVa=KVa, KVb=KVb, W5a=W5a, W5b=W5b, E3a=E3a, E3b=E3b, E4=E4, E4b=E4b, E5a=E5a, E5b=E5b)
    for q in range(16):
        for ev in OPT["ev"].get(q, "").split():
            name, _, grp = ev.partition(":")
            if name in ("E3a", "E3b", "E4", "E4b"): grp = "1"
            if OPT.get("trev"): tr(name)
            if grp == "": fns[name]()
            else:
                lab = f"L_no{name}{grp}"
                p(f"s_cmp_eq_u32 s5, {grp}")
                p(f"s_cbranch_scc0 {lab}")
                fns[name]()
                p.label(lab)
            if OPT.get("trev"): tr(name + "x")
        trip(q); tr("trip")
    p(f"v_smfmac_f32_32x32x32_bf16 {vr(O[1],16)}, {vr(V[1]+4,4)}, {vr(S[1]+8,8)}, v{IDX}")
    mk("loop")
    AV = X_; OA = 8; ACB = [40, 56]; R = O[0]
    p("s_mul_i32 s68, s3, 2304")
    p(f"s_add_u32 s68, s68, {SCR}")
    p("v_add_u32 v4, s68, v3")
    p("v_lshl_add_u32 v5, v0, 2, s68")
    p("s_xor_b32 s68, s3, 4")
    p("s_mul_i32 s68, s68, 2304")
    p(f"s_add_u32 s68, s68, {SCR}")
    p("v_add_u32 v96, s68, v3")
    p("v_lshl_add_u32 v97, v0, 2, s68")
    p(f"v_sub_f32 v{OG}, 1.0, v{OG}")
    p("s_cmp_eq_u32 s5, 0")
    p("s_cbranch_scc0 L_red1")
    p(f"ds_write_b128 v4, {vr(O[1],4)}")
    p(f"ds_write_b128 v4, {vr(O[1]+4,4)} offset:1024")
    p(f"ds_write_b32 v5, v{O[1]+8} offset:2048")
    p("s_branch L_red2")
    p.label("L_red1")
    p(f"ds_write_b128 v4, {vr(O[0],4)}")
    p(f"ds_write_b128 v4, {vr(O[0]+4,4)} offset:1024")
    p(f"ds_write_b32 v5, v{O[0]+8} offset:2048")
    p("s_waitcnt lgkmcnt(0)")
    for i in range(9): p(f"v_mov_b32 v{O[0]+i}, v{O[1]+i}")
    p.label("L_red2")
    p(f"v_cvt_pk_bf16_f32 v{OG}, v{OG}, v{OG}")
    p("s_lshl_b32 s70, s46, 15")
    p("s_lshl_b32 s71, s36, 10")
    p("s_add_u32 s70, s70, s71")
    p(f"s_add_u32 s70, s70, {OF}")
    p(f"v_and_b32 v{OG}, 0xffff0000, v{OG}")
    p(f"s_mov_b32 s68, {f2u(2.0**-40):#x}")
    p(f"s_mov_b32 s69, {f2u(2.0**40):#x}")
    p(f"s_mov_b32 s42, {f2u(2.0**120):#x}")
    p("s_waitcnt lgkmcnt(0)")
    p("s_barrier")
    tr("bar")
    p(f"ds_read_b128 v[12:15], v96")
    p(f"ds_read_b128 v[16:19], v96 offset:1024")
    p(f"ds_read_b32 v20, v97 offset:2048")
    p("s_waitcnt lgkmcnt(0)")
    for i in range(9): p(f"v_add_f32 v{R+i}, v{R+i}, v{12+i}")
    p(f"v_max3_f32 v6, |v{R}|, |v{R+1}|, |v{R+2}|")
    p(f"v_max3_f32 v6, v6, |v{R+3}|, |v{R+4}|")
    p(f"v_max3_f32 v6, v6, |v{R+5}|, |v{R+6}|")
    p(f"v_max_f32 v6, v6, |v{R+7}|")
    p(f"v_cmp_le_f32 s[78:79], s68, v{R+8}")
    p(f"v_cmp_ge_f32 s[80:81], s69, v{R+8}")
    p(f"v_cmp_ge_f32 vcc, s42, v6")
    p("s_and_b64 s[78:79], s[78:79], s[80:81]")
    p("s_and_b64 s[78:79], s[78:79], vcc")
    p("s_cmp_eq_u64 s[78:79], -1" if not OPT["fallback"] else "s_cmp_eq_u64 s[78:79], 1")
    p("s_cbranch_scc0 L_slow")
    p.label("L_fin")
    p(f"v_rcp_f32 v6, v{R+8}")
    p(f"v_mul_f32 v6, v{OG}, v6")
    for i in range(8): p(f"v_mul_f32 v{R+i}, v6, v{R+i}")
    for i in range(4): p(f"v_cvt_pk_bf16_f32 v{88+i}, v{R+2*i}, v{R+2*i+1}")
    for i in range(4): p(f"v_min_u32 v{88+i}, -2, v{88+i}")
    p(f"buffer_store_dwordx4 {vr(88,4)}, v3, s[12:15], s70 offen sc1")
    tr("ost")
    def loadO():
        for hh in range(8):
            p(f"buffer_load_dwordx4 {vr(OA+4*hh,4)}, v3, s[12:15], s{47 + (hh >> 2)} offen offset:{(hh & 3)*1024} sc1")
    for t in range(32 - 2 * T0, 16):
        p(f"s_waitcnt vmcnt({(4 if t < 34 - 2 * T0 else 3) if t < 15 else (1 if T0 == 8.5 else 0)})" if t + 1 < 16 or True else "")
        for c in range(2):
            p(f"v_mfma_f32_32x32x16_bf16 {vr(ACA[c],16)}, {vr(TB[t & 1],4)}, {vr(TB[t & 1]+4+4*c,4)}, {vr(ACA[c],16)}")
        if t + 2 < 16: ldT(t + 2)
    p("s_lshl_b32 s47, s49, 15")
    p("s_lshl_b32 s74, s4, 13")
    p("s_add_u32 s47, s47, s74")
    p(f"s_add_u32 s47, s47, {OF}")
    p("s_add_u32 s48, s47, 4096")
    p(f"v_lshlrev_b32 v{D_}, 16, v{D_}")
    for i in range(8):
        p(f"v_lshlrev_b32 v{X_+i}, 16, v{X_+i}")
        p(f"v_mul_f32 v{X_+i}, v{D_}, v{X_+i}")
    for i in range(4): p(f"v_cvt_pk_bf16_f32 v{40+i}, v{X_+2*i}, v{X_+2*i+1}")
    p("s_bitcmp1_b32 s4, 0")
    p("s_cselect_b64 vcc, -1, 0")
    for i in range(4):
        p(f"v_lshlrev_b32 v{X_+2*i}, 16, v{40+i}")
        p(f"v_and_b32 v{X_+2*i+1}, 0xffff0000, v{40+i}")
    for i in range(8): p(f"v_cndmask_b32 v{44+i}, v{G16+i}, v{G16+8+i}, vcc")
    for i in range(8): p(f"v_mul_f32 v{AV+i}, v{44+i}, v{X_+i}")
    loadO()
    for jn in range(2):
        for r in range(16):
            p(f"v_mul_f32 v{ACA[jn]+r}, v{G16+r}, v{ACA[jn]+r}")
    p("s_lshl_b32 s68, s3, 13")
    p("v_add_u32 v232, s68, v3")
    p("s_lshl_b32 s68, s5, 15")
    p("s_lshl_b32 s74, s4, 11")
    p("s_add_u32 s68, s68, s74")
    p("v_add_u32 v233, s68, v3")
    p("v_lshrrev_b32 v4, 5, v0")
    p("v_and_b32 v5, 31, v0")
    p("v_lshlrev_b32 v5, 2, v5")
    p("v_lshl_add_u32 v234, v4, 15, v5")
    p("v_add_u32 v235, 4096, v234")
    p("s_lshl_b32 s40, s40, 11")
    p("s_lshl_b32 s41, s41, 2")
    p("s_add_u32 s40, s40, s41")
    p("s_add_u32 s41, s40, 8192")
    srd(p, 28, 66, 2048*2048)
    mk("pre")
    p(f"s_mov_b32 s81, {SPIN}")
    p.label("L_opoll")
    for hh in range(8):
        p(f"s_waitcnt vmcnt({7-hh})")
        for jn in range(2):
            p(f"v_mfma_f32_32x32x16_bf16 {vr(ACB[jn],16)}, {vr(OA+4*hh,4)}, {vr(WOR+8*hh+4*jn,4)}, {vr(ACB[jn],16) if hh else vr(ACA[jn],16)}")
        if hh == 0:
            p(f"v_max3_u32 v4, v{OA}, v{OA+1}, v{OA+2}")
            p(f"v_max_u32 v4, v4, v{OA+3}")
        else:
            p(f"v_max3_u32 v4, v4, v{OA+4*hh}, v{OA+4*hh+1}")
            p(f"v_max3_u32 v4, v4, v{OA+4*hh+2}, v{OA+4*hh+3}")
    p("v_cmp_eq_u32 s[78:79], -1, v4")
    p("s_sub_u32 s81, s81, 1")
    p("s_cbranch_scc1 L_opollx")
    p("s_cmp_eq_u64 s[78:79], 0")
    p("s_cbranch_scc1 L_opollx")
    p(f"s_sleep {OPT.get('osleep', 1)}")
    loadO()
    p("s_branch L_opoll")
    p.label("L_opollx")
    tr("ook")
    for q in range(8):
        p(f"ds_write_b128 v232, {vr(40+4*q,4)} offset:{q*1024}")
    p("s_waitcnt lgkmcnt(0)")
    p("s_barrier")
    for k in range(4):
        p(f"ds_read_b128 {vr(72+8*k,4)}, v233 offset:{k*8192}")
        p(f"ds_read_b128 {vr(76+8*k,4)}, v233 offset:{k*8192+1024}")
    p("s_waitcnt lgkmcnt(4)")
    for i in range(8):
        p(f"v_add_f32 v{72+i}, v{72+i}, v{80+i}")
        p(f"v_add_f32 v{72+i}, v{72+i}, v{AV+i}")
    p("s_waitcnt lgkmcnt(0)")
    for i in range(8):
        p(f"v_add_f32 v{88+i}, v{88+i}, v{96+i}")
        p(f"v_add_f32 v{88+i}, v{72+i}, v{88+i}")
        p(f"buffer_store_dword v{88+i}, v{234 + ((i >> 1) & 1)}, s[28:31], s{40 if i < 4 else 41} offen offset:{(i & 1)*2048} {OPT.get('outsc', '')}")
    p("s_or_b32 s68, s2, s3")
    p("s_cmp_eq_u32 s68, 0")
    p("s_cbranch_scc0 L_noep")
    p(f"s_mov_b32 s68, {EPO}")
    p("v_mov_b32 v4, s32")
    p("s_mov_b64 exec, 1")
    p("buffer_store_dword v4, off, s[12:15], s68 sc1")
    p("s_mov_b64 exec, -1")
    p.label("L_noep")
    st_.end(12, 3, 8, 4)
    if TRACE:
        p("s_waitcnt vmcnt(0)"); tr("end")
        p("s_lshl_b32 s82, s2, 3"); p("s_add_u32 s82, s82, s3"); p("s_lshl_b32 s82, s82, 9"); p(f"s_add_u32 s82, s82, {STAMP_OFF}")
        p("v_lshlrev_b32 v4, 2, v0")
        p("buffer_store_dword v254, v4, s[12:15], s82 offen"); p("buffer_store_dword v255, v4, s[12:15], s82 offen offset:256")
        open("sites.txt", "w").write(repr({v: k for k, v in sites.items()}))
    p.label("L_end")
    p("s_endpgm")
    p.label("L_slow")
    p("v_lshrrev_b32 v4, 5, v0")
    p("v_and_b32 v5, 15, v0")
    p("v_lshlrev_b32 v5, 4, v5")
    p("v_lshl_add_u32 v5, v4, 8, v5")
    p(f"v_add_u32 v2, {VF}, v5")
    p(f"v_add_u32 v1, {KF}, v3")
    def gK(): p(f"buffer_load_dwordx4 {vr(K[0],4)}, v1, s[12:15], s73 offen sc1")
    def gV():
        p("s_mov_b64 exec, s[44:45]")
        for f in range(2): p(f"buffer_load_dwordx4 {vr(V[0]+4*f,4)}, v2, s[12:15], s73 offen offset:{512*f} sc1")
        p("s_mov_b64 exec, -1")
    p("s_lshl_b32 s68, s46, 10")
    p("s_add_u32 s68, s68, s76")
    p(f"buffer_load_dwordx4 {vr(Q[0],4)}, v3, s[12:15], s68 offen sc1")
    p("v_mov_b32 v6, 0xff800000")
    p("s_mov_b32 s73, s76")
    p("s_mov_b32 s72, 64")
    p.label("L_slow1")
    gK()
    p("s_add_u32 s73, s73, 1024")
    p("s_sub_u32 s72, s72, 1")
    p("s_waitcnt vmcnt(0)")
    p(f"v_mfma_f32_32x32x16_bf16 {vr(S[0],16)}, {vr(K[0],4)}, {vr(Q[0],4)}, 0")
    for i in range(8): p(f"v_max3_f32 v6, v6, v{S[0]+2*i}, v{S[0]+2*i+1}")
    p("s_cmp_lg_u32 s72, 0")
    p("s_cbranch_scc1 L_slow1")
    p("v_mov_b32 v4, v6")
    p("v_permlane32_swap_b32 v4, v6")
    p("v_max_f32 v6, v4, v6")
    for i in range(16): p(f"v_sub_f32 v{S[1]+i}, 0, v6")
    for i in range(16): p(f"v_mov_b32 v{R+i}, 0")
    p("s_mov_b32 s73, s76")
    p("s_mov_b32 s72, 64")
    p.label("L_slow2")
    gK(); gV()
    p("s_add_u32 s73, s73, 1024")
    p("s_sub_u32 s72, s72, 1")
    p("s_waitcnt vmcnt(0)")
    p(f"v_mfma_f32_32x32x16_bf16 {vr(S[0],16)}, {vr(K[0],4)}, {vr(Q[0],4)}, {vr(S[1],16)}")
    for i in range(16): p(f"v_exp_f32 v{S[0]+i}, v{S[0]+i}")
    p(f"v_smfmac_f32_32x32x32_bf16 {vr(R,16)}, {vr(V[0],4)}, {vr(S[0],8)}, v{IDX}")
    p(f"v_smfmac_f32_32x32x32_bf16 {vr(R,16)}, {vr(V[0]+4,4)}, {vr(S[0]+8,8)}, v{IDX}")
    p("s_cmp_lg_u32 s72, 0")
    p("s_cbranch_scc1 L_slow2")
    p("s_nop 11")
    p("s_branch L_fin")
    return p

if __name__ == "__main__":
    p = build()
    p.fix_hazards(verbose="-v" in sys.argv)
    for lab in (None, "L_G1", "L_slow"):
        for e in p.check_waits(lab): print(f"  [wait:{lab}] {e}")
    NAME = "gated_mix__ssm_conv_s5__softmax_full_mha__prompt_kernel"
    b, d = kernel_text(NAME, p, None)
    out = HEADER + f"; @launch grid=(256,1,1) block=(512,1,1) lds={LDS_BYTES}\n" + '.amdgcn_target "amdgcn-amd-amdhsa--gfx950"\n.text\n' + b + '.section .rodata,"a"\n' + d
    dst = [a for a in sys.argv[1:] if not a.startswith("-")]
    fn = dst[0] if dst else "gated_mix__ssm_conv_s5__softmax_full_mha__prompt.s"
    open(fn, "w").write(out)
    import subprocess
    sys.path.insert(0, "cdna_kernels")
    from cdna_launch import with_harness_metadata, address_register_problem
    open("h.s", "w").write(with_harness_metadata(out, NAME, 16, launch_lists=True))
    r = subprocess.run(["clang", "-x", "assembler", "-target", "amdgcn-amd-amdhsa", "-mcpu=gfx950", "h.s", "-o", "h.co"], capture_output=True, text=True)
    if r.returncode: print("ASSEMBLY FAILED", r.stderr[:3000])
    else:
        pr = address_register_problem("h.co", NAME, None)
        if pr: print("CHECK:", pr)
```

```python
import sys, os, math, struct
from common import *
from k_ssm import cmul, lam_compute
def f2u(x): return struct.unpack("<I", struct.pack("<f", x))[0]
QSCALE = 0.25 * math.log2(math.e)

FL1 = 0xDA0000
FLE = 0xDB0000
EPO = 0xDB8000
FLH = 0xDC0000
FL2 = 0xDD0000

WR = 49152
BR = 86016
SCR = 65536
EXC = SCR + 9216
P2 = 151552
LF = 161792
LDS_BYTES = 162048
SPIN = 400000

OPT = dict(fallback=False, rot=1, adp=1, psleep=3, pfirst=10,
           ev={0: "E3a", 1: "E3b KV2", 2: "KVa E4 KV3 PL:0", 3: "KVb E4b", 4: "KVc PS:0", 5: "PSb:0", 6: "W5a E5a:0", 7: "KVd W5b E5b:0 E5a:1", 8: "E5b:1"}, t0=9, w0=7)
OPT.update(eval(os.environ.get("OPT", "{}")))

def publish(p, soff, v=4):
    p(f"v_mov_b32 v{v}, s32"); p(f"v_mov_b32 v{v+1}, s33")
    p("s_mov_b64 exec, 1")
    p(f"buffer_store_dwordx2 v[{v}:{v+1}], off, s[12:15], s{soff} sc1")
    p("s_mov_b64 exec, -1")

_pc = [0]
def uid():
    _pc[0] += 1; return _pc[0]
def poll(p, vaddr, soff, dontcare=None, first=0, fr=4):
    n = uid()
    p(f"s_mov_b32 s81, {SPIN}")
    if first: p(f"s_sleep {first}")
    p.label(f"Lpoll{n}")
    p(f"buffer_load_dwordx2 v[{fr}:{fr+1}], v{vaddr}, s[12:15], s{soff} offen sc1")
    p("s_sub_u32 s81, s81, 1")
    p(f"s_cbranch_scc1 Lpollx{n}")
    p("s_waitcnt vmcnt(0)")
    p(f"v_cmp_eq_u32 s[78:79], s32, v{fr}")
    p(f"v_cmp_eq_u32 vcc, s33, v{fr+1}")
    p("s_and_b64 s[78:79], s[78:79], vcc")
    if dontcare is not None: p(f"s_or_b64 s[78:79], s[78:79], s[{dontcare}:{dontcare+1}]")
    p("s_cmp_eq_u64 s[78:79], -1")
    p(f"s_cbranch_scc1 Lpollx{n}")
    p(f"s_sleep {OPT['psleep']}")
    p(f"s_branch Lpoll{n}")
    p.label(f"Lpollx{n}")
    p("s_waitcnt vmcnt(0)")

def lds_spin(p, vaddr, want, t=6):
    n = uid()
    p(f"s_mov_b32 s81, {SPIN*8}")
    p.label(f"Lspin{n}")
    p(f"ds_read_b32 v{t}, v{vaddr}")
    p("s_sub_u32 s81, s81, 1")
    p(f"s_cbranch_scc1 Lspinx{n}")
    p("s_waitcnt lgkmcnt(0)")
    p(f"v_cmp_ne_u32 s[78:79], {want}, v{t}")
    p("s_cmp_eq_u64 s[78:79], 0")
    p(f"s_cbranch_scc1 Lspinx{n}")
    p("s_sleep 1")
    p(f"s_branch Lspin{n}")
    p.label(f"Lspinx{n}")
    p("s_waitcnt lgkmcnt(0)")

def build():
    p = Prog()
    st_ = Stamps(p, 0)
    MK = OPT.get("marks", ["pro", "t1", "pub", "att", "loop", "pre"])
    TRACE = OPT.get("trace")
    sites = {}
    def tr(name):
        if not TRACE: return
        i = sites.setdefault(name, len(sites) + 1)
        p("s_memtime s[100:101]"); p("s_waitcnt lgkmcnt(0)")
        p("s_mov_b64 exec, s[96:97]"); p("v_mov_b32 v254, s100"); p(f"v_mov_b32 v255, {i}"); p("s_mov_b64 exec, -1")
        p("s_lshl_b64 s[96:97], s[96:97], 1")
    def mk(name, st=None):
        if name in MK: (st or st_).mark()
        tr(name)
    p("s_cmp_ge_u32 s2, 256")
    p("s_cbranch_scc1 L_end")
    st_.start()
    if TRACE:
        p("s_mov_b64 s[96:97], 1"); p("v_mov_b32 v254, 0"); p("v_mov_b32 v255, 0"); tr("start")
    p("s_load_dwordx16 s[40:55], s[0:1], 0")
    p(f"s_load_dwordx16 s[56:71], s[0:1], {A_DSKIP}")
    p("v_lshrrev_b32 v1, 6, v0")
    p("v_and_b32 v0, 63, v0")
    p("s_and_b32 s72, s2, 7")
    p("v_readfirstlane_b32 s3, v1")
    p("s_lshr_b32 s73, s2, 3")
    p("s_lshr_b32 s74, s72, 1")
    p("s_lshl_b32 s74, s74, 2")
    p("s_and_b32 s75, s73, 3")
    p("s_add_u32 s34, s74, s75")
    p("s_and_b32 s74, s72, 1")
    p("s_lshl_b32 s74, s74, 3")
    p("s_lshr_b32 s39, s73, 2")
    p("s_add_u32 s35, s74, s39")
    p("s_lshl_b32 s74, s72, 2")
    p("s_add_u32 s38, s74, s75")
    p("s_lshr_b32 s75, s73, 3")
    p("s_add_u32 s36, s74, s75")
    p("s_and_b32 s37, s73, 7")
    p("s_and_b32 s4, s3, 3")
    p("s_lshr_b32 s5, s3, 2")
    p("v_lshrrev_b32 v1, 5, v0")
    p("v_and_b32 v2, 31, v0")
    p("v_lshlrev_b32 v3, 4, v0")
    p("s_mul_i32 s6, s4, 12288")
    p("s_lshl_b32 s7, s34, 2")
    p("s_add_u32 s7, s7, s4")
    p("s_cmp_eq_u32 s5, 0")
    p("s_cbranch_scc0 L_G1")

    S = [8, 24]; O = [40, 56]; Q = [72, 76]; K = [80, 84]; V = [88, 96]; IDX = 7; VA = 2; KA_ = 250
    WOR = 104; ACA = [168, 184]; TB = [200, 212]; G16 = 224; X_ = 240; D_ = 248; OG = 249
    RE = 168; IM = 184; L = 200; CAR = 208; EB = 210
    def att_setup():
        p("s_lshl_b32 s69, s37, 3")
        p("s_lshl_b32 s68, s4, 1")
        p("s_add_u32 s69, s69, s68")
        p("s_add_u32 s46, s69, s5")
        p("s_lshl_b32 s76, s36, 16")
        p("s_lshl_b32 s77, s69, 10")
        p("s_add_u32 s77, s77, s76")
        p(f"s_mul_i32 s72, s5, {BR}")
        p("v_lshrrev_b32 v4, 5, v0")
        p("v_and_b32 v5, 15, v0")
        p("v_lshlrev_b32 v5, 4, v5")
        p("v_lshl_add_u32 v5, v4, 8, v5")
        p(f"v_add_u32 v{VA}, s72, v5")
        p(f"v_add_u32 v{KA_}, s72, v3")
        p("s_lshl_b32 s68, s4, 4")
        p("s_lshl_b32 s69, s5, 2")
        p("s_add_u32 s68, s68, s69")
        p(f"s_add_u32 s68, s68, {LF + 128}")
        p("v_mov_b32 v1, s68")
        p("s_mov_b32 s74, 0")
        p("v_and_b32 v4, 27, v0")
        p("v_mov_b32 v5, 0x3f803f80")
        p("v_cmp_eq_u32 vcc, 16, v4")
        p("s_mov_b32 s44, 0xffff"); p("s_mov_b32 s45, 0xffff")
        p("v_cndmask_b32 v4, 0, v5, vcc")
        for i in range(16): p(f"v_mov_b32 v{V[0]+i}, v4")
        p(f"v_mov_b32 v{IDX}, 0xdddddddd")
        for i in range(32): p(f"v_mov_b32 v{O[0]+i}, 0")
        for i in range(8, 16): p(f"v_mov_b32 v{S[1]+i}, 0")
        p("s_lshl_b32 s49, s38, 1")
        p("s_add_u32 s49, s49, s5")
    def fl1_addr():
        p("s_lshl_b32 s69, s37, 3")
        p("s_lshl_b32 s68, s5, 5")
        p("v_add_u32 v6, s68, v0")
        p("v_and_b32 v4, 7, v0")
        p("v_add_u32 v4, s69, v4")
        p("v_cmp_lt_u32 vcc, 31, v0")
        p("s_lshr_b32 s68, s36, 1")
        p("s_lshl_b32 s68, s68, 6")
        p("v_cndmask_b32 v6, v6, v4, vcc")
        p("v_add_u32 v6, s68, v6")
        p(f"s_mov_b32 s48, {FL1}")
        p("v_lshlrev_b32 v6, 6, v6")
    def group_poll(first):
        n = uid()
        p("s_lshl_b32 s68, s5, 2")
        p(f"s_add_u32 s68, s68, {LF + 52}")
        p("s_cmp_eq_u32 s4, 0")
        p(f"s_cbranch_scc0 Lgp{n}")
        poll(p, 6, 48, first=first)
        lds_count(None)
        p(f"s_branch Lgpx{n}")
        p.label(f"Lgp{n}")
        p("v_mov_b32 v5, s68")
        lds_spin(p, 5, 1)
        p.label(f"Lgpx{n}")
    def rdK(b, blk): p(f"ds_read_b128 {vr(K[b],4)}, v{KA_} offset:{blk*2048}")
    def rdV(b, blk):
        p("s_mov_b64 exec, s[44:45]")
        for f in range(2): p(f"ds_read_b128 {vr(V[b]+4*f,4)}, v{VA} offset:{blk*2048 + 1024 + 512*f}")
        p("s_mov_b64 exec, -1")
    def lds_count(word):
        p(f"v_mov_b32 v6, s68" if word is None else f"v_mov_b32 v6, {word}")
        p("s_mov_b64 exec, 1")
        p(f"ds_inc_u32 v6, v{IDX}")
        p("s_mov_b64 exec, -1")
    NC0 = OPT.get("nc0", 1)
    def kv_dma(chunks):
        for c in chunks:
            for u in range(2):
                p(f"s_add_u32 s70, s62, {8*c + u}")
                p("s_and_b32 s70, s70, 31")
                p("s_lshl_b32 s70, s70, 10")
                p("s_add_u32 s70, s70, s73")
                p(f"s_add_u32 m0, s63, {(8*c + u)*2048}")
                p(f"s_add_u32 s71, s70, {VF - KF - 1024}")
                p("buffer_load_dwordx4 v3, s[12:15], s70 offen sc1 lds")
                p("buffer_load_dwordx4 v3, s[12:15], s71 offen offset:1024 sc1 lds")
    def att_start(st):
        for c in range(2):
            p(f"buffer_load_dwordx4 {vr(Q[c],4)}, v3, s[12:15], s77 offen offset:{c*1024} sc1")
        p("s_lshl_b32 s73, s5, 15")
        p("s_add_u32 s73, s73, s76")
        p(f"s_add_u32 s73, s73, {KF}")
        p("s_lshl_b32 s68, s37, 2")
        p("s_lshl_b32 s69, s4, 1")
        p("s_add_u32 s68, s68, s69")
        p("s_lshl_b32 s69, s4, 12")
        p("s_add_u32 s69, s69, s72")
        p("s_mov_b32 s62, s68"); p("s_mov_b32 s63, s69")
        kv_dma(range(NC0))
        p("s_lshl_b32 s68, s5, 3")
        p(f"s_add_u32 s68, s68, {LF + 16}")
        tr("iss")
        p(f"s_waitcnt vmcnt({4 * (NC0 - 1)})")
        tr("lnd")
        lds_count(None)
        p("v_mov_b32 v5, s68")
        lds_spin(p, 5, 4)
        tr("syn")
        rdK(0, 0); rdV(0, 0); rdK(1, 1)
        p("s_waitcnt lgkmcnt(0)")
        p(f"v_mfma_f32_32x32x16_bf16 {vr(S[0],16)}, {vr(K[0],4)}, {vr(Q[0],4)}, 0")
        mk("att", st)
        kv_dma(range(NC0, 2))
        tr("c1")
        p("s_nop 7")

    vm = VM(p)
    XA = 8; WA = 12
    p("s_lshl_b32 s72, s34, 7")
    p("s_and_b32 s73, s35, 7")
    p("s_lshl_b32 s73, s73, 4")
    p("s_add_u32 s72, s72, s73")
    p("s_and_b32 s73, s35, 8")
    p("s_add_u32 s72, s72, s73")
    p("s_lshl_b32 s73, s4, 1")
    p("s_add_u32 s72, s72, s73")
    p("v_add_u32 v200, s72, v1")
    p("v_lshlrev_b32 v201, 5, v2")
    p("v_lshl_add_u32 v202, v200, 10, v201")
    p("v_lshlrev_b32 v228, 10, v2")
    p("v_lshl_add_u32 v228, v1, 4, v228")
    p("v_lshlrev_b32 v229, 1, v2")
    p("v_lshl_add_u32 v229, v1, 12, v229")
    p("v_add_u32 v230, 8192, v229")
    p("s_lshl_b32 s72, s35, 15")
    p("s_lshl_b32 s73, s7, 5")
    p("s_and_b32 s73, s73, 1023")
    p("s_add_u32 s72, s72, s73")
    p("s_lshr_b32 s73, s7, 1")
    p("s_lshl_b32 s73, s73, 14")
    p("s_lshl_b32 s74, s35, 6")
    p("s_add_u32 s73, s73, s74")
    p("s_waitcnt lgkmcnt(0)")
    srd(p, 8, 40, 2048*1024)
    srd(p, 12, 70, WS_USED)
    srd(p, 24, 64, 1024)
    p("s_cmp_lt_u32 s34, 8")
    p("s_cselect_b32 s20, s50, s52")
    p("s_cselect_b32 s21, s51, s53")
    p(f"s_mov_b32 s22, {512*1024}")
    p("s_mov_b32 s23, 0x00020000")
    srd(p, 16, 62, 512*1024)
    p(f"s_mov_b32 s68, {EPO}")
    vm.issue("buffer_load_dword v203, off, s[12:15], s68", "g")
    vm.issue("buffer_load_dwordx4 v[204:207], v202, s[8:11], 0 offen", "g")
    vm.issue("buffer_load_dwordx4 v[208:211], v202, s[8:11], 0 offen offset:16", "g")
    vm.issue("buffer_load_dwordx4 v[212:215], v201, s[24:27], 0 offen", "g")
    vm.issue("buffer_load_dwordx4 v[216:219], v201, s[24:27], 0 offen offset:16", "g")
    p("s_mov_b32 s64, s72"); p("s_mov_b32 s65, s73")
    if OPT.get("cpf", 1):
        p("s_getpc_b64 s[68:69]")
        p.label("L_pc")
        p("s_lshr_b32 s72, s2, 3")
        p("s_lshl_b32 s72, s72, 2")
        p("s_add_u32 s72, s72, s4")
        p("s_lshl_b32 s72, s72, 8")
        p(f"s_min_u32 s72, s72, L_codeend-L_pc-256")
        p("s_add_u32 s68, s68, s72")
        p("s_addc_u32 s69, s69, 0")
        p("v_lshlrev_b32 v231, 2, v0")
        vm.issue("global_load_dword v231, v231, s[68:69]", "g")
    p("s_cmp_eq_u32 s4, 1")
    p("s_cselect_b32 s28, s44, s42"); p("s_cselect_b32 s29, s45, s43")
    p("s_cmp_eq_u32 s4, 2")
    p("s_cselect_b32 s28, s54, s28"); p("s_cselect_b32 s29, s55, s29")
    p("s_movk_i32 s30, 1024")
    p("s_mov_b32 s31, 0x00020000")
    p("s_lshl_b32 s68, s35, 6")
    vm.issue("buffer_load_ushort v231, off, s[28:31], s68", "g")
    if OPT.get("bwarm", 0):
        p("s_cmp_lt_u32 s4, 2")
        p("s_cselect_b32 s28, s46, s48")
        p("s_cselect_b32 s29, s47, s49")
        p(f"s_mov_b32 s30, {512*1024}")
        p("s_mov_b32 s31, 0x00020000")
        p("s_lshl_b32 s68, s35, 3")
        p("s_and_b32 s69, s34, 3")
        p("s_lshl_b32 s69, s69, 1")
        p("s_add_u32 s68, s68, s69")
        p("s_and_b32 s69, s4, 1")
        p("s_add_u32 s68, s68, s69")
        p("s_lshl_b32 s68, s68, 12")
        if OPT.get("bdelay"): p(f"s_sleep {OPT['bdelay']}")
        for q in range(4):
            vm.issue(f"buffer_load_dwordx4 v[232:235], v3, s[28:31], s68 offen offset:{q*1024}", "g")
    p("v_lshrrev_b32 v18, 1, v2")
    p("v_and_b32 v18, 7, v18")
    p("v_lshl_add_u32 v19, v2, 7, s6")
    for ks in range(4):
        p(f"v_add_u32 v20, {2*ks}, v1")
        p("v_xor_b32 v20, v20, v18")
        p(f"v_lshl_add_u32 v{XA+ks}, v20, 4, v19")
    p("v_bfe_u32 v18, v0, 2, 2")
    p("v_lshl_add_u32 v18, v1, 3, v18")
    p("v_mul_u32_u24 v18, 192, v18")
    p("v_bfe_u32 v19, v0, 4, 1")
    p("v_lshl_add_u32 v18, v19, 5, v18")
    p("v_and_b32 v19, 3, v0")
    p("v_lshl_add_u32 v18, v19, 3, v18")
    p(f"v_add_u32 v{WA}, {WR}, v18")
    p("v_and_b32 v13, 0x33, v0")
    p("v_bfe_u32 v19, v0, 2, 1")
    p("v_lshl_or_b32 v13, v19, 3, v13")
    p("v_bfe_u32 v19, v0, 3, 1")
    p("v_lshl_or_b32 v13, v19, 2, v13")
    p("v_lshlrev_b32 v13, 4, v13")
    p(f"v_add_u32 v13, {KF}, v13")
    p("v_bfe_u32 v14, v0, 4, 1")
    p("v_lshlrev_b32 v14, 16, v14")
    p("v_lshl_add_u32 v14, v1, 8, v14")
    p("v_and_b32 v20, 15, v0")
    p("v_lshl_add_u32 v14, v20, 4, v14")
    p(f"v_add_u32 v14, {VF}, v14")
    p("s_lshl_b32 s42, s7, 10")
    p("s_lshl_b32 s43, s35, 17")
    p("s_add_u32 s42, s42, s43")
    p("s_add_u32 s43, s42, 0x10000")
    p("s_lshl_b32 s41, s35, 6")
    p("s_add_u32 s41, s41, s7")
    att_setup()
    ACC = [104, 120, 136]; FR = [152, 168, 184]
    def rd0(kk):
        b = FR[kk % 3]; st = kk >> 2; ks = kk & 3; sl = st % 3
        p(f"ds_read_b128 {vr(b,4)}, v{XA+ks} offset:{sl * 4096}")
        for T in range(3):
            for e in range(2):
                p(f"ds_read_b64_tr_b16 {vr(b+4+4*T+2*e,2)}, v{WA} offset:{sl*12288 + ks*3072 + e*768 + T*64}")
    def mm0(kk):
        b = FR[kk % 3]
        c = [vr(a, 16) if kk else "0" for a in ACC]
        p(f"v_mfma_f32_32x32x16_bf16 {vr(ACC[0],16)}, {vr(b+4,4)}, {vr(b,4)}, {c[0]}")
        p(f"v_mfma_f32_32x32x16_bf16 {vr(ACC[1],16)}, {vr(b+8,4)}, {vr(b,4)}, {c[1]}")
        p(f"v_mfma_f32_32x32x16_bf16 {vr(ACC[2],16)}, {vr(b,4)}, {vr(b+12,4)}, {c[2]}")
    def side_jobs():
        vm.drain()
        p("v_readfirstlane_b32 s32, v203")
        p("v_mov_b32 v220, 0")
        for i in range(8):
            p(f"v_dot2_f32_bf16 v220, v{204+i}, v{212+i}, v220")
        p("s_mul_i32 s32, s32, 0x9E3779B1")
        p("s_add_u32 s32, s32, 0x7F4A7C15")
        p("s_xor_b32 s33, s32, 0x5BD1E995")
        for i in range(4): p(f"v_mov_b32 v{224+i}, -1")
        p("s_lshl_b32 s68, s46, 15")
        p("s_lshl_b32 s69, s36, 10")
        p("s_add_u32 s68, s68, s69")
        p(f"s_add_u32 s68, s68, {OF}")
        p("s_add_u32 s69, s68, 0x8000")
        p("buffer_store_dwordx4 v[224:227], v3, s[12:15], s68 offen sc1")
        p("buffer_store_dwordx4 v[224:227], v3, s[12:15], s69 offen sc1")
        for sh in (8, 4, 2, 1):
            p(f"v_add_f32_dpp v220, v220, v220 row_ror:{sh} row_mask:0xf bank_mask:0xf")
        p("v_mov_b32 v221, v220")
        p("v_permlane16_swap_b32 v221, v220")
        p("v_add_f32 v220, v220, v221")
        p("v_cvt_pk_bf16_f32 v220, v220, v220")
        p("v_and_b32 v220, 0xffff0000, v220")
        p(f"v_mul_f32 v220, {f2u(-math.log2(math.e)):#x}, v220")
        p("v_exp_f32 v220, v220")
        p("v_add_f32 v220, 1.0, v220")
        p("v_rcp_f32 v220, v220")
        p("v_cvt_pk_bf16_f32 v220, v220, v220")
        p("v_and_b32 v220, 0xffff0000, v220")
        p("v_lshrrev_b32 v221, 3, v200")
        p("v_and_b32 v200, 7, v200")
        p("v_lshlrev_b32 v200, 2, v200")
        p("v_lshl_add_u32 v200, v221, 7, v200")
        p(f"s_mov_b32 s68, {GG}")
        p("buffer_store_dword v220, v200, s[12:15], s68 offen sc1")
    if OPT.get("side_st", 1) < 0: side_jobs()
    mk("pro")
    p("s_barrier")
    rd0(0); rd0(1)
    for st in range(8):
        k = 4 * st
        p("s_waitcnt lgkmcnt(7)"); mm0(k); rd0(k + 2)
        p("s_waitcnt lgkmcnt(7)"); mm0(k + 1); rd0(k + 3)
        p("s_waitcnt lgkmcnt(7)"); mm0(k + 2)
        p("s_waitcnt lgkmcnt(0)")
        p("s_barrier")
        tr("b")
        if st < 7: rd0(k + 4)
        mm0(k + 3)
        if st < 7: rd0(k + 5)
        if st == OPT.get("side_st", 1): side_jobs()
    mk("t1")
    p(f"s_mov_b32 s71, {f2u(QSCALE):#x}")
    T = 152
    for hd in range(2):
        a = ACC[hd]
        for i in range(4):
            p(f"v_cvt_pk_bf16_f32 v{T+4+i}, v{a+8+2*i}, v{a+8+2*i+1}")
        p(f"buffer_store_dwordx4 {vr(T+4,4)}, v13, s[12:15], s{42+hd} offen sc1")
        T += 8
    a = ACC[2]
    for i in range(8):
        p(f"v_cvt_pk_bf16_f32 v{T+i}, v{a+2*i}, v{a+2*i+1}")
    p(f"buffer_store_dwordx4 {vr(T,4)}, v14, s[12:15], s42 offen sc1")
    p(f"buffer_store_dwordx4 {vr(T+4,4)}, v14, s[12:15], s42 offen offset:512 sc1")
    T = 152
    for hd in range(2):
        a = ACC[hd]
        for i in range(4):
            p(f"v_cvt_pk_bf16_f32 v{T+i}, v{a+2*i}, v{a+2*i+1}")
        for i in range(4):
            p(f"v_lshlrev_b32 v{a+2*i}, 16, v{T+i}")
            p(f"v_and_b32 v{a+2*i+1}, 0xffff0000, v{T+i}")
        for i in range(8):
            p(f"v_mul_f32 v{a+i}, s71, v{a+i}")
        for i in range(4):
            p(f"v_cvt_pk_bf16_f32 v{T+i}, v{a+2*i}, v{a+2*i+1}")
        p(f"buffer_store_dwordx4 {vr(T,4)}, v3, s[12:15], s{42+hd} offen sc1")
        T += 8
    p("s_lshl_b32 s40, s41, 6")
    p(f"s_add_u32 s40, s40, {FL1}")
    fl1_addr()
    p("s_waitcnt vmcnt(0)")
    publish(p, 40)
    if OPT.get("b0", 6) == 7:
        p(f"v_mov_b32 v5, {LF + 8}")
        p("s_mov_b64 exec, 1")
        p(f"ds_inc_u32 v5, v{IDX}")
        p("s_mov_b64 exec, -1")
    mk("pub")
    group_poll(OPT["pfirst"])
    tr("p1")
    att_start(st_)
    p("s_branch L_SCHED")

    p.label("L_G1")
    st1 = Stamps(p, 0); st1.n = 1
    vm = VM(p)
    XO = 240; WO = 244; BO = 247; XA1 = 224; BA = 228
    XF = 8; BF = [136, 144, 152]; LT = 210
    p("s_lshl_b32 s72, s7, 15")
    p("v_lshrrev_b32 v22, 3, v0")
    p("v_and_b32 v23, 7, v0")
    p("v_bfe_u32 v24, v22, 2, 1")
    p("v_and_b32 v25, 3, v22")
    p("v_lshl_add_u32 v24, v24, 4, v25")
    for j in range(4):
        p(f"v_add_u32 v18, {8*j}, v22")
        p("v_bfe_u32 v19, v18, 1, 3")
        p("v_xor_b32 v19, v19, v23")
        p(f"v_lshlrev_b32 v{30+j}, 4, v19")
        p(f"v_lshl_add_u32 v20, v24, 10, v{30+j}")
        p(f"v_add_u32 v20, {j*4096 - j*1024}, v20")
        p(f"v_add_u32 v{XO+j}, s72, v20")
    if OPT["rot"]:
        p("s_and_b32 s80, s34, 3")
        p("s_lshl_b32 s80, s80, 1")
        p("s_add_u32 s80, s80, s35")
    else:
        p("s_mov_b32 s80, 0")
    p("s_mul_i32 s73, s4, 3072")
    p(f"s_add_u32 s73, s73, {WR}")
    def dma(st, mid=None):
        p(f"s_add_u32 s74, s80, {st}")
        p("s_and_b32 s74, s74, 7")
        p(f"s_add_u32 m0, s6, {(st % 3) * 4096}")
        p("s_lshl_b32 s72, s74, 7")
        for j in range(4):
            vm.issue(f"buffer_load_dwordx4 v{XO+j}, s[8:11], s72 offen offset:{j*1024} lds", ("S", st))
        if mid: mid()
        p(f"s_add_u32 m0, s73, {(st % 3) * 12288}")
        p(f"s_mul_i32 s72, s74, {64*3072}")
        for j in range(3):
            vm.issue(f"buffer_load_dwordx4 v{WO+j}, s[16:19], s72 offen offset:{j*1024} lds", ("S", st))
    def dma_b(q):
        p(f"s_add_u32 s74, s75, {2*q}")
        p("s_and_b32 s74, s74, 7")
        p(f"s_add_u32 m0, s77, {q * 8192}")
        p("s_lshl_b32 s72, s74, 7")
        for j in range(4):
            vm.issue(f"buffer_load_dwordx4 v{BO+j}, s[20:23], s72 offen offset:{j*1024} lds", ("B", q))
    p("s_waitcnt lgkmcnt(0)")
    srd(p, 8, 40, 2048*1024)
    def wcalc():
        p("s_lshl_b32 s76, s35, 6")
        p("s_mul_i32 s77, s4, 16*3072")
        p("s_add_u32 s76, s76, s77")
        p("s_movk_i32 s77, 3072")
        for j in range(3):
            p(f"v_add_u32 v18, {64*j}, v0")
            p("v_mul_u32_u24 v19, 43691, v18")
            p("v_lshrrev_b32 v19, 19, v19")
            p("v_mul_u32_u24 v20, 12, v19")
            p("v_sub_u32 v20, v18, v20")
            p("v_cmp_gt_u32 vcc, 8, v20")
            p("v_bfe_u32 v21, v20, 1, 1")
            p("v_lshlrev_b32 v21, 10, v21")
            p("v_lshrrev_b32 v26, 2, v20")
            p("v_lshl_add_u32 v21, v26, 5, v21")
            p("v_and_b32 v26, 1, v20")
            p("v_lshl_add_u32 v21, v26, 4, v21")
            p("v_lshlrev_b32 v26, 4, v20")
            p(f"v_add_u32 v26, {2048-128}, v26")
            p("v_cndmask_b32 v21, v26, v21, vcc")
            p("v_mad_u32_u24 v21, v19, s77, v21")
            if j: p(f"v_subrev_u32 v21, {j*1024}, v21")
            p(f"v_add_u32 v{WO+j}, s76, v21")
        srd(p, 16, 60, 512*3072)
    dma(0, wcalc); dma(1)
    srd(p, 12, 70, WS_USED)
    p("s_cmp_lt_u32 s4, 2")
    p("s_cselect_b32 s20, s46, s48")
    p("s_cselect_b32 s21, s47, s49")
    p(f"s_mov_b32 s22, {512*1024}")
    p("s_mov_b32 s23, 0x00020000")
    p("s_and_b32 s75, s4, 1")
    p("s_lshl_b32 s77, s75, 12")
    p("s_add_u32 s75, s75, s80")
    p("s_lshr_b32 s76, s4, 1")
    p("s_lshl_b32 s76, s76, 15")
    p("s_add_u32 s77, s77, s76")
    p(f"s_add_u32 s77, s77, {BR}")
    p("s_lshl_b32 s69, s35, 15")
    for j in range(4):
        p(f"v_lshl_add_u32 v20, v22, 10, v{30+j}")
        p(f"v_add_u32 v20, {j*8192 - j*1024}, v20")
        p(f"v_add_u32 v{BO+j}, s69, v20")
    p("v_lshlrev_b32 v18, 2, v0")
    p(f"v_add_u32 v18, {LF}, v18")
    p("v_mov_b32 v19, 0")
    p("ds_write_b32 v18, v19")
    p("v_bfe_u32 v165, v2, 1, 3")
    p("v_lshlrev_b32 v166, 7, v2")
    p("v_add_u32 v167, s6, v166")
    p(f"v_add_u32 v166, {BR}, v166")
    for ks in range(4):
        p(f"v_add_u32 v160, {2*ks}, v1")
        p("v_xor_b32 v160, v160, v165")
        p(f"v_lshl_add_u32 v{XA1+ks}, v160, 4, v167")
        p(f"v_lshl_add_u32 v{BA+ks}, v160, 4, v166")
    def small_loads():
        p(f"s_mov_b32 s68, {EPO}")
        vm.issue("buffer_load_dword v163, off, s[12:15], s68", "lam")
        p("s_lshl_b32 s68, s35, 6")
        p("v_lshl_add_u32 v164, v2, 1, s68")
        srd(p, 24, 42, 1024)
        vm.issue(f"buffer_load_ushort v{LT}, v164, s[24:27], 0 offen", "lam")
        srd(p, 28, 44, 1024)
        vm.issue(f"buffer_load_ushort v{LT+1}, v164, s[28:31], 0 offen", "lam")
        p("s_mov_b32 s24, s54"); p("s_mov_b32 s25, s55")
        vm.issue(f"buffer_load_ushort v{LT+2}, v164, s[24:27], 0 offen", "lam")
    mk("pro", st1)
    B0 = OPT.get("b0", 6)
    for st in range(8):
        vm.wait([("S", st)] + ([("B", 3)] if st == 7 and B0 < 5 else []), "lgkmcnt(0)")
        p("s_barrier")
        for ks in range(4):
            p(f"ds_read_b128 {vr(XF + 16*st + 4*ks, 4)}, v{XA1+ks} offset:{(st % 3) * 4096}")
        if st + 2 < 8: dma(st + 2)
        if st == 2: small_loads()
        if B0 <= st < B0 + 4 and B0 < 5: dma_b(st - B0)

        if B0 == 6 and st == 6: dma_b(0)
        if st == 5:
            vm.wait("lam")
            p("v_readfirstlane_b32 s32, v163")
            lam_compute(p, L, LT)
            p("s_mul_i32 s32, s32, 0x9E3779B1")
            p("s_add_u32 s32, s32, 0x7F4A7C15")
            p("s_xor_b32 s33, s32, 0x5BD1E995")
    def rd1(kk):
        b = BF[kk % 3]; s = kk >> 2; ks = kk & 3
        p(f"ds_read_b128 {vr(b,4)}, v{BA+ks} offset:{s*4096}")
        p(f"ds_read_b128 {vr(b+4,4)}, v{BA+ks} offset:{s*4096 + 32768}")
    p("s_waitcnt lgkmcnt(0)")
    if B0 < 5: rd1(0); rd1(1)
    p("s_barrier")
    mk("t1", st1)
    p("s_setprio 1")
    if B0 == 7:
        p(f"v_mov_b32 v160, {LF + 8}")
        lds_spin(p, 160, 4)
    if B0 >= 5:
        for q in range(1 if B0 == 6 else 0, 4): dma_b(q)
        p(f"v_mov_b32 v160, {LF + 4}")
        p("v_mov_b32 v161, -1")
        vm.drain()
        p("s_mov_b64 exec, 1")
        p("ds_inc_u32 v160, v161")
        p("s_mov_b64 exec, -1")
        lds_spin(p, 160, 4)
        tr("bok")
        rd1(0); rd1(1)
    for kk in range(32):
        b = BF[kk % 3]
        if kk + 2 < 32:
            rd1(kk + 2); p("s_waitcnt lgkmcnt(4)")
        elif kk + 2 == 32: p("s_waitcnt lgkmcnt(2)")
        else: p("s_waitcnt lgkmcnt(0)")
        p(f"v_mfma_f32_32x32x16_bf16 {vr(RE,16)}, {vr(XF+4*kk,4)}, {vr(b,4)}, {vr(RE,16) if kk else 0}")
        p(f"v_mfma_f32_32x32x16_bf16 {vr(IM,16)}, {vr(XF+4*kk,4)}, {vr(b+4,4)}, {vr(IM,16) if kk else 0}")
    a0, a1 = 210, 212
    p("s_lshl_b32 s68, s4, 9")
    p(f"s_add_u32 s68, s68, {EXC}")
    p("v_lshl_add_u32 v18, v0, 3, s68")
    p(f"v_lshlrev_b32 v19, 3, v2")
    p(f"v_add_u32 v19, {EXC}, v19")
    p("s_lshl_b32 s68, s4, 1")
    p("v_add_u32 v20, s68, v1")
    p(f"v_mov_b32 v21, {LF}")
    p("v_mov_b32 v22, -1")
    p(f"v_add_f32 v{L+2}, v{L+2}, v{L+2}")
    p(f"v_add_f32 v{L+3}, v{L+3}, v{L+3}")
    hr, hi = RE, IM
    for r in range(16):
        p(f"v_mul_f32 v214, v{L+3}, v{IM+r}")
        p(f"v_mul_f32 v215, v{L+3}, v{RE+r}")
        p(f"v_fma_f32 v{RE+r}, v{L+2}, v{RE+r}, -v214")
        p(f"v_fma_f32 v{IM+r}, v{L+2}, v{IM+r}, v215")
        if r == 0: continue
        d = a0 if r & 1 else a1
        p(f"v_fma_f32 v{d}, v{L}, v{hr}, v{RE+r}")
        p(f"v_fma_f32 v{d+1}, v{L}, v{hi}, v{IM+r}")
        p(f"v_fma_f32 v{d}, -v{L+1}, v{hi}, v{d}")
        p(f"v_fmac_f32 v{d+1}, v{L+1}, v{hr}")
        hr, hi = d, d + 1
    p(f"ds_write_b64 v18, {vr(hr,2)}")
    p("s_waitcnt lgkmcnt(0)")
    p("s_mov_b64 exec, 1")
    p("ds_inc_u32 v21, v22")
    p("s_mov_b64 exec, -1")
    lds_spin(p, 21, 4)
    SUB = 136
    for j in range(8):
        p(f"ds_read_b64 {vr(SUB+2*j,2)}, v19 offset:{j*256}")
    PW = 214
    p(f"v_mov_b32 v{CAR}, 0"); p(f"v_mov_b32 v{CAR+1}, 0")
    p(f"v_mov_b32 v{PW}, 1.0"); p(f"v_mov_b32 v{PW+1}, 0")
    p("s_waitcnt lgkmcnt(0)")
    cr, ci = SUB, SUB + 1
    pr, pi = L + 4, L + 5
    for j in range(1, 8):
        p(f"v_cmp_eq_u32 vcc, {j}, v20")
        d = a0 if j & 1 else a1
        p(f"v_fma_f32 v{d}, v{L+4}, v{cr}, v{SUB+2*j}")
        p(f"v_fma_f32 v{d+1}, v{L+4}, v{ci}, v{SUB+2*j+1}")
        p(f"v_cndmask_b32 v{CAR}, v{CAR}, v{cr}, vcc")
        p(f"v_cndmask_b32 v{CAR+1}, v{CAR+1}, v{ci}, vcc")
        p(f"v_cndmask_b32 v{PW}, v{PW}, v{pr}, vcc")
        p(f"v_cndmask_b32 v{PW+1}, v{PW+1}, v{pi}, vcc")
        p(f"v_fma_f32 v{d}, -v{L+5}, v{ci}, v{d}")
        p(f"v_fmac_f32 v{d+1}, v{L+5}, v{cr}")
        cr, ci = d, d + 1
        if j < 7:
            q = 216 if j & 1 else 218
            cmul(p, q, q + 1, pr, pi, L + 4, L + 5)
            pr, pi = q, q + 1
    p("s_lshl_b32 s68, s35, 8")
    p("v_lshl_add_u32 v18, v2, 3, s68")
    p("s_lshl_b32 s68, s34, 12")
    p(f"s_add_u32 s68, s68, {EE}")
    p("s_cmp_eq_u32 s4, 0")
    p("s_cbranch_scc0 L_noE")
    p(f"buffer_store_dwordx2 {vr(cr,2)}, v18, s[12:15], s68 offen sc1")
    p.label("L_noE")
    p(f"v_mov_b32 v{L+4}, v{PW}"); p(f"v_mov_b32 v{L+5}, v{PW+1}")
    p("s_mul_i32 s68, s4, 2560")
    p(f"s_add_u32 s68, s68, {P2}")
    p("v_mul_u32_u24 v4, 80, v2")
    p("v_lshl_add_u32 v4, v1, 5, v4")
    p(f"v_add_u32 v{L+2}, s68, v4")
    p("v_bfe_u32 v4, v0, 2, 2")
    p("v_lshl_add_u32 v4, v1, 3, v4")
    p("v_mul_u32_u24 v4, 80, v4")
    p("v_and_b32 v5, 1, v0")
    p("v_lshl_add_u32 v4, v5, 5, v4")
    p("v_bfe_u32 v5, v0, 4, 1")
    p("v_lshl_add_u32 v4, v5, 4, v4")
    p("v_bfe_u32 v5, v0, 1, 1")
    p("v_lshl_add_u32 v4, v5, 3, v4")
    p(f"v_add_u32 v{L+3}, s68, v4")
    att_setup()
    fl1_addr()
    p("s_cmp_eq_u32 s4, 0")
    p("s_cbranch_scc0 L_noEf")
    p("s_lshl_b32 s69, s35, 10")
    p("s_lshl_b32 s70, s34, 6")
    p("s_add_u32 s69, s69, s70")
    p(f"s_add_u32 s69, s69, {FLE}")
    p("s_waitcnt vmcnt(0)")
    publish(p, 69)
    p.label("L_noEf")
    mk("pub", st1)
    group_poll(0)
    tr("p1")
    att_start(st1)

    p.label("L_SCHED")
    assert st_.n == st1.n or not STAMP
    ADP = OPT["adp"]; T0 = OPT["t0"]
    def ldT(t):
        b = TB[t & 1]; o = (t & 3) * 1024
        p(f"buffer_load_dwordx4 {vr(b,4)}, v3, s[12:15], s47 offen offset:{o} sc1")
        p(f"buffer_load_dwordx4 {vr(b+4,4)}, v3, s[12:15], s64 offen offset:{o} sc1")
        p(f"buffer_load_dwordx4 {vr(b+8,4)}, v3, s[12:15], s65 offen offset:{o} sc1")
        if (t & 3) == 3:
            p("s_add_u32 s47, s47, 4096"); p("s_add_u32 s64, s64, 4096"); p("s_add_u32 s65, s65, 4096")
    W0 = OPT["w0"]
    def ldW(n):
        jn, hh = n >> 3, n & 7
        p(f"buffer_load_dwordx4 {vr(WOR + 8*hh + 4*jn, 4)}, v3, s[12:15], s62 offen offset:{(hh & 3)*1024} sc1")
        if (n & 3) == 3: p(f"s_add_u32 s62, s62, {4096 if n != 7 else 32768 - 4096}")
    def trip(q):
        for it in range(2):
            i = 2 * q + it; b = it; nb = 1 - it
            t = i - 2 * T0 if q >= T0 else None
            for c in range(2):
                s = S[c]; sn = S[1 - c]
                e = lambda k: p(f"v_exp_f32 v{s+k}, v{s+k}")
                e(0); e(1)
                pv = V[b] if c else V[nb]
                p(f"v_smfmac_f32_32x32x32_bf16 {vr(O[1-c],16)}, {vr(pv+4,4)}, {vr(sn+8,8)}, v{IDX}")
                if c == 0:
                    if i + 1 < 32: rdV(nb, i + 1)
                else: p("s_waitcnt lgkmcnt(0)")
                e(2); e(3); e(4)
                kk = K[b] if c == 0 else K[nb]
                if not (i == 31 and c == 1):
                    p(f"v_mfma_f32_32x32x16_bf16 {vr(sn,16)}, {vr(kk,4)}, {vr(Q[1-c],4)}, 0")
                if c == 0 and i + 2 < 32: rdK(b, i + 2)
                if ADP and q < 15 and c == 1:
                    if it == 0:
                        p("s_mov_b64 exec, 1")
                        p(f"ds_inc_u32 v1, v{IDX}")
                        p(f"ds_inc_u32 v1, v{IDX} offset:8")
                        p("s_mov_b64 exec, -1")
                    else: p("v_readfirstlane_b32 s75, v6")
                e(5); e(6); e(7); e(8); e(9)
                p(f"v_smfmac_f32_32x32x32_bf16 {vr(O[c],16)}, {vr(V[b],4)}, {vr(s,8)}, v{IDX}")
                if t is not None and c == 0: p(f"s_waitcnt vmcnt({3 if t < 15 else 0})")
                if W0 <= q < W0 + 2:
                    n0 = (q - W0) * 8 + it * 4 + c * 2
                    for n in range(n0, n0 + 2): ldW(n)
                if ADP and q < 15 and c == 1:
                    if it == 0: p("ds_read_b32 v6, v1 offset:4")
                    else:
                        n_ = uid()
                        p(f"s_cmp_lt_u32 s75, {q + 1}")
                        p("s_setprio 0")
                        p(f"s_cbranch_scc1 Lpr{n_}")
                        p("s_setprio 1")
                        p.label(f"Lpr{n_}")
                e(10); e(11); e(12)
                if t is not None:
                    p(f"v_mfma_f32_32x32x16_bf16 {vr(ACA[c],16)}, {vr(TB[t & 1],4)}, {vr(TB[t & 1]+4+4*c,4)}, {vr(ACA[c],16) if t else 0}")
                    if c == 1 and t + 2 < 16: ldT(t + 2)
                e(13); e(14); e(15)
    def check_or_poll(soff, fr, dontcare=None, redo=None):
        n = uid()
        p("s_waitcnt vmcnt(0)")
        p(f"v_cmp_eq_u32 s[78:79], s32, v{fr}")
        p(f"v_cmp_eq_u32 vcc, s33, v{fr+1}")
        p("s_and_b64 s[78:79], s[78:79], vcc")
        if dontcare is not None: p(f"s_or_b64 s[78:79], s[78:79], s[{dontcare}:{dontcare+1}]")
        p("s_cmp_eq_u64 s[78:79], -1")
        p(f"s_cbranch_scc1 Lchk{n}")
        redo()
        poll(p, 6, soff, dontcare, fr=fr)
        p.label(f"Lchk{n}")
    def KVa():
        p("s_lshl_b32 s68, s5, 3")
        p(f"s_add_u32 s68, s68, {LF + 20}")
        p(f"s_waitcnt vmcnt({OPT.get('kva_n', 4)})")
        lds_count(None)
    def KVb():
        p("s_lshl_b32 s68, s5, 3")
        p(f"s_add_u32 s68, s68, {LF + 20}")
        p("v_mov_b32 v251, s68")
        lds_spin(p, 251, 4)
    def PL():
        p("buffer_load_dwordx4 v[232:235], v228, s[20:23], s64 offen")
        p("s_bitcmp1_b32 s4, 0")
        p("s_cbranch_scc1 L_nowo1")
        for j in range(8):
            p(f"buffer_load_ushort v{236+j}, v{229 + (j >> 2)}, s[16:19], s65 offen offset:{(j & 3)*1024}")
        p.label("L_nowo1")
    def PS():
        p("s_waitcnt vmcnt(0)")
        p("s_lshl_b32 s68, s41, 10")
        p(f"s_add_u32 s68, s68, {CF}")
        p("buffer_store_dwordx4 v[232:235], v3, s[12:15], s68 offen sc1")
        p("s_bitcmp1_b32 s4, 0")
        p("s_cbranch_scc1 L_nowo2")
        for i in range(4): p(f"v_lshl_or_b32 v{244+i}, v{237+2*i}, 16, v{236+2*i}")
        p("s_lshl_b32 s68, s41, 9")
        p(f"s_add_u32 s68, s68, {WOF}")
        p("buffer_store_dwordx4 v[244:247], v3, s[12:15], s68 offen sc1")
        p.label("L_nowo2")
    def PSb():
        p(f"s_add_u32 s40, s40, {FL2 - FL1}")
        p("s_waitcnt vmcnt(0)")
        publish(p, 40)
    def KVc():
        p("s_lshl_b32 s68, s5, 3")
        p(f"s_add_u32 s68, s68, {LF + 36}")
        p("s_waitcnt vmcnt(0)")
        lds_count(None)
    def KVd():
        p("s_lshl_b32 s68, s5, 3")
        p(f"s_add_u32 s68, s68, {LF + 36}")
        p("v_mov_b32 v251, s68")
        lds_spin(p, 251, 4)
    def W5a():
        p("v_and_b32 v6, 15, v0")
        p("v_bfe_u32 v252, v0, 4, 1")
        p("v_lshl_add_u32 v6, v252, 6, v6")
        p("v_lshlrev_b32 v6, 6, v6")
        p("s_lshl_b32 s41, s39, 13")
        p("s_lshl_b32 s68, s4, 10")
        p("s_add_u32 s41, s41, s68")
        p(f"s_add_u32 s41, s41, {FL2}")
        p("buffer_load_dwordx2 v[252:253], v6, s[12:15], s41 offen sc1")
    def W5b():
        check_or_poll(41, 252, redo=W5a)
        p("s_lshl_b32 s62, s39, 16")
        p("s_lshl_b32 s69, s4, 13")
        p("s_add_u32 s62, s62, s69")
        p(f"s_add_u32 s62, s62, {WOF}")
    def E3a():
        p("v_min_u32 v6, 15, v0")
        p("v_cmp_le_u32 s[42:43], s34, v6")
        p("v_lshlrev_b32 v6, 6, v6")
        p("s_lshl_b32 s48, s35, 10")
        p(f"s_add_u32 s48, s48, {FLE}")
        p("buffer_load_dwordx2 v[4:5], v6, s[12:15], s48 offen sc1")
    def E3b():
        check_or_poll(48, 4, 42, redo=E3a)
        p("v_and_b32 v6, 31, v0")
        p("s_lshl_b32 s68, s35, 8")
        p("v_lshl_add_u32 v6, v6, 3, s68")
        p(f"s_mov_b32 s68, {EE}")
        for c in range(15):
            p(f"s_cmp_le_u32 s34, {c}")
            p("s_cbranch_scc1 L_E3bx")
            p(f"buffer_load_dwordx2 {vr(EB+2*c,2)}, v6, s[12:15], s68 offen sc1")
            p("s_add_u32 s68, s68, 4096")
        p.label("L_E3bx")
    def E4():
        p("s_waitcnt vmcnt(0)")
        p("v_mov_b32 v240, 0"); p("v_mov_b32 v241, 0")
        for c in range(15):
            p(f"s_cmp_le_u32 s34, {c}")
            p("s_cbranch_scc1 L_hin")
            p(f"v_fmac_f32 v{EB+2*c}, v{L+6}, v240")
            p(f"v_fmac_f32 v{EB+2*c+1}, v{L+6}, v241")
            p(f"v_fma_f32 v242, -v{L+7}, v241, v{EB+2*c}")
            p(f"v_fma_f32 v241, v{L+7}, v240, v{EB+2*c+1}")
            p("v_mov_b32 v240, v242")
        p.label("L_hin")
        p(f"v_fmac_f32 v{CAR}, v{L+4}, v240")
        p(f"v_fmac_f32 v{CAR+1}, v{L+4}, v241")
        p(f"v_fma_f32 v{CAR}, -v{L+5}, v241, v{CAR}")
        p(f"v_fmac_f32 v{CAR+1}, v{L+5}, v240")
        pr, pi = CAR, CAR + 1
        PK = 234
        for r in range(16):
            p(f"v_fmac_f32 v{RE+r}, v{L}, v{pr}")
            p(f"v_fmac_f32 v{IM+r}, v{L}, v{pi}")
            p(f"v_fma_f32 v{RE+r}, -v{L+1}, v{pi}, v{RE+r}")
            p(f"v_fmac_f32 v{IM+r}, v{L+1}, v{pr}")
            pr, pi = RE + r, IM + r
            if r & 1:
                p(f"v_cvt_pk_bf16_f32 v{PK + (r >> 1)}, v{RE+r-1}, v{RE+r}")
                p(f"v_cvt_pk_bf16_f32 v{PK + 8 + (r >> 1)}, -v{IM+r-1}, -v{IM+r}")
        p("s_lshl_b32 s68, s7, 16")
        p("s_lshl_b32 s69, s35, 11")
        p("s_add_u32 s68, s68, s69")
        p(f"s_add_u32 s68, s68, {HF}")
        p("s_add_u32 s69, s68, 0x8000")
        for pl in range(2):
            for q in range(2):
                p(f"ds_write_b128 v{L+2}, {vr(PK + 8*pl + 4*q, 4)} offset:{q*16}")
            for kl in range(2):
                for e_ in range(2):
                    p(f"ds_read_b64_tr_b16 {vr(210 + 8*pl + 4*kl + 2*e_, 2)}, v{L+3} offset:{(16*kl + 4*e_)*80}")
        for pl in range(2):
            p(f"s_waitcnt lgkmcnt({6 if pl == 0 else 0})")
            for kl in range(2):
                p(f"buffer_store_dwordx4 {vr(210 + 8*pl + 4*kl, 4)}, v3, s[12:15], s{68+pl} offen offset:{kl*1024} sc1")
    def E4b():
        p("s_lshl_b32 s68, s7, 10")
        p("s_lshl_b32 s69, s35, 6")
        p("s_add_u32 s68, s68, s69")
        p(f"s_add_u32 s68, s68, {FLH}")
        p("s_waitcnt vmcnt(0)")
        publish(p, 68)
    def E5a():
        p("v_and_b32 v4, 7, v0")
        p("v_and_b32 v5, 4, v4")
        p("v_and_b32 v4, 3, v4")
        p("v_lshl_add_u32 v4, v5, 1, v4")
        p("v_and_b32 v5, 3, v0")
        p("v_add_u32 v4, v4, v5")
        p("s_lshr_b32 s68, s49, 5")
        p("v_add_u32 v4, s68, v4")
        p("s_lshl_b32 s68, s4, 4")
        p("s_bfe_u32 s69, s49, 0x20003")
        p("s_lshl_b32 s69, s69, 2")
        p("s_add_u32 s68, s68, s69")
        p("s_bfe_u32 s69, s49, 0x20001")
        p("s_add_u32 s68, s68, s69")
        p("v_lshl_add_u32 v4, v4, 6, s68")
        p("s_lshl_b32 s68, s49, 4")
        p(f"s_add_u32 s68, s68, {(FLH - FL1) // 64}")
        p("v_cmp_gt_u32 vcc, 16, v0")
        p("v_add_u32 v5, s68, v0")
        p(f"s_mov_b32 s48, {FL1}")
        p("v_cndmask_b32 v6, v4, v5, vcc")
        p("v_bfe_u32 v5, v0, 2, 2")
        p("v_mul_u32_u24 v5, 5, v5")
        p("v_and_b32 v5, 9, v5")
        p("s_and_b32 s68, s46, 3")
        p("s_lshl_b32 s68, s68, 1")
        p("v_add_u32 v5, s68, v5")
        p("v_and_b32 v4, 3, v0")
        p("s_and_b32 s68, s46, 0x3c")
        p("v_add_u32 v4, s68, v4")
        p("v_cmp_lt_u32 vcc, 31, v0")
        p("v_lshl_add_u32 v4, v5, 6, v4")
        p("v_cndmask_b32 v6, v6, v4, vcc")
        p("v_lshlrev_b32 v6, 6, v6")
        p("buffer_load_dwordx2 v[4:5], v6, s[12:15], s48 offen sc1")
    def E5b():
        check_or_poll(48, 4, redo=E5a)
        p("s_lshl_b32 s69, s4, 14")
        p("s_lshl_b32 s47, s49, 16")
        p("s_add_u32 s47, s47, s69")
        p(f"s_add_u32 s47, s47, {HF}")
        p("s_lshl_b32 s64, s39, 17")
        p("s_add_u32 s64, s64, s69")
        p(f"s_add_u32 s64, s64, {CF}")
        p("s_add_u32 s65, s64, 0x10000")
        p("s_and_b32 s68, s4, 1")
        p("s_lshl_b32 s68, s68, 3")
        p("s_lshl_b32 s40, s49, 5")
        p("s_add_u32 s40, s40, s68")
        p("s_lshr_b32 s68, s4, 1")
        p("s_lshl_b32 s68, s68, 5")
        p("s_lshl_b32 s41, s39, 6")
        p("s_add_u32 s41, s41, s68")
        p("v_lshrrev_b32 v4, 5, v0")
        p("v_and_b32 v5, 31, v0")
        p("s_lshl_b32 s68, s49, 9")
        p(f"s_add_u32 s68, s68, {GG}")
        p("v_lshlrev_b32 v6, 8, v4")
        for q in range(4):
            p(f"buffer_load_dwordx4 {vr(G16+4*q,4)}, v6, s[12:15], s68 offen offset:{(q & 1)*16 + (q >> 1)*128} sc1")
        srd(p, 24, 56, 1024)
        p("v_lshlrev_b32 v6, 1, v5")
        p("s_lshl_b32 s68, s41, 1")
        p(f"buffer_load_ushort v{D_}, v6, s[24:27], s68 offen")
        p("v_lshl_add_u32 v6, v4, 14, v6")
        p("s_lshl_b32 s69, s40, 10")
        p("s_add_u32 s68, s68, s69")
        for r in range(8):
            if r == 4: p("s_add_u32 s68, s68, 4096")
            p(f"buffer_load_ushort v{X_+r}, v6, s[8:11], s68 offen offset:{(r & 3)*1024}")
        p("v_bfe_u32 v4, v5, 2, 1")
        p("v_lshlrev_b32 v4, 4, v4")
        p("v_and_or_b32 v4, v5, 3, v4")
        p("v_lshrrev_b32 v5, 3, v5")
        p("v_lshl_add_u32 v4, v5, 2, v4")
        p("v_lshrrev_b32 v5, 3, v4")
        p("v_and_b32 v4, 7, v4")
        p("v_lshlrev_b32 v4, 2, v4")
        p("v_lshl_add_u32 v4, v5, 7, v4")
        p("s_lshl_b32 s68, s46, 9")
        p(f"s_add_u32 s68, s68, {GG}")
        p(f"buffer_load_dword v{OG}, v4, s[12:15], s68 offen sc1")
        ldT(0); ldT(1)
    fns = dict(KV2=lambda: kv_dma([2]), KV3=lambda: kv_dma([3]), KVc=KVc, KVd=KVd, PL=PL, PS=PS, PSb=PSb, KVa=KVa, KVb=KVb, W5a=W5a, W5b=W5b, E3a=E3a, E3b=E3b, E4=E4, E4b=E4b, E5a=E5a, E5b=E5b)
    for q in range(16):
        for ev in OPT["ev"].get(q, "").split():
            name, _, grp = ev.partition(":")
            if name in ("E3a", "E3b", "E4", "E4b"): grp = "1"
            if OPT.get("trev"): tr(name)
            if grp == "": fns[name]()
            else:
                lab = f"L_no{name}{grp}"
                p(f"s_cmp_eq_u32 s5, {grp}")
                p(f"s_cbranch_scc0 {lab}")
                fns[name]()
                p.label(lab)
            if OPT.get("trev"): tr(name + "x")
        trip(q); tr("trip")
    p(f"v_smfmac_f32_32x32x32_bf16 {vr(O[1],16)}, {vr(V[1]+4,4)}, {vr(S[1]+8,8)}, v{IDX}")
    mk("loop")
    AV = X_; OA = 8; ACB = [40, 56]; R = O[0]
    p("s_mul_i32 s68, s3, 2304")
    p(f"s_add_u32 s68, s68, {SCR}")
    p("v_add_u32 v4, s68, v3")
    p("v_lshl_add_u32 v5, v0, 2, s68")
    p("s_xor_b32 s68, s3, 4")
    p("s_mul_i32 s68, s68, 2304")
    p(f"s_add_u32 s68, s68, {SCR}")
    p("v_add_u32 v96, s68, v3")
    p("v_lshl_add_u32 v97, v0, 2, s68")
    p(f"v_sub_f32 v{OG}, 1.0, v{OG}")
    p("s_cmp_eq_u32 s5, 0")
    p("s_cbranch_scc0 L_red1")
    p(f"ds_write_b128 v4, {vr(O[1],4)}")
    p(f"ds_write_b128 v4, {vr(O[1]+4,4)} offset:1024")
    p(f"ds_write_b32 v5, v{O[1]+8} offset:2048")
    p("s_branch L_red2")
    p.label("L_red1")
    p(f"ds_write_b128 v4, {vr(O[0],4)}")
    p(f"ds_write_b128 v4, {vr(O[0]+4,4)} offset:1024")
    p(f"ds_write_b32 v5, v{O[0]+8} offset:2048")
    p("s_waitcnt lgkmcnt(0)")
    for i in range(9): p(f"v_mov_b32 v{O[0]+i}, v{O[1]+i}")
    p.label("L_red2")
    p(f"v_cvt_pk_bf16_f32 v{OG}, v{OG}, v{OG}")
    p("s_lshl_b32 s70, s46, 15")
    p("s_lshl_b32 s71, s36, 10")
    p("s_add_u32 s70, s70, s71")
    p(f"s_add_u32 s70, s70, {OF}")
    p(f"v_and_b32 v{OG}, 0xffff0000, v{OG}")
    p(f"s_mov_b32 s68, {f2u(2.0**-40):#x}")
    p(f"s_mov_b32 s69, {f2u(2.0**40):#x}")
    p(f"s_mov_b32 s42, {f2u(2.0**120):#x}")
    p("s_waitcnt lgkmcnt(0)")
    p("s_barrier")
    tr("bar")
    p(f"ds_read_b128 v[12:15], v96")
    p(f"ds_read_b128 v[16:19], v96 offset:1024")
    p(f"ds_read_b32 v20, v97 offset:2048")
    p("s_waitcnt lgkmcnt(0)")
    for i in range(9): p(f"v_add_f32 v{R+i}, v{R+i}, v{12+i}")
    p(f"v_max3_f32 v6, |v{R}|, |v{R+1}|, |v{R+2}|")
    p(f"v_max3_f32 v6, v6, |v{R+3}|, |v{R+4}|")
    p(f"v_max3_f32 v6, v6, |v{R+5}|, |v{R+6}|")
    p(f"v_max_f32 v6, v6, |v{R+7}|")
    p(f"v_cmp_le_f32 s[78:79], s68, v{R+8}")
    p(f"v_cmp_ge_f32 s[80:81], s69, v{R+8}")
    p(f"v_cmp_ge_f32 vcc, s42, v6")
    p("s_and_b64 s[78:79], s[78:79], s[80:81]")
    p("s_and_b64 s[78:79], s[78:79], vcc")
    p("s_cmp_eq_u64 s[78:79], -1" if not OPT["fallback"] else "s_cmp_eq_u64 s[78:79], 1")
    p("s_cbranch_scc0 L_slow")
    p.label("L_fin")
    p(f"v_rcp_f32 v6, v{R+8}")
    p(f"v_mul_f32 v6, v{OG}, v6")
    for i in range(8): p(f"v_mul_f32 v{R+i}, v6, v{R+i}")
    for i in range(4): p(f"v_cvt_pk_bf16_f32 v{88+i}, v{R+2*i}, v{R+2*i+1}")
    for i in range(4): p(f"v_min_u32 v{88+i}, -2, v{88+i}")
    p(f"buffer_store_dwordx4 {vr(88,4)}, v3, s[12:15], s70 offen sc1")
    tr("ost")
    def loadO():
        for hh in range(8):
            p(f"buffer_load_dwordx4 {vr(OA+4*hh,4)}, v3, s[12:15], s{47 + (hh >> 2)} offen offset:{(hh & 3)*1024} sc1")
    for t in range(32 - 2 * T0, 16):
        p(f"s_waitcnt vmcnt({(4 if t < 34 - 2 * T0 else 3) if t < 15 else (1 if T0 == 8.5 else 0)})" if t + 1 < 16 or True else "")
        for c in range(2):
            p(f"v_mfma_f32_32x32x16_bf16 {vr(ACA[c],16)}, {vr(TB[t & 1],4)}, {vr(TB[t & 1]+4+4*c,4)}, {vr(ACA[c],16)}")
        if t + 2 < 16: ldT(t + 2)
    p("s_lshl_b32 s47, s49, 15")
    p("s_lshl_b32 s74, s4, 13")
    p("s_add_u32 s47, s47, s74")
    p(f"s_add_u32 s47, s47, {OF}")
    p("s_add_u32 s48, s47, 4096")
    p(f"v_lshlrev_b32 v{D_}, 16, v{D_}")
    for i in range(8):
        p(f"v_lshlrev_b32 v{X_+i}, 16, v{X_+i}")
        p(f"v_mul_f32 v{X_+i}, v{D_}, v{X_+i}")
    for i in range(4): p(f"v_cvt_pk_bf16_f32 v{40+i}, v{X_+2*i}, v{X_+2*i+1}")
    p("s_bitcmp1_b32 s4, 0")
    p("s_cselect_b64 vcc, -1, 0")
    for i in range(4):
        p(f"v_lshlrev_b32 v{X_+2*i}, 16, v{40+i}")
        p(f"v_and_b32 v{X_+2*i+1}, 0xffff0000, v{40+i}")
    for i in range(8): p(f"v_cndmask_b32 v{44+i}, v{G16+i}, v{G16+8+i}, vcc")
    for i in range(8): p(f"v_mul_f32 v{AV+i}, v{44+i}, v{X_+i}")
    loadO()
    for jn in range(2):
        for r in range(16):
            p(f"v_mul_f32 v{ACA[jn]+r}, v{G16+r}, v{ACA[jn]+r}")
    p("s_lshl_b32 s68, s3, 13")
    p("v_add_u32 v232, s68, v3")
    p("s_lshl_b32 s68, s5, 15")
    p("s_lshl_b32 s74, s4, 11")
    p("s_add_u32 s68, s68, s74")
    p("v_add_u32 v233, s68, v3")
    p("v_lshrrev_b32 v4, 5, v0")
    p("v_and_b32 v5, 31, v0")
    p("v_lshlrev_b32 v5, 2, v5")
    p("v_lshl_add_u32 v234, v4, 15, v5")
    p("v_add_u32 v235, 4096, v234")
    p("s_lshl_b32 s40, s40, 11")
    p("s_lshl_b32 s41, s41, 2")
    p("s_add_u32 s40, s40, s41")
    p("s_add_u32 s41, s40, 8192")
    srd(p, 28, 66, 2048*2048)
    mk("pre")
    p(f"s_mov_b32 s81, {SPIN}")
    p.label("L_opoll")
    for hh in range(8):
        p(f"s_waitcnt vmcnt({7-hh})")
        for jn in range(2):
            p(f"v_mfma_f32_32x32x16_bf16 {vr(ACB[jn],16)}, {vr(OA+4*hh,4)}, {vr(WOR+8*hh+4*jn,4)}, {vr(ACB[jn],16) if hh else vr(ACA[jn],16)}")
        if hh == 0:
            p(f"v_max3_u32 v4, v{OA}, v{OA+1}, v{OA+2}")
            p(f"v_max_u32 v4, v4, v{OA+3}")
        else:
            p(f"v_max3_u32 v4, v4, v{OA+4*hh}, v{OA+4*hh+1}")
            p(f"v_max3_u32 v4, v4, v{OA+4*hh+2}, v{OA+4*hh+3}")
    p("v_cmp_eq_u32 s[78:79], -1, v4")
    p("s_sub_u32 s81, s81, 1")
    p("s_cbranch_scc1 L_opollx")
    p("s_cmp_eq_u64 s[78:79], 0")
    p("s_cbranch_scc1 L_opollx")
    p(f"s_sleep {OPT.get('osleep', 1)}")
    loadO()
    p("s_branch L_opoll")
    p.label("L_opollx")
    tr("ook")
    for q in range(8):
        p(f"ds_write_b128 v232, {vr(40+4*q,4)} offset:{q*1024}")
    p("s_waitcnt lgkmcnt(0)")
    p("s_barrier")
    for k in range(4):
        p(f"ds_read_b128 {vr(72+8*k,4)}, v233 offset:{k*8192}")
        p(f"ds_read_b128 {vr(76+8*k,4)}, v233 offset:{k*8192+1024}")
    p("s_waitcnt lgkmcnt(4)")
    for i in range(8):
        p(f"v_add_f32 v{72+i}, v{72+i}, v{80+i}")
        p(f"v_add_f32 v{72+i}, v{72+i}, v{AV+i}")
    p("s_waitcnt lgkmcnt(0)")
    for i in range(8):
        p(f"v_add_f32 v{88+i}, v{88+i}, v{96+i}")
        p(f"v_add_f32 v{88+i}, v{72+i}, v{88+i}")
        p(f"buffer_store_dword v{88+i}, v{234 + ((i >> 1) & 1)}, s[28:31], s{40 if i < 4 else 41} offen offset:{(i & 1)*2048} {OPT.get('outsc', '')}")
    p("s_or_b32 s68, s2, s3")
    p("s_cmp_eq_u32 s68, 0")
    p("s_cbranch_scc0 L_noep")
    p(f"s_mov_b32 s68, {EPO}")
    p("v_mov_b32 v4, s32")
    p("s_mov_b64 exec, 1")
    p("buffer_store_dword v4, off, s[12:15], s68 sc1")
    p("s_mov_b64 exec, -1")
    p.label("L_noep")
    st_.end(12, 3, 8, 4)
    if TRACE:
        p("s_waitcnt vmcnt(0)"); tr("end")
        p("s_lshl_b32 s82, s2, 3"); p("s_add_u32 s82, s82, s3"); p("s_lshl_b32 s82, s82, 9"); p(f"s_add_u32 s82, s82, {STAMP_OFF}")
        p("v_lshlrev_b32 v4, 2, v0")
        p("buffer_store_dword v254, v4, s[12:15], s82 offen"); p("buffer_store_dword v255, v4, s[12:15], s82 offen offset:256")
        open("sites.txt", "w").write(repr({v: k for k, v in sites.items()}))
    p.label("L_end")
    p("s_endpgm")
    p.label("L_slow")
    p("v_lshrrev_b32 v4, 5, v0")
    p("v_and_b32 v5, 15, v0")
    p("v_lshlrev_b32 v5, 4, v5")
    p("v_lshl_add_u32 v5, v4, 8, v5")
    p(f"v_add_u32 v2, {VF}, v5")
    p(f"v_add_u32 v1, {KF}, v3")
    def gK(): p(f"buffer_load_dwordx4 {vr(K[0],4)}, v1, s[12:15], s73 offen sc1")
    def gV():
        p("s_mov_b64 exec, s[44:45]")
        for f in range(2): p(f"buffer_load_dwordx4 {vr(V[0]+4*f,4)}, v2, s[12:15], s73 offen offset:{512*f} sc1")
        p("s_mov_b64 exec, -1")
    p("s_lshl_b32 s68, s46, 10")
    p("s_add_u32 s68, s68, s76")
    p(f"buffer_load_dwordx4 {vr(Q[0],4)}, v3, s[12:15], s68 offen sc1")
    p("v_mov_b32 v6, 0xff800000")
    p("s_mov_b32 s73, s76")
    p("s_mov_b32 s72, 64")
    p.label("L_slow1")
    gK()
    p("s_add_u32 s73, s73, 1024")
    p("s_sub_u32 s72, s72, 1")
    p("s_waitcnt vmcnt(0)")
    p(f"v_mfma_f32_32x32x16_bf16 {vr(S[0],16)}, {vr(K[0],4)}, {vr(Q[0],4)}, 0")
    for i in range(8): p(f"v_max3_f32 v6, v6, v{S[0]+2*i}, v{S[0]+2*i+1}")
    p("s_cmp_lg_u32 s72, 0")
    p("s_cbranch_scc1 L_slow1")
    p("v_mov_b32 v4, v6")
    p("v_permlane32_swap_b32 v4, v6")
    p("v_max_f32 v6, v4, v6")
    for i in range(16): p(f"v_sub_f32 v{S[1]+i}, 0, v6")
    for i in range(16): p(f"v_mov_b32 v{R+i}, 0")
    p("s_mov_b32 s73, s76")
    p("s_mov_b32 s72, 64")
    p.label("L_slow2")
    gK(); gV()
    p("s_add_u32 s73, s73, 1024")
    p("s_sub_u32 s72, s72, 1")
    p("s_waitcnt vmcnt(0)")
    p(f"v_mfma_f32_32x32x16_bf16 {vr(S[0],16)}, {vr(K[0],4)}, {vr(Q[0],4)}, {vr(S[1],16)}")
    for i in range(16): p(f"v_exp_f32 v{S[0]+i}, v{S[0]+i}")
    p(f"v_smfmac_f32_32x32x32_bf16 {vr(R,16)}, {vr(V[0],4)}, {vr(S[0],8)}, v{IDX}")
    p(f"v_smfmac_f32_32x32x32_bf16 {vr(R,16)}, {vr(V[0]+4,4)}, {vr(S[0]+8,8)}, v{IDX}")
    p("s_cmp_lg_u32 s72, 0")
    p("s_cbranch_scc1 L_slow2")
    p("s_nop 11")
    p("s_branch L_fin")
    p.label("L_codeend")
    return p

if __name__ == "__main__":
    p = build()
    p.fix_hazards(verbose="-v" in sys.argv)
    for lab in (None, "L_G1", "L_slow"):
        for e in p.check_waits(lab): print(f"  [wait:{lab}] {e}")
    NAME = "gated_mix__ssm_conv_s5__softmax_full_mha__prompt_kernel"
    b, d = kernel_text(NAME, p, None)
    out = HEADER + f"; @launch grid=(256,1,1) block=(512,1,1) lds={LDS_BYTES}\n" + '.amdgcn_target "amdgcn-amd-amdhsa--gfx950"\n.text\n' + b + '.section .rodata,"a"\n' + d
    dst = [a for a in sys.argv[1:] if not a.startswith("-")]
    fn = dst[0] if dst else "gated_mix__ssm_conv_s5__softmax_full_mha__prompt.s"
    open(fn, "w").write(out)
    import subprocess
    sys.path.insert(0, "cdna_kernels")
    from cdna_launch import with_harness_metadata, address_register_problem
    open("h.s", "w").write(with_harness_metadata(out, NAME, 16, launch_lists=True))
    r = subprocess.run(["clang", "-x", "assembler", "-target", "amdgcn-amd-amdhsa", "-mcpu=gfx950", "h.s", "-o", "h.co"], capture_output=True, text=True)
    if r.returncode: print("ASSEMBLY FAILED", r.stderr[:3000])
    else:
        pr = address_register_problem("h.co", NAME, None)
        if pr: print("CHECK:", pr)
```

```python
import sys, os, math, struct
from common import *
from k_ssm import cmul, lam_compute
def f2u(x): return struct.unpack("<I", struct.pack("<f", x))[0]
QSCALE = 0.25 * math.log2(math.e)

FL1 = 0xDA0000
FLE = 0xDB0000
EPO = 0xDB8000
FLH = 0xDC0000
FL2 = 0xDD0000

WR = 49152
BR = 86016
SCR = 65536
EXC = SCR + 9216
P2 = 151552
LF = 161792
LDS_BYTES = 162048
SPIN = 400000

OPT = dict(fallback=False, rot=1, adp=1, psleep=3, pfirst=10,
           ev={0: "E3a", 1: "E3b KV2", 2: "KVa E4 KV3 PL:0", 3: "KVb E4b", 4: "KVc PS:0", 5: "PSb:0", 6: "W5a E5a:0", 7: "KVd W5b E5b:0 E5a:1", 8: "E5b:1"}, t0=9, w0=7)
OPT.update(eval(os.environ.get("OPT", "{}")))

def publish(p, soff, v=4):
    p(f"v_mov_b32 v{v}, s32"); p(f"v_mov_b32 v{v+1}, s33")
    p("s_mov_b64 exec, 1")
    p(f"buffer_store_dwordx2 v[{v}:{v+1}], off, s[12:15], s{soff} sc1")
    p("s_mov_b64 exec, -1")

_pc = [0]
def uid():
    _pc[0] += 1; return _pc[0]
def poll(p, vaddr, soff, dontcare=None, first=0, fr=4):
    n = uid()
    p(f"s_mov_b32 s81, {SPIN}")
    if first: p(f"s_sleep {first}")
    p.label(f"Lpoll{n}")
    p(f"buffer_load_dwordx2 v[{fr}:{fr+1}], v{vaddr}, s[12:15], s{soff} offen sc1")
    p("s_sub_u32 s81, s81, 1")
    p(f"s_cbranch_scc1 Lpollx{n}")
    p("s_waitcnt vmcnt(0)")
    p(f"v_cmp_eq_u32 s[78:79], s32, v{fr}")
    p(f"v_cmp_eq_u32 vcc, s33, v{fr+1}")
    p("s_and_b64 s[78:79], s[78:79], vcc")
    if dontcare is not None: p(f"s_or_b64 s[78:79], s[78:79], s[{dontcare}:{dontcare+1}]")
    p("s_cmp_eq_u64 s[78:79], -1")
    p(f"s_cbranch_scc1 Lpollx{n}")
    p(f"s_sleep {OPT['psleep']}")
    p(f"s_branch Lpoll{n}")
    p.label(f"Lpollx{n}")
    p("s_waitcnt vmcnt(0)")

def lds_spin(p, vaddr, want, t=6):
    n = uid()
    p(f"s_mov_b32 s81, {SPIN*8}")
    p.label(f"Lspin{n}")
    p(f"ds_read_b32 v{t}, v{vaddr}")
    p("s_sub_u32 s81, s81, 1")
    p(f"s_cbranch_scc1 Lspinx{n}")
    p("s_waitcnt lgkmcnt(0)")
    p(f"v_cmp_ne_u32 s[78:79], {want}, v{t}")
    p("s_cmp_eq_u64 s[78:79], 0")
    p(f"s_cbranch_scc1 Lspinx{n}")
    p("s_sleep 1")
    p(f"s_branch Lspin{n}")
    p.label(f"Lspinx{n}")
    p("s_waitcnt lgkmcnt(0)")

def build():
    p = Prog()
    st_ = Stamps(p, 0)
    MK = OPT.get("marks", ["pro", "t1", "pub", "att", "loop", "pre"])
    TRACE = OPT.get("trace")
    sites = {}
    def tr(name):
        if not TRACE: return
        i = sites.setdefault(name, len(sites) + 1)
        p("s_memtime s[100:101]"); p("s_waitcnt lgkmcnt(0)")
        p("s_mov_b64 exec, s[96:97]"); p("v_mov_b32 v254, s100"); p(f"v_mov_b32 v255, {i}"); p("s_mov_b64 exec, -1")
        p("s_lshl_b64 s[96:97], s[96:97], 1")
    def mk(name, st=None):
        if name in MK: (st or st_).mark()
        tr(name)
    p("s_cmp_ge_u32 s2, 256")
    p("s_cbranch_scc1 L_end")
    st_.start()
    if TRACE:
        p("s_mov_b64 s[96:97], 1"); p("v_mov_b32 v254, 0"); p("v_mov_b32 v255, 0"); tr("start")
    p("s_load_dwordx16 s[40:55], s[0:1], 0")
    p(f"s_load_dwordx16 s[56:71], s[0:1], {A_DSKIP}")
    p("v_lshrrev_b32 v1, 6, v0")
    p("v_and_b32 v0, 63, v0")
    p("s_and_b32 s72, s2, 7")
    p("v_readfirstlane_b32 s3, v1")
    p("s_lshr_b32 s73, s2, 3")
    p("s_lshr_b32 s74, s72, 1")
    p("s_lshl_b32 s74, s74, 2")
    p("s_and_b32 s75, s73, 3")
    p("s_add_u32 s34, s74, s75")
    p("s_and_b32 s74, s72, 1")
    p("s_lshl_b32 s74, s74, 3")
    p("s_lshr_b32 s39, s73, 2")
    p("s_add_u32 s35, s74, s39")
    p("s_lshl_b32 s74, s72, 2")
    p("s_add_u32 s38, s74, s75")
    p("s_lshr_b32 s75, s73, 3")
    p("s_add_u32 s36, s74, s75")
    p("s_and_b32 s37, s73, 7")
    p("s_and_b32 s4, s3, 3")
    p("s_lshr_b32 s5, s3, 2")
    p("v_lshrrev_b32 v1, 5, v0")
    p("v_and_b32 v2, 31, v0")
    p("v_lshlrev_b32 v3, 4, v0")
    p("s_mul_i32 s6, s4, 12288")
    p("s_lshl_b32 s7, s34, 2")
    p("s_add_u32 s7, s7, s4")
    p("s_cmp_eq_u32 s5, 0")
    p("s_cbranch_scc0 L_G1")

    S = [8, 24]; O = [40, 56]; Q = [72, 76]; K = [80, 84]; V = [88, 96]; IDX = 7; VA = 2; KA_ = 250
    WOR = 104; ACA = [168, 184]; TB = [200, 212]; G16 = 224; X_ = 240; D_ = 248; OG = 249
    RE = 168; IM = 184; L = 200; CAR = 208; EB = 210
    def att_setup():
        p("s_lshl_b32 s69, s37, 3")
        p("s_lshl_b32 s68, s4, 1")
        p("s_add_u32 s69, s69, s68")
        p("s_add_u32 s46, s69, s5")
        p("s_lshl_b32 s76, s36, 16")
        p("s_lshl_b32 s77, s69, 10")
        p("s_add_u32 s77, s77, s76")
        p(f"s_mul_i32 s72, s5, {BR}")
        p("v_lshrrev_b32 v4, 5, v0")
        p("v_and_b32 v5, 15, v0")
        p("v_lshlrev_b32 v5, 4, v5")
        p("v_lshl_add_u32 v5, v4, 8, v5")
        p(f"v_add_u32 v{VA}, s72, v5")
        p(f"v_add_u32 v{KA_}, s72, v3")
        p("s_lshl_b32 s68, s4, 4")
        p("s_lshl_b32 s69, s5, 2")
        p("s_add_u32 s68, s68, s69")
        p(f"s_add_u32 s68, s68, {LF + 128}")
        p("v_mov_b32 v1, s68")
        p("s_mov_b32 s74, 0")
        p("v_and_b32 v4, 27, v0")
        p("v_mov_b32 v5, 0x3f803f80")
        p("v_cmp_eq_u32 vcc, 16, v4")
        p("s_mov_b32 s44, 0xffff"); p("s_mov_b32 s45, 0xffff")
        p("v_cndmask_b32 v4, 0, v5, vcc")
        for i in range(16): p(f"v_mov_b32 v{V[0]+i}, v4")
        p(f"v_mov_b32 v{IDX}, 0xdddddddd")
        for i in range(32): p(f"v_mov_b32 v{O[0]+i}, 0")
        for i in range(8, 16): p(f"v_mov_b32 v{S[1]+i}, 0")
        p("s_lshl_b32 s49, s38, 1")
        p("s_add_u32 s49, s49, s5")
    def fl1_addr():
        p("s_lshl_b32 s69, s37, 3")
        p("s_lshl_b32 s68, s5, 5")
        p("v_add_u32 v6, s68, v0")
        p("v_and_b32 v4, 7, v0")
        p("v_add_u32 v4, s69, v4")
        p("v_cmp_lt_u32 vcc, 31, v0")
        p("s_lshr_b32 s68, s36, 1")
        p("s_lshl_b32 s68, s68, 6")
        p("v_cndmask_b32 v6, v6, v4, vcc")
        p("v_add_u32 v6, s68, v6")
        p(f"s_mov_b32 s48, {FL1}")
        p("v_lshlrev_b32 v6, 6, v6")
    def group_poll(first):
        n = uid()
        p("s_lshl_b32 s68, s5, 2")
        p(f"s_add_u32 s68, s68, {LF + 52}")
        p("s_cmp_eq_u32 s4, 0")
        p(f"s_cbranch_scc0 Lgp{n}")
        poll(p, 6, 48, first=first)
        lds_count(None)
        p(f"s_branch Lgpx{n}")
        p.label(f"Lgp{n}")
        p("v_mov_b32 v5, s68")
        lds_spin(p, 5, 1)
        p.label(f"Lgpx{n}")
    def rdK(b, blk): p(f"ds_read_b128 {vr(K[b],4)}, v{KA_} offset:{blk*2048}")
    def rdV(b, blk):
        p("s_mov_b64 exec, s[44:45]")
        for f in range(2): p(f"ds_read_b128 {vr(V[b]+4*f,4)}, v{VA} offset:{blk*2048 + 1024 + 512*f}")
        p("s_mov_b64 exec, -1")
    def lds_count(word):
        p(f"v_mov_b32 v6, s68" if word is None else f"v_mov_b32 v6, {word}")
        p("s_mov_b64 exec, 1")
        p(f"ds_inc_u32 v6, v{IDX}")
        p("s_mov_b64 exec, -1")
    NC0 = OPT.get("nc0", 1)
    def kv_dma(chunks):
        for c in chunks:
            for u in range(2):
                p(f"s_add_u32 s70, s62, {8*c + u}")
                p("s_and_b32 s70, s70, 31")
                p("s_lshl_b32 s70, s70, 10")
                p("s_add_u32 s70, s70, s73")
                p(f"s_add_u32 m0, s63, {(8*c + u)*2048}")
                p(f"s_add_u32 s71, s70, {VF - KF - 1024}")
                p("buffer_load_dwordx4 v3, s[12:15], s70 offen sc1 lds")
                p("buffer_load_dwordx4 v3, s[12:15], s71 offen offset:1024 sc1 lds")
    def att_start(st):
        for c in range(2):
            p(f"buffer_load_dwordx4 {vr(Q[c],4)}, v3, s[12:15], s77 offen offset:{c*1024} sc1")
        p("s_lshl_b32 s73, s5, 15")
        p("s_add_u32 s73, s73, s76")
        p(f"s_add_u32 s73, s73, {KF}")
        p("s_lshl_b32 s68, s37, 2")
        p("s_lshl_b32 s69, s4, 1")
        p("s_add_u32 s68, s68, s69")
        p("s_lshl_b32 s69, s4, 12")
        p("s_add_u32 s69, s69, s72")
        p("s_mov_b32 s62, s68"); p("s_mov_b32 s63, s69")
        kv_dma(range(NC0))
        p("s_lshl_b32 s68, s5, 3")
        p(f"s_add_u32 s68, s68, {LF + 16}")
        tr("iss")
        p(f"s_waitcnt vmcnt({4 * (NC0 - 1)})")
        tr("lnd")
        lds_count(None)
        p("v_mov_b32 v5, s68")
        lds_spin(p, 5, 4)
        tr("syn")
        rdK(0, 0); rdV(0, 0); rdK(1, 1)
        p("s_waitcnt lgkmcnt(0)")
        p(f"v_mfma_f32_32x32x16_bf16 {vr(S[0],16)}, {vr(K[0],4)}, {vr(Q[0],4)}, 0")
        mk("att", st)
        kv_dma(range(NC0, 2))
        tr("c1")
        p("s_nop 7")

    vm = VM(p)
    XA = 8; WA = 12
    p("s_lshl_b32 s72, s34, 7")
    p("s_and_b32 s73, s35, 7")
    p("s_lshl_b32 s73, s73, 4")
    p("s_add_u32 s72, s72, s73")
    p("s_and_b32 s73, s35, 8")
    p("s_add_u32 s72, s72, s73")
    p("s_lshl_b32 s73, s4, 1")
    p("s_add_u32 s72, s72, s73")
    p("v_add_u32 v200, s72, v1")
    p("v_lshlrev_b32 v201, 5, v2")
    p("v_lshl_add_u32 v202, v200, 10, v201")
    p("v_lshlrev_b32 v228, 10, v2")
    p("v_lshl_add_u32 v228, v1, 4, v228")
    p("v_lshlrev_b32 v229, 1, v2")
    p("v_lshl_add_u32 v229, v1, 12, v229")
    p("v_add_u32 v230, 8192, v229")
    p("s_lshl_b32 s72, s35, 15")
    p("s_lshl_b32 s73, s7, 5")
    p("s_and_b32 s73, s73, 1023")
    p("s_add_u32 s72, s72, s73")
    p("s_lshr_b32 s73, s7, 1")
    p("s_lshl_b32 s73, s73, 14")
    p("s_lshl_b32 s74, s35, 6")
    p("s_add_u32 s73, s73, s74")
    p("s_waitcnt lgkmcnt(0)")
    srd(p, 8, 40, 2048*1024)
    srd(p, 12, 70, WS_USED)
    srd(p, 24, 64, 1024)
    p("s_cmp_lt_u32 s34, 8")
    p("s_cselect_b32 s20, s50, s52")
    p("s_cselect_b32 s21, s51, s53")
    p(f"s_mov_b32 s22, {512*1024}")
    p("s_mov_b32 s23, 0x00020000")
    srd(p, 16, 62, 512*1024)
    if OPT.get("gdelay"): p(f"s_sleep {OPT['gdelay']}")
    p(f"s_mov_b32 s68, {EPO}")
    vm.issue("buffer_load_dword v203, off, s[12:15], s68", "g")
    vm.issue("buffer_load_dwordx4 v[204:207], v202, s[8:11], 0 offen", "g")
    vm.issue("buffer_load_dwordx4 v[208:211], v202, s[8:11], 0 offen offset:16", "g")
    vm.issue("buffer_load_dwordx4 v[212:215], v201, s[24:27], 0 offen", "g")
    vm.issue("buffer_load_dwordx4 v[216:219], v201, s[24:27], 0 offen offset:16", "g")
    p("s_mov_b32 s64, s72"); p("s_mov_b32 s65, s73")
    if OPT.get("cpf", 1):
        p("s_getpc_b64 s[68:69]")
        p.label("L_pc")
        p("s_lshr_b32 s72, s2, 3")
        p("s_lshl_b32 s72, s72, 2")
        p("s_add_u32 s72, s72, s4")
        p("s_lshl_b32 s72, s72, 8")
        p(f"s_min_u32 s72, s72, L_codeend-L_pc-256")
        p("s_add_u32 s68, s68, s72")
        p("s_addc_u32 s69, s69, 0")
        p("v_lshlrev_b32 v231, 2, v0")
        vm.issue("global_load_dword v231, v231, s[68:69]", "g")
    p("s_cmp_eq_u32 s4, 1")
    p("s_cselect_b32 s28, s44, s42"); p("s_cselect_b32 s29, s45, s43")
    p("s_cmp_eq_u32 s4, 2")
    p("s_cselect_b32 s28, s54, s28"); p("s_cselect_b32 s29, s55, s29")
    p("s_movk_i32 s30, 1024")
    p("s_mov_b32 s31, 0x00020000")
    p("s_lshl_b32 s68, s35, 6")
    vm.issue("buffer_load_ushort v231, off, s[28:31], s68", "g")
    if OPT.get("bwarm", 0):
        p("s_cmp_lt_u32 s4, 2")
        p("s_cselect_b32 s28, s46, s48")
        p("s_cselect_b32 s29, s47, s49")
        p(f"s_mov_b32 s30, {512*1024}")
        p("s_mov_b32 s31, 0x00020000")
        p("s_lshl_b32 s68, s35, 3")
        p("s_and_b32 s69, s34, 3")
        p("s_lshl_b32 s69, s69, 1")
        p("s_add_u32 s68, s68, s69")
        p("s_and_b32 s69, s4, 1")
        p("s_add_u32 s68, s68, s69")
        p("s_lshl_b32 s68, s68, 12")
        if OPT.get("bdelay"): p(f"s_sleep {OPT['bdelay']}")
        for q in range(4):
            vm.issue(f"buffer_load_dwordx4 v[232:235], v3, s[28:31], s68 offen offset:{q*1024}", "g")
    p("v_lshrrev_b32 v18, 1, v2")
    p("v_and_b32 v18, 7, v18")
    p("v_lshl_add_u32 v19, v2, 7, s6")
    for ks in range(4):
        p(f"v_add_u32 v20, {2*ks}, v1")
        p("v_xor_b32 v20, v20, v18")
        p(f"v_lshl_add_u32 v{XA+ks}, v20, 4, v19")
    p("v_bfe_u32 v18, v0, 2, 2")
    p("v_lshl_add_u32 v18, v1, 3, v18")
    p("v_mul_u32_u24 v18, 192, v18")
    p("v_bfe_u32 v19, v0, 4, 1")
    p("v_lshl_add_u32 v18, v19, 5, v18")
    p("v_and_b32 v19, 3, v0")
    p("v_lshl_add_u32 v18, v19, 3, v18")
    p(f"v_add_u32 v{WA}, {WR}, v18")
    p("v_and_b32 v13, 0x33, v0")
    p("v_bfe_u32 v19, v0, 2, 1")
    p("v_lshl_or_b32 v13, v19, 3, v13")
    p("v_bfe_u32 v19, v0, 3, 1")
    p("v_lshl_or_b32 v13, v19, 2, v13")
    p("v_lshlrev_b32 v13, 4, v13")
    p(f"v_add_u32 v13, {KF}, v13")
    p("v_bfe_u32 v14, v0, 4, 1")
    p("v_lshlrev_b32 v14, 16, v14")
    p("v_lshl_add_u32 v14, v1, 8, v14")
    p("v_and_b32 v20, 15, v0")
    p("v_lshl_add_u32 v14, v20, 4, v14")
    p(f"v_add_u32 v14, {VF}, v14")
    p("s_lshl_b32 s42, s7, 10")
    p("s_lshl_b32 s43, s35, 17")
    p("s_add_u32 s42, s42, s43")
    p("s_add_u32 s43, s42, 0x10000")
    p("s_lshl_b32 s41, s35, 6")
    p("s_add_u32 s41, s41, s7")
    att_setup()
    ACC = [104, 120, 136]; FR = [152, 168, 184]
    def rd0(kk):
        b = FR[kk % 3]; st = kk >> 2; ks = kk & 3; sl = st % 3
        p(f"ds_read_b128 {vr(b,4)}, v{XA+ks} offset:{sl * 4096}")
        for T in range(3):
            for e in range(2):
                p(f"ds_read_b64_tr_b16 {vr(b+4+4*T+2*e,2)}, v{WA} offset:{sl*12288 + ks*3072 + e*768 + T*64}")
    def mm0(kk):
        b = FR[kk % 3]
        c = [vr(a, 16) if kk else "0" for a in ACC]
        p(f"v_mfma_f32_32x32x16_bf16 {vr(ACC[0],16)}, {vr(b+4,4)}, {vr(b,4)}, {c[0]}")
        p(f"v_mfma_f32_32x32x16_bf16 {vr(ACC[1],16)}, {vr(b+8,4)}, {vr(b,4)}, {c[1]}")
        p(f"v_mfma_f32_32x32x16_bf16 {vr(ACC[2],16)}, {vr(b,4)}, {vr(b+12,4)}, {c[2]}")
    def side_jobs():
        vm.drain()
        p("v_readfirstlane_b32 s32, v203")
        p("v_mov_b32 v220, 0")
        for i in range(8):
            p(f"v_dot2_f32_bf16 v220, v{204+i}, v{212+i}, v220")
        p("s_mul_i32 s32, s32, 0x9E3779B1")
        p("s_add_u32 s32, s32, 0x7F4A7C15")
        p("s_xor_b32 s33, s32, 0x5BD1E995")
        for i in range(4): p(f"v_mov_b32 v{224+i}, -1")
        p("s_lshl_b32 s68, s46, 15")
        p("s_lshl_b32 s69, s36, 10")
        p("s_add_u32 s68, s68, s69")
        p(f"s_add_u32 s68, s68, {OF}")
        p("s_add_u32 s69, s68, 0x8000")
        p("buffer_store_dwordx4 v[224:227], v3, s[12:15], s68 offen sc1")
        p("buffer_store_dwordx4 v[224:227], v3, s[12:15], s69 offen sc1")
        for sh in (8, 4, 2, 1):
            p(f"v_add_f32_dpp v220, v220, v220 row_ror:{sh} row_mask:0xf bank_mask:0xf")
        p("v_mov_b32 v221, v220")
        p("v_permlane16_swap_b32 v221, v220")
        p("v_add_f32 v220, v220, v221")
        p("v_cvt_pk_bf16_f32 v220, v220, v220")
        p("v_and_b32 v220, 0xffff0000, v220")
        p(f"v_mul_f32 v220, {f2u(-math.log2(math.e)):#x}, v220")
        p("v_exp_f32 v220, v220")
        p("v_add_f32 v220, 1.0, v220")
        p("v_rcp_f32 v220, v220")
        p("v_cvt_pk_bf16_f32 v220, v220, v220")
        p("v_and_b32 v220, 0xffff0000, v220")
        p("v_lshrrev_b32 v221, 3, v200")
        p("v_and_b32 v200, 7, v200")
        p("v_lshlrev_b32 v200, 2, v200")
        p("v_lshl_add_u32 v200, v221, 7, v200")
        p(f"s_mov_b32 s68, {GG}")
        p("buffer_store_dword v220, v200, s[12:15], s68 offen sc1")
    if OPT.get("side_st", 1) < 0: side_jobs()
    mk("pro")
    p("s_barrier")
    rd0(0); rd0(1)
    for st in range(8):
        k = 4 * st
        p("s_waitcnt lgkmcnt(7)"); mm0(k); rd0(k + 2)
        p("s_waitcnt lgkmcnt(7)"); mm0(k + 1); rd0(k + 3)
        p("s_waitcnt lgkmcnt(7)"); mm0(k + 2)
        p("s_waitcnt lgkmcnt(0)")
        p("s_barrier")
        tr("b")
        if st < 7: rd0(k + 4)
        mm0(k + 3)
        if st < 7: rd0(k + 5)
        if st == OPT.get("side_st", 1): side_jobs()
    mk("t1")
    p(f"s_mov_b32 s71, {f2u(QSCALE):#x}")
    T = 152
    for hd in range(2):
        a = ACC[hd]
        for i in range(4):
            p(f"v_cvt_pk_bf16_f32 v{T+4+i}, v{a+8+2*i}, v{a+8+2*i+1}")
        p(f"buffer_store_dwordx4 {vr(T+4,4)}, v13, s[12:15], s{42+hd} offen sc1")
        T += 8
    a = ACC[2]
    for i in range(8):
        p(f"v_cvt_pk_bf16_f32 v{T+i}, v{a+2*i}, v{a+2*i+1}")
    p(f"buffer_store_dwordx4 {vr(T,4)}, v14, s[12:15], s42 offen sc1")
    p(f"buffer_store_dwordx4 {vr(T+4,4)}, v14, s[12:15], s42 offen offset:512 sc1")
    T = 152
    for hd in range(2):
        a = ACC[hd]
        for i in range(4):
            p(f"v_cvt_pk_bf16_f32 v{T+i}, v{a+2*i}, v{a+2*i+1}")
        for i in range(4):
            p(f"v_lshlrev_b32 v{a+2*i}, 16, v{T+i}")
            p(f"v_and_b32 v{a+2*i+1}, 0xffff0000, v{T+i}")
        for i in range(8):
            p(f"v_mul_f32 v{a+i}, s71, v{a+i}")
        for i in range(4):
            p(f"v_cvt_pk_bf16_f32 v{T+i}, v{a+2*i}, v{a+2*i+1}")
        p(f"buffer_store_dwordx4 {vr(T,4)}, v3, s[12:15], s{42+hd} offen sc1")
        T += 8
    p("s_lshl_b32 s40, s41, 6")
    p(f"s_add_u32 s40, s40, {FL1}")
    fl1_addr()
    p("s_waitcnt vmcnt(0)")
    publish(p, 40)
    if OPT.get("b0", 6) == 7:
        p(f"v_mov_b32 v5, {LF + 8}")
        p("s_mov_b64 exec, 1")
        p(f"ds_inc_u32 v5, v{IDX}")
        p("s_mov_b64 exec, -1")
    mk("pub")
    group_poll(OPT["pfirst"])
    tr("p1")
    att_start(st_)
    p("s_branch L_SCHED")

    p.label("L_G1")
    st1 = Stamps(p, 0); st1.n = 1
    vm = VM(p)
    XO = 240; WO = 244; BO = 247; XA1 = 224; BA = 228
    XF = 8; BF = [136, 144, 152]; LT = 210
    p("s_lshl_b32 s72, s7, 15")
    p("v_lshrrev_b32 v22, 3, v0")
    p("v_and_b32 v23, 7, v0")
    p("v_bfe_u32 v24, v22, 2, 1")
    p("v_and_b32 v25, 3, v22")
    p("v_lshl_add_u32 v24, v24, 4, v25")
    for j in range(4):
        p(f"v_add_u32 v18, {8*j}, v22")
        p("v_bfe_u32 v19, v18, 1, 3")
        p("v_xor_b32 v19, v19, v23")
        p(f"v_lshlrev_b32 v{30+j}, 4, v19")
        p(f"v_lshl_add_u32 v20, v24, 10, v{30+j}")
        p(f"v_add_u32 v20, {j*4096 - j*1024}, v20")
        p(f"v_add_u32 v{XO+j}, s72, v20")
    if OPT["rot"]:
        p("s_and_b32 s80, s34, 3")
        p("s_lshl_b32 s80, s80, 1")
        p("s_add_u32 s80, s80, s35")
    else:
        p("s_mov_b32 s80, 0")
    p("s_mul_i32 s73, s4, 3072")
    p(f"s_add_u32 s73, s73, {WR}")
    def dma(st, mid=None):
        p(f"s_add_u32 s74, s80, {st}")
        p("s_and_b32 s74, s74, 7")
        p(f"s_add_u32 m0, s6, {(st % 3) * 4096}")
        p("s_lshl_b32 s72, s74, 7")
        for j in range(4):
            vm.issue(f"buffer_load_dwordx4 v{XO+j}, s[8:11], s72 offen offset:{j*1024} lds", ("S", st))
        if mid: mid()
        p(f"s_add_u32 m0, s73, {(st % 3) * 12288}")
        p(f"s_mul_i32 s72, s74, {64*3072}")
        for j in range(3):
            vm.issue(f"buffer_load_dwordx4 v{WO+j}, s[16:19], s72 offen offset:{j*1024} lds", ("S", st))
    def dma_b(q):
        p(f"s_add_u32 s74, s75, {2*q}")
        p("s_and_b32 s74, s74, 7")
        p(f"s_add_u32 m0, s77, {q * 8192}")
        p("s_lshl_b32 s72, s74, 7")
        for j in range(4):
            vm.issue(f"buffer_load_dwordx4 v{BO+j}, s[20:23], s72 offen offset:{j*1024} lds", ("B", q))
    p("s_waitcnt lgkmcnt(0)")
    srd(p, 8, 40, 2048*1024)
    def wcalc():
        p("s_lshl_b32 s76, s35, 6")
        p("s_mul_i32 s77, s4, 16*3072")
        p("s_add_u32 s76, s76, s77")
        p("s_movk_i32 s77, 3072")
        for j in range(3):
            p(f"v_add_u32 v18, {64*j}, v0")
            p("v_mul_u32_u24 v19, 43691, v18")
            p("v_lshrrev_b32 v19, 19, v19")
            p("v_mul_u32_u24 v20, 12, v19")
            p("v_sub_u32 v20, v18, v20")
            p("v_cmp_gt_u32 vcc, 8, v20")
            p("v_bfe_u32 v21, v20, 1, 1")
            p("v_lshlrev_b32 v21, 10, v21")
            p("v_lshrrev_b32 v26, 2, v20")
            p("v_lshl_add_u32 v21, v26, 5, v21")
            p("v_and_b32 v26, 1, v20")
            p("v_lshl_add_u32 v21, v26, 4, v21")
            p("v_lshlrev_b32 v26, 4, v20")
            p(f"v_add_u32 v26, {2048-128}, v26")
            p("v_cndmask_b32 v21, v26, v21, vcc")
            p("v_mad_u32_u24 v21, v19, s77, v21")
            if j: p(f"v_subrev_u32 v21, {j*1024}, v21")
            p(f"v_add_u32 v{WO+j}, s76, v21")
        srd(p, 16, 60, 512*3072)
    dma(0, wcalc); dma(1)
    srd(p, 12, 70, WS_USED)
    p("s_cmp_lt_u32 s4, 2")
    p("s_cselect_b32 s20, s46, s48")
    p("s_cselect_b32 s21, s47, s49")
    p(f"s_mov_b32 s22, {512*1024}")
    p("s_mov_b32 s23, 0x00020000")
    p("s_and_b32 s75, s4, 1")
    p("s_lshl_b32 s77, s75, 12")
    p("s_add_u32 s75, s75, s80")
    p("s_lshr_b32 s76, s4, 1")
    p("s_lshl_b32 s76, s76, 15")
    p("s_add_u32 s77, s77, s76")
    p(f"s_add_u32 s77, s77, {BR}")
    p("s_lshl_b32 s69, s35, 15")
    for j in range(4):
        p(f"v_lshl_add_u32 v20, v22, 10, v{30+j}")
        p(f"v_add_u32 v20, {j*8192 - j*1024}, v20")
        p(f"v_add_u32 v{BO+j}, s69, v20")
    p("v_lshlrev_b32 v18, 2, v0")
    p(f"v_add_u32 v18, {LF}, v18")
    p("v_mov_b32 v19, 0")
    p("ds_write_b32 v18, v19")
    p("v_bfe_u32 v165, v2, 1, 3")
    p("v_lshlrev_b32 v166, 7, v2")
    p("v_add_u32 v167, s6, v166")
    p(f"v_add_u32 v166, {BR}, v166")
    for ks in range(4):
        p(f"v_add_u32 v160, {2*ks}, v1")
        p("v_xor_b32 v160, v160, v165")
        p(f"v_lshl_add_u32 v{XA1+ks}, v160, 4, v167")
        p(f"v_lshl_add_u32 v{BA+ks}, v160, 4, v166")
    def small_loads():
        p(f"s_mov_b32 s68, {EPO}")
        vm.issue("buffer_load_dword v163, off, s[12:15], s68", "lam")
        p("s_lshl_b32 s68, s35, 6")
        p("v_lshl_add_u32 v164, v2, 1, s68")
        srd(p, 24, 42, 1024)
        vm.issue(f"buffer_load_ushort v{LT}, v164, s[24:27], 0 offen", "lam")
        srd(p, 28, 44, 1024)
        vm.issue(f"buffer_load_ushort v{LT+1}, v164, s[28:31], 0 offen", "lam")
        p("s_mov_b32 s24, s54"); p("s_mov_b32 s25, s55")
        vm.issue(f"buffer_load_ushort v{LT+2}, v164, s[24:27], 0 offen", "lam")
    mk("pro", st1)
    B0 = OPT.get("b0", 6)
    for st in range(8):
        vm.wait([("S", st)] + ([("B", 3)] if st == 7 and B0 < 5 else []), "lgkmcnt(0)")
        p("s_barrier")
        for ks in range(4):
            p(f"ds_read_b128 {vr(XF + 16*st + 4*ks, 4)}, v{XA1+ks} offset:{(st % 3) * 4096}")
        if st + 2 < 8: dma(st + 2)
        if st == 2: small_loads()
        if B0 <= st < B0 + 4 and B0 < 5: dma_b(st - B0)

        if B0 == 6 and st == 6: dma_b(0)
        if st == 5:
            vm.wait("lam")
            p("v_readfirstlane_b32 s32, v163")
            lam_compute(p, L, LT)
            p("s_mul_i32 s32, s32, 0x9E3779B1")
            p("s_add_u32 s32, s32, 0x7F4A7C15")
            p("s_xor_b32 s33, s32, 0x5BD1E995")
    def rd1(kk):
        b = BF[kk % 3]; s = kk >> 2; ks = kk & 3
        p(f"ds_read_b128 {vr(b,4)}, v{BA+ks} offset:{s*4096}")
        p(f"ds_read_b128 {vr(b+4,4)}, v{BA+ks} offset:{s*4096 + 32768}")
    p("s_waitcnt lgkmcnt(0)")
    if B0 < 5: rd1(0); rd1(1)
    p("s_barrier")
    mk("t1", st1)
    p("s_setprio 1")
    if B0 == 7:
        p(f"v_mov_b32 v160, {LF + 8}")
        lds_spin(p, 160, 4)
    if B0 >= 5:
        for q in range(1 if B0 == 6 else 0, 4): dma_b(q)
        p(f"v_mov_b32 v160, {LF + 4}")
        p("v_mov_b32 v161, -1")
        vm.drain()
        p("s_mov_b64 exec, 1")
        p("ds_inc_u32 v160, v161")
        p("s_mov_b64 exec, -1")
        lds_spin(p, 160, 4)
        tr("bok")
        rd1(0); rd1(1)
    for kk in range(32):
        b = BF[kk % 3]
        if kk + 2 < 32:
            rd1(kk + 2); p("s_waitcnt lgkmcnt(4)")
        elif kk + 2 == 32: p("s_waitcnt lgkmcnt(2)")
        else: p("s_waitcnt lgkmcnt(0)")
        p(f"v_mfma_f32_32x32x16_bf16 {vr(RE,16)}, {vr(XF+4*kk,4)}, {vr(b,4)}, {vr(RE,16) if kk else 0}")
        p(f"v_mfma_f32_32x32x16_bf16 {vr(IM,16)}, {vr(XF+4*kk,4)}, {vr(b+4,4)}, {vr(IM,16) if kk else 0}")
    a0, a1 = 210, 212
    p("s_lshl_b32 s68, s4, 9")
    p(f"s_add_u32 s68, s68, {EXC}")
    p("v_lshl_add_u32 v18, v0, 3, s68")
    p(f"v_lshlrev_b32 v19, 3, v2")
    p(f"v_add_u32 v19, {EXC}, v19")
    p("s_lshl_b32 s68, s4, 1")
    p("v_add_u32 v20, s68, v1")
    p(f"v_mov_b32 v21, {LF}")
    p("v_mov_b32 v22, -1")
    p(f"v_add_f32 v{L+2}, v{L+2}, v{L+2}")
    p(f"v_add_f32 v{L+3}, v{L+3}, v{L+3}")
    hr, hi = RE, IM
    for r in range(16):
        p(f"v_mul_f32 v214, v{L+3}, v{IM+r}")
        p(f"v_mul_f32 v215, v{L+3}, v{RE+r}")
        p(f"v_fma_f32 v{RE+r}, v{L+2}, v{RE+r}, -v214")
        p(f"v_fma_f32 v{IM+r}, v{L+2}, v{IM+r}, v215")
        if r == 0: continue
        d = a0 if r & 1 else a1
        p(f"v_fma_f32 v{d}, v{L}, v{hr}, v{RE+r}")
        p(f"v_fma_f32 v{d+1}, v{L}, v{hi}, v{IM+r}")
        p(f"v_fma_f32 v{d}, -v{L+1}, v{hi}, v{d}")
        p(f"v_fmac_f32 v{d+1}, v{L+1}, v{hr}")
        hr, hi = d, d + 1
    p(f"ds_write_b64 v18, {vr(hr,2)}")
    p("s_waitcnt lgkmcnt(0)")
    p("s_mov_b64 exec, 1")
    p("ds_inc_u32 v21, v22")
    p("s_mov_b64 exec, -1")
    lds_spin(p, 21, 4)
    SUB = 136
    for j in range(8):
        p(f"ds_read_b64 {vr(SUB+2*j,2)}, v19 offset:{j*256}")
    PW = 214
    p(f"v_mov_b32 v{CAR}, 0"); p(f"v_mov_b32 v{CAR+1}, 0")
    p(f"v_mov_b32 v{PW}, 1.0"); p(f"v_mov_b32 v{PW+1}, 0")
    p("s_waitcnt lgkmcnt(0)")
    cr, ci = SUB, SUB + 1
    pr, pi = L + 4, L + 5
    for j in range(1, 8):
        p(f"v_cmp_eq_u32 vcc, {j}, v20")
        d = a0 if j & 1 else a1
        p(f"v_fma_f32 v{d}, v{L+4}, v{cr}, v{SUB+2*j}")
        p(f"v_fma_f32 v{d+1}, v{L+4}, v{ci}, v{SUB+2*j+1}")
        p(f"v_cndmask_b32 v{CAR}, v{CAR}, v{cr}, vcc")
        p(f"v_cndmask_b32 v{CAR+1}, v{CAR+1}, v{ci}, vcc")
        p(f"v_cndmask_b32 v{PW}, v{PW}, v{pr}, vcc")
        p(f"v_cndmask_b32 v{PW+1}, v{PW+1}, v{pi}, vcc")
        p(f"v_fma_f32 v{d}, -v{L+5}, v{ci}, v{d}")
        p(f"v_fmac_f32 v{d+1}, v{L+5}, v{cr}")
        cr, ci = d, d + 1
        if j < 7:
            q = 216 if j & 1 else 218
            cmul(p, q, q + 1, pr, pi, L + 4, L + 5)
            pr, pi = q, q + 1
    p("s_lshl_b32 s68, s35, 8")
    p("v_lshl_add_u32 v18, v2, 3, s68")
    p("s_lshl_b32 s68, s34, 12")
    p(f"s_add_u32 s68, s68, {EE}")
    p("s_cmp_eq_u32 s4, 0")
    p("s_cbranch_scc0 L_noE")
    p(f"buffer_store_dwordx2 {vr(cr,2)}, v18, s[12:15], s68 offen sc1")
    p.label("L_noE")
    p(f"v_mov_b32 v{L+4}, v{PW}"); p(f"v_mov_b32 v{L+5}, v{PW+1}")
    p("s_mul_i32 s68, s4, 2560")
    p(f"s_add_u32 s68, s68, {P2}")
    p("v_mul_u32_u24 v4, 80, v2")
    p("v_lshl_add_u32 v4, v1, 5, v4")
    p(f"v_add_u32 v{L+2}, s68, v4")
    p("v_bfe_u32 v4, v0, 2, 2")
    p("v_lshl_add_u32 v4, v1, 3, v4")
    p("v_mul_u32_u24 v4, 80, v4")
    p("v_and_b32 v5, 1, v0")
    p("v_lshl_add_u32 v4, v5, 5, v4")
    p("v_bfe_u32 v5, v0, 4, 1")
    p("v_lshl_add_u32 v4, v5, 4, v4")
    p("v_bfe_u32 v5, v0, 1, 1")
    p("v_lshl_add_u32 v4, v5, 3, v4")
    p(f"v_add_u32 v{L+3}, s68, v4")
    att_setup()
    fl1_addr()
    p("s_cmp_eq_u32 s4, 0")
    p("s_cbranch_scc0 L_noEf")
    p("s_lshl_b32 s69, s35, 10")
    p("s_lshl_b32 s70, s34, 6")
    p("s_add_u32 s69, s69, s70")
    p(f"s_add_u32 s69, s69, {FLE}")
    p("s_waitcnt vmcnt(0)")
    publish(p, 69)
    p.label("L_noEf")
    mk("pub", st1)
    group_poll(0)
    tr("p1")
    att_start(st1)

    p.label("L_SCHED")
    assert st_.n == st1.n or not STAMP
    ADP = OPT["adp"]; T0 = OPT["t0"]
    def ldT(t):
        b = TB[t & 1]; o = (t & 3) * 1024
        p(f"buffer_load_dwordx4 {vr(b,4)}, v3, s[12:15], s47 offen offset:{o} sc1")
        p(f"buffer_load_dwordx4 {vr(b+4,4)}, v3, s[12:15], s64 offen offset:{o} sc1")
        p(f"buffer_load_dwordx4 {vr(b+8,4)}, v3, s[12:15], s65 offen offset:{o} sc1")
        if (t & 3) == 3:
            p("s_add_u32 s47, s47, 4096"); p("s_add_u32 s64, s64, 4096"); p("s_add_u32 s65, s65, 4096")
    W0 = OPT["w0"]
    def ldW(n):
        jn, hh = n >> 3, n & 7
        p(f"buffer_load_dwordx4 {vr(WOR + 8*hh + 4*jn, 4)}, v3, s[12:15], s62 offen offset:{(hh & 3)*1024} sc1")
        if (n & 3) == 3: p(f"s_add_u32 s62, s62, {4096 if n != 7 else 32768 - 4096}")
    def trip(q):
        for it in range(2):
            i = 2 * q + it; b = it; nb = 1 - it
            t = i - 2 * T0 if q >= T0 else None
            for c in range(2):
                s = S[c]; sn = S[1 - c]
                e = lambda k: p(f"v_exp_f32 v{s+k}, v{s+k}")
                e(0); e(1)
                pv = V[b] if c else V[nb]
                p(f"v_smfmac_f32_32x32x32_bf16 {vr(O[1-c],16)}, {vr(pv+4,4)}, {vr(sn+8,8)}, v{IDX}")
                if c == 0:
                    if i + 1 < 32: rdV(nb, i + 1)
                else: p("s_waitcnt lgkmcnt(0)")
                e(2); e(3); e(4)
                kk = K[b] if c == 0 else K[nb]
                if not (i == 31 and c == 1):
                    p(f"v_mfma_f32_32x32x16_bf16 {vr(sn,16)}, {vr(kk,4)}, {vr(Q[1-c],4)}, 0")
                if c == 0 and i + 2 < 32: rdK(b, i + 2)
                if ADP and q < 15 and c == 1:
                    if it == 0:
                        p("s_mov_b64 exec, 1")
                        p(f"ds_inc_u32 v1, v{IDX}")
                        p(f"ds_inc_u32 v1, v{IDX} offset:8")
                        p("s_mov_b64 exec, -1")
                    else: p("v_readfirstlane_b32 s75, v6")
                e(5); e(6); e(7); e(8); e(9)
                p(f"v_smfmac_f32_32x32x32_bf16 {vr(O[c],16)}, {vr(V[b],4)}, {vr(s,8)}, v{IDX}")
                if t is not None and c == 0: p(f"s_waitcnt vmcnt({3 if t < 15 else 0})")
                if W0 <= q < W0 + 2:
                    n0 = (q - W0) * 8 + it * 4 + c * 2
                    for n in range(n0, n0 + 2): ldW(n)
                if ADP and q < 15 and c == 1:
                    if it == 0: p("ds_read_b32 v6, v1 offset:4")
                    else:
                        n_ = uid()
                        p(f"s_cmp_lt_u32 s75, {q + 1}")
                        p("s_setprio 0")
                        p(f"s_cbranch_scc1 Lpr{n_}")
                        p("s_setprio 1")
                        p.label(f"Lpr{n_}")
                e(10); e(11); e(12)
                if t is not None:
                    p(f"v_mfma_f32_32x32x16_bf16 {vr(ACA[c],16)}, {vr(TB[t & 1],4)}, {vr(TB[t & 1]+4+4*c,4)}, {vr(ACA[c],16) if t else 0}")
                    if c == 1 and t + 2 < 16: ldT(t + 2)
                e(13); e(14); e(15)
    def check_or_poll(soff, fr, dontcare=None, redo=None):
        n = uid()
        p("s_waitcnt vmcnt(0)")
        p(f"v_cmp_eq_u32 s[78:79], s32, v{fr}")
        p(f"v_cmp_eq_u32 vcc, s33, v{fr+1}")
        p("s_and_b64 s[78:79], s[78:79], vcc")
        if dontcare is not None: p(f"s_or_b64 s[78:79], s[78:79], s[{dontcare}:{dontcare+1}]")
        p("s_cmp_eq_u64 s[78:79], -1")
        p(f"s_cbranch_scc1 Lchk{n}")
        redo()
        poll(p, 6, soff, dontcare, fr=fr)
        p.label(f"Lchk{n}")
    def KVa():
        p("s_lshl_b32 s68, s5, 3")
        p(f"s_add_u32 s68, s68, {LF + 20}")
        p(f"s_waitcnt vmcnt({OPT.get('kva_n', 4)})")
        lds_count(None)
    def KVb():
        p("s_lshl_b32 s68, s5, 3")
        p(f"s_add_u32 s68, s68, {LF + 20}")
        p("v_mov_b32 v251, s68")
        lds_spin(p, 251, 4)
    def PL():
        p("buffer_load_dwordx4 v[232:235], v228, s[20:23], s64 offen")
        p("s_bitcmp1_b32 s4, 0")
        p("s_cbranch_scc1 L_nowo1")
        for j in range(8):
            p(f"buffer_load_ushort v{236+j}, v{229 + (j >> 2)}, s[16:19], s65 offen offset:{(j & 3)*1024}")
        p.label("L_nowo1")
    def PS():
        p("s_waitcnt vmcnt(0)")
        p("s_lshl_b32 s68, s41, 10")
        p(f"s_add_u32 s68, s68, {CF}")
        p("buffer_store_dwordx4 v[232:235], v3, s[12:15], s68 offen sc1")
        p("s_bitcmp1_b32 s4, 0")
        p("s_cbranch_scc1 L_nowo2")
        for i in range(4): p(f"v_lshl_or_b32 v{244+i}, v{237+2*i}, 16, v{236+2*i}")
        p("s_lshl_b32 s68, s41, 9")
        p(f"s_add_u32 s68, s68, {WOF}")
        p("buffer_store_dwordx4 v[244:247], v3, s[12:15], s68 offen sc1")
        p.label("L_nowo2")
    def PSb():
        p(f"s_add_u32 s40, s40, {FL2 - FL1}")
        p("s_waitcnt vmcnt(0)")
        publish(p, 40)
    def KVc():
        p("s_lshl_b32 s68, s5, 3")
        p(f"s_add_u32 s68, s68, {LF + 36}")
        p("s_waitcnt vmcnt(0)")
        lds_count(None)
    def KVd():
        p("s_lshl_b32 s68, s5, 3")
        p(f"s_add_u32 s68, s68, {LF + 36}")
        p("v_mov_b32 v251, s68")
        lds_spin(p, 251, 4)
    def W5a():
        p("v_and_b32 v6, 15, v0")
        p("v_bfe_u32 v252, v0, 4, 1")
        p("v_lshl_add_u32 v6, v252, 6, v6")
        p("v_lshlrev_b32 v6, 6, v6")
        p("s_lshl_b32 s41, s39, 13")
        p("s_lshl_b32 s68, s4, 10")
        p("s_add_u32 s41, s41, s68")
        p(f"s_add_u32 s41, s41, {FL2}")
        p("buffer_load_dwordx2 v[252:253], v6, s[12:15], s41 offen sc1")
    def W5b():
        check_or_poll(41, 252, redo=W5a)
        p("s_lshl_b32 s62, s39, 16")
        p("s_lshl_b32 s69, s4, 13")
        p("s_add_u32 s62, s62, s69")
        p(f"s_add_u32 s62, s62, {WOF}")
    def E3a():
        p("v_min_u32 v6, 15, v0")
        p("v_cmp_le_u32 s[42:43], s34, v6")
        p("v_lshlrev_b32 v6, 6, v6")
        p("s_lshl_b32 s48, s35, 10")
        p(f"s_add_u32 s48, s48, {FLE}")
        p("buffer_load_dwordx2 v[4:5], v6, s[12:15], s48 offen sc1")
    def E3b():
        check_or_poll(48, 4, 42, redo=E3a)
        p("v_and_b32 v6, 31, v0")
        p("s_lshl_b32 s68, s35, 8")
        p("v_lshl_add_u32 v6, v6, 3, s68")
        p(f"s_mov_b32 s68, {EE}")
        for c in range(15):
            p(f"s_cmp_le_u32 s34, {c}")
            p("s_cbranch_scc1 L_E3bx")
            p(f"buffer_load_dwordx2 {vr(EB+2*c,2)}, v6, s[12:15], s68 offen sc1")
            p("s_add_u32 s68, s68, 4096")
        p.label("L_E3bx")
    def E4():
        p("s_waitcnt vmcnt(0)")
        p("v_mov_b32 v240, 0"); p("v_mov_b32 v241, 0")
        for c in range(15):
            p(f"s_cmp_le_u32 s34, {c}")
            p("s_cbranch_scc1 L_hin")
            p(f"v_fmac_f32 v{EB+2*c}, v{L+6}, v240")
            p(f"v_fmac_f32 v{EB+2*c+1}, v{L+6}, v241")
            p(f"v_fma_f32 v242, -v{L+7}, v241, v{EB+2*c}")
            p(f"v_fma_f32 v241, v{L+7}, v240, v{EB+2*c+1}")
            p("v_mov_b32 v240, v242")
        p.label("L_hin")
        p(f"v_fmac_f32 v{CAR}, v{L+4}, v240")
        p(f"v_fmac_f32 v{CAR+1}, v{L+4}, v241")
        p(f"v_fma_f32 v{CAR}, -v{L+5}, v241, v{CAR}")
        p(f"v_fmac_f32 v{CAR+1}, v{L+5}, v240")
        pr, pi = CAR, CAR + 1
        PK = 234
        for r in range(16):
            p(f"v_fmac_f32 v{RE+r}, v{L}, v{pr}")
            p(f"v_fmac_f32 v{IM+r}, v{L}, v{pi}")
            p(f"v_fma_f32 v{RE+r}, -v{L+1}, v{pi}, v{RE+r}")
            p(f"v_fmac_f32 v{IM+r}, v{L+1}, v{pr}")
            pr, pi = RE + r, IM + r
            if r & 1:
                p(f"v_cvt_pk_bf16_f32 v{PK + (r >> 1)}, v{RE+r-1}, v{RE+r}")
                p(f"v_cvt_pk_bf16_f32 v{PK + 8 + (r >> 1)}, -v{IM+r-1}, -v{IM+r}")
        p("s_lshl_b32 s68, s7, 16")
        p("s_lshl_b32 s69, s35, 11")
        p("s_add_u32 s68, s68, s69")
        p(f"s_add_u32 s68, s68, {HF}")
        p("s_add_u32 s69, s68, 0x8000")
        for pl in range(2):
            for q in range(2):
                p(f"ds_write_b128 v{L+2}, {vr(PK + 8*pl + 4*q, 4)} offset:{q*16}")
            for kl in range(2):
                for e_ in range(2):
                    p(f"ds_read_b64_tr_b16 {vr(210 + 8*pl + 4*kl + 2*e_, 2)}, v{L+3} offset:{(16*kl + 4*e_)*80}")
        for pl in range(2):
            p(f"s_waitcnt lgkmcnt({6 if pl == 0 else 0})")
            for kl in range(2):
                p(f"buffer_store_dwordx4 {vr(210 + 8*pl + 4*kl, 4)}, v3, s[12:15], s{68+pl} offen offset:{kl*1024} sc1")
    def E4b():
        p("s_lshl_b32 s68, s7, 10")
        p("s_lshl_b32 s69, s35, 6")
        p("s_add_u32 s68, s68, s69")
        p(f"s_add_u32 s68, s68, {FLH}")
        p("s_waitcnt vmcnt(0)")
        publish(p, 68)
    def E5a():
        p("v_and_b32 v4, 7, v0")
        p("v_and_b32 v5, 4, v4")
        p("v_and_b32 v4, 3, v4")
        p("v_lshl_add_u32 v4, v5, 1, v4")
        p("v_and_b32 v5, 3, v0")
        p("v_add_u32 v4, v4, v5")
        p("s_lshr_b32 s68, s49, 5")
        p("v_add_u32 v4, s68, v4")
        p("s_lshl_b32 s68, s4, 4")
        p("s_bfe_u32 s69, s49, 0x20003")
        p("s_lshl_b32 s69, s69, 2")
        p("s_add_u32 s68, s68, s69")
        p("s_bfe_u32 s69, s49, 0x20001")
        p("s_add_u32 s68, s68, s69")
        p("v_lshl_add_u32 v4, v4, 6, s68")
        p("s_lshl_b32 s68, s49, 4")
        p(f"s_add_u32 s68, s68, {(FLH - FL1) // 64}")
        p("v_cmp_gt_u32 vcc, 16, v0")
        p("v_add_u32 v5, s68, v0")
        p(f"s_mov_b32 s48, {FL1}")
        p("v_cndmask_b32 v6, v4, v5, vcc")
        p("v_bfe_u32 v5, v0, 2, 2")
        p("v_mul_u32_u24 v5, 5, v5")
        p("v_and_b32 v5, 9, v5")
        p("s_and_b32 s68, s46, 3")
        p("s_lshl_b32 s68, s68, 1")
        p("v_add_u32 v5, s68, v5")
        p("v_and_b32 v4, 3, v0")
        p("s_and_b32 s68, s46, 0x3c")
        p("v_add_u32 v4, s68, v4")
        p("v_cmp_lt_u32 vcc, 31, v0")
        p("v_lshl_add_u32 v4, v5, 6, v4")
        p("v_cndmask_b32 v6, v6, v4, vcc")
        p("v_lshlrev_b32 v6, 6, v6")
        p("buffer_load_dwordx2 v[4:5], v6, s[12:15], s48 offen sc1")
    def E5b():
        check_or_poll(48, 4, redo=E5a)
        p("s_lshl_b32 s69, s4, 14")
        p("s_lshl_b32 s47, s49, 16")
        p("s_add_u32 s47, s47, s69")
        p(f"s_add_u32 s47, s47, {HF}")
        p("s_lshl_b32 s64, s39, 17")
        p("s_add_u32 s64, s64, s69")
        p(f"s_add_u32 s64, s64, {CF}")
        p("s_add_u32 s65, s64, 0x10000")
        p("s_and_b32 s68, s4, 1")
        p("s_lshl_b32 s68, s68, 3")
        p("s_lshl_b32 s40, s49, 5")
        p("s_add_u32 s40, s40, s68")
        p("s_lshr_b32 s68, s4, 1")
        p("s_lshl_b32 s68, s68, 5")
        p("s_lshl_b32 s41, s39, 6")
        p("s_add_u32 s41, s41, s68")
        p("v_lshrrev_b32 v4, 5, v0")
        p("v_and_b32 v5, 31, v0")
        p("s_lshl_b32 s68, s49, 9")
        p(f"s_add_u32 s68, s68, {GG}")
        p("v_lshlrev_b32 v6, 8, v4")
        for q in range(4):
            p(f"buffer_load_dwordx4 {vr(G16+4*q,4)}, v6, s[12:15], s68 offen offset:{(q & 1)*16 + (q >> 1)*128} sc1")
        srd(p, 24, 56, 1024)
        p("v_lshlrev_b32 v6, 1, v5")
        p("s_lshl_b32 s68, s41, 1")
        p(f"buffer_load_ushort v{D_}, v6, s[24:27], s68 offen")
        p("v_lshl_add_u32 v6, v4, 14, v6")
        p("s_lshl_b32 s69, s40, 10")
        p("s_add_u32 s68, s68, s69")
        for r in range(8):
            if r == 4: p("s_add_u32 s68, s68, 4096")
            p(f"buffer_load_ushort v{X_+r}, v6, s[8:11], s68 offen offset:{(r & 3)*1024}")
        p("v_bfe_u32 v4, v5, 2, 1")
        p("v_lshlrev_b32 v4, 4, v4")
        p("v_and_or_b32 v4, v5, 3, v4")
        p("v_lshrrev_b32 v5, 3, v5")
        p("v_lshl_add_u32 v4, v5, 2, v4")
        p("v_lshrrev_b32 v5, 3, v4")
        p("v_and_b32 v4, 7, v4")
        p("v_lshlrev_b32 v4, 2, v4")
        p("v_lshl_add_u32 v4, v5, 7, v4")
        p("s_lshl_b32 s68, s46, 9")
        p(f"s_add_u32 s68, s68, {GG}")
        p(f"buffer_load_dword v{OG}, v4, s[12:15], s68 offen sc1")
        ldT(0); ldT(1)
    fns = dict(KV2=lambda: kv_dma([2]), KV3=lambda: kv_dma([3]), KVc=KVc, KVd=KVd, PL=PL, PS=PS, PSb=PSb, KVa=KVa, KVb=KVb, W5a=W5a, W5b=W5b, E3a=E3a, E3b=E3b, E4=E4, E4b=E4b, E5a=E5a, E5b=E5b)
    for q in range(16):
        for ev in OPT["ev"].get(q, "").split():
            name, _, grp = ev.partition(":")
            if name in ("E3a", "E3b", "E4", "E4b"): grp = "1"
            if OPT.get("trev"): tr(name)
            if grp == "": fns[name]()
            else:
                lab = f"L_no{name}{grp}"
                p(f"s_cmp_eq_u32 s5, {grp}")
                p(f"s_cbranch_scc0 {lab}")
                fns[name]()
                p.label(lab)
            if OPT.get("trev"): tr(name + "x")
        trip(q); tr("trip")
    p(f"v_smfmac_f32_32x32x32_bf16 {vr(O[1],16)}, {vr(V[1]+4,4)}, {vr(S[1]+8,8)}, v{IDX}")
    mk("loop")
    AV = X_; OA = 8; ACB = [40, 56]; R = O[0]
    p("s_mul_i32 s68, s3, 2304")
    p(f"s_add_u32 s68, s68, {SCR}")
    p("v_add_u32 v4, s68, v3")
    p("v_lshl_add_u32 v5, v0, 2, s68")
    p("s_xor_b32 s68, s3, 4")
    p("s_mul_i32 s68, s68, 2304")
    p(f"s_add_u32 s68, s68, {SCR}")
    p("v_add_u32 v96, s68, v3")
    p("v_lshl_add_u32 v97, v0, 2, s68")
    p(f"v_sub_f32 v{OG}, 1.0, v{OG}")
    p("s_cmp_eq_u32 s5, 0")
    p("s_cbranch_scc0 L_red1")
    p(f"ds_write_b128 v4, {vr(O[1],4)}")
    p(f"ds_write_b128 v4, {vr(O[1]+4,4)} offset:1024")
    p(f"ds_write_b32 v5, v{O[1]+8} offset:2048")
    p("s_branch L_red2")
    p.label("L_red1")
    p(f"ds_write_b128 v4, {vr(O[0],4)}")
    p(f"ds_write_b128 v4, {vr(O[0]+4,4)} offset:1024")
    p(f"ds_write_b32 v5, v{O[0]+8} offset:2048")
    p("s_waitcnt lgkmcnt(0)")
    for i in range(9): p(f"v_mov_b32 v{O[0]+i}, v{O[1]+i}")
    p.label("L_red2")
    p(f"v_cvt_pk_bf16_f32 v{OG}, v{OG}, v{OG}")
    p("s_lshl_b32 s70, s46, 15")
    p("s_lshl_b32 s71, s36, 10")
    p("s_add_u32 s70, s70, s71")
    p(f"s_add_u32 s70, s70, {OF}")
    p(f"v_and_b32 v{OG}, 0xffff0000, v{OG}")
    p(f"s_mov_b32 s68, {f2u(2.0**-40):#x}")
    p(f"s_mov_b32 s69, {f2u(2.0**40):#x}")
    p(f"s_mov_b32 s42, {f2u(2.0**120):#x}")
    p("s_waitcnt lgkmcnt(0)")
    p("s_barrier")
    tr("bar")
    p(f"ds_read_b128 v[12:15], v96")
    p(f"ds_read_b128 v[16:19], v96 offset:1024")
    p(f"ds_read_b32 v20, v97 offset:2048")
    p("s_waitcnt lgkmcnt(0)")
    for i in range(9): p(f"v_add_f32 v{R+i}, v{R+i}, v{12+i}")
    p(f"v_max3_f32 v6, |v{R}|, |v{R+1}|, |v{R+2}|")
    p(f"v_max3_f32 v6, v6, |v{R+3}|, |v{R+4}|")
    p(f"v_max3_f32 v6, v6, |v{R+5}|, |v{R+6}|")
    p(f"v_max_f32 v6, v6, |v{R+7}|")
    p(f"v_cmp_le_f32 s[78:79], s68, v{R+8}")
    p(f"v_cmp_ge_f32 s[80:81], s69, v{R+8}")
    p(f"v_cmp_ge_f32 vcc, s42, v6")
    p("s_and_b64 s[78:79], s[78:79], s[80:81]")
    p("s_and_b64 s[78:79], s[78:79], vcc")
    p("s_cmp_eq_u64 s[78:79], -1" if not OPT["fallback"] else "s_cmp_eq_u64 s[78:79], 1")
    p("s_cbranch_scc0 L_slow")
    p.label("L_fin")
    p(f"v_rcp_f32 v6, v{R+8}")
    p(f"v_mul_f32 v6, v{OG}, v6")
    for i in range(8): p(f"v_mul_f32 v{R+i}, v6, v{R+i}")
    for i in range(4): p(f"v_cvt_pk_bf16_f32 v{88+i}, v{R+2*i}, v{R+2*i+1}")
    for i in range(4): p(f"v_min_u32 v{88+i}, -2, v{88+i}")
    p(f"buffer_store_dwordx4 {vr(88,4)}, v3, s[12:15], s70 offen sc1")
    tr("ost")
    def loadO():
        for hh in range(8):
            p(f"buffer_load_dwordx4 {vr(OA+4*hh,4)}, v3, s[12:15], s{47 + (hh >> 2)} offen offset:{(hh & 3)*1024} sc1")
    assert T0 in (8, 9)
    p("s_lshl_b32 s47, s49, 15")
    p("s_lshl_b32 s74, s4, 13")
    p("s_add_u32 s47, s47, s74")
    p(f"s_add_u32 s47, s47, {OF}")
    p("s_add_u32 s48, s47, 4096")
    EARLY = OPT.get("oearly", 1)
    if EARLY: loadO()
    for t in range(32 - 2 * T0, 16):
        p(f"s_waitcnt vmcnt({(4 if t == 14 else 1) + 8 * EARLY})")
        for c in range(2):
            p(f"v_mfma_f32_32x32x16_bf16 {vr(ACA[c],16)}, {vr(TB[t & 1],4)}, {vr(TB[t & 1]+4+4*c,4)}, {vr(ACA[c],16)}")
    p(f"v_lshlrev_b32 v{D_}, 16, v{D_}")
    for i in range(8):
        p(f"v_lshlrev_b32 v{X_+i}, 16, v{X_+i}")
        p(f"v_mul_f32 v{X_+i}, v{D_}, v{X_+i}")
    for i in range(4): p(f"v_cvt_pk_bf16_f32 v{40+i}, v{X_+2*i}, v{X_+2*i+1}")
    p("s_bitcmp1_b32 s4, 0")
    p("s_cselect_b64 vcc, -1, 0")
    for i in range(4):
        p(f"v_lshlrev_b32 v{X_+2*i}, 16, v{40+i}")
        p(f"v_and_b32 v{X_+2*i+1}, 0xffff0000, v{40+i}")
    for i in range(8): p(f"v_cndmask_b32 v{44+i}, v{G16+i}, v{G16+8+i}, vcc")
    for i in range(8): p(f"v_mul_f32 v{AV+i}, v{44+i}, v{X_+i}")
    if not EARLY: loadO()
    for jn in range(2):
        for r in range(16):
            p(f"v_mul_f32 v{ACA[jn]+r}, v{G16+r}, v{ACA[jn]+r}")
    p("s_lshl_b32 s68, s3, 13")
    p("v_add_u32 v232, s68, v3")
    p("s_lshl_b32 s68, s5, 15")
    p("s_lshl_b32 s74, s4, 11")
    p("s_add_u32 s68, s68, s74")
    p("v_add_u32 v233, s68, v3")
    p("v_lshrrev_b32 v4, 5, v0")
    p("v_and_b32 v5, 31, v0")
    p("v_lshlrev_b32 v5, 2, v5")
    p("v_lshl_add_u32 v234, v4, 15, v5")
    p("v_add_u32 v235, 4096, v234")
    p("s_lshl_b32 s40, s40, 11")
    p("s_lshl_b32 s41, s41, 2")
    p("s_add_u32 s40, s40, s41")
    p("s_add_u32 s41, s40, 8192")
    srd(p, 28, 66, 2048*2048)
    mk("pre")
    p(f"s_mov_b32 s81, {SPIN}")
    p.label("L_opoll")
    for hh in range(8):
        p(f"s_waitcnt vmcnt({7-hh})")
        for jn in range(2):
            p(f"v_mfma_f32_32x32x16_bf16 {vr(ACB[jn],16)}, {vr(OA+4*hh,4)}, {vr(WOR+8*hh+4*jn,4)}, {vr(ACB[jn],16) if hh else vr(ACA[jn],16)}")
        if hh == 0:
            p(f"v_max3_u32 v4, v{OA}, v{OA+1}, v{OA+2}")
            p(f"v_max_u32 v4, v4, v{OA+3}")
        else:
            p(f"v_max3_u32 v4, v4, v{OA+4*hh}, v{OA+4*hh+1}")
            p(f"v_max3_u32 v4, v4, v{OA+4*hh+2}, v{OA+4*hh+3}")
    p("v_cmp_eq_u32 s[78:79], -1, v4")
    p("s_sub_u32 s81, s81, 1")
    p("s_cbranch_scc1 L_opollx")
    p("s_cmp_eq_u64 s[78:79], 0")
    p("s_cbranch_scc1 L_opollx")
    p(f"s_sleep {OPT.get('osleep', 1)}")
    loadO()
    p("s_branch L_opoll")
    p.label("L_opollx")
    tr("ook")
    for q in range(8):
        p(f"ds_write_b128 v232, {vr(40+4*q,4)} offset:{q*1024}")
    p("s_waitcnt lgkmcnt(0)")
    p("s_barrier")
    for k in range(4):
        p(f"ds_read_b128 {vr(72+8*k,4)}, v233 offset:{k*8192}")
        p(f"ds_read_b128 {vr(76+8*k,4)}, v233 offset:{k*8192+1024}")
    p("s_waitcnt lgkmcnt(4)")
    for i in range(8):
        p(f"v_add_f32 v{72+i}, v{72+i}, v{80+i}")
        p(f"v_add_f32 v{72+i}, v{72+i}, v{AV+i}")
    p("s_waitcnt lgkmcnt(0)")
    for i in range(8):
        p(f"v_add_f32 v{88+i}, v{88+i}, v{96+i}")
        p(f"v_add_f32 v{88+i}, v{72+i}, v{88+i}")
        p(f"buffer_store_dword v{88+i}, v{234 + ((i >> 1) & 1)}, s[28:31], s{40 if i < 4 else 41} offen offset:{(i & 1)*2048} {OPT.get('outsc', '')}")
    p("s_or_b32 s68, s2, s3")
    p("s_cmp_eq_u32 s68, 0")
    p("s_cbranch_scc0 L_noep")
    p(f"s_mov_b32 s68, {EPO}")
    p("v_mov_b32 v4, s32")
    p("s_mov_b64 exec, 1")
    p("buffer_store_dword v4, off, s[12:15], s68 sc1")
    p("s_mov_b64 exec, -1")
    p.label("L_noep")
    st_.end(12, 3, 8, 4)
    if TRACE:
        p("s_waitcnt vmcnt(0)"); tr("end")
        p("s_lshl_b32 s82, s2, 3"); p("s_add_u32 s82, s82, s3"); p("s_lshl_b32 s82, s82, 9"); p(f"s_add_u32 s82, s82, {STAMP_OFF}")
        p("v_lshlrev_b32 v4, 2, v0")
        p("buffer_store_dword v254, v4, s[12:15], s82 offen"); p("buffer_store_dword v255, v4, s[12:15], s82 offen offset:256")
        open("sites.txt", "w").write(repr({v: k for k, v in sites.items()}))
    p.label("L_end")
    p("s_endpgm")
    p.label("L_slow")
    p("v_lshrrev_b32 v4, 5, v0")
    p("v_and_b32 v5, 15, v0")
    p("v_lshlrev_b32 v5, 4, v5")
    p("v_lshl_add_u32 v5, v4, 8, v5")
    p(f"v_add_u32 v2, {VF}, v5")
    p(f"v_add_u32 v1, {KF}, v3")
    def gK(): p(f"buffer_load_dwordx4 {vr(K[0],4)}, v1, s[12:15], s73 offen sc1")
    def gV():
        p("s_mov_b64 exec, s[44:45]")
        for f in range(2): p(f"buffer_load_dwordx4 {vr(V[0]+4*f,4)}, v2, s[12:15], s73 offen offset:{512*f} sc1")
        p("s_mov_b64 exec, -1")
    p("s_lshl_b32 s68, s46, 10")
    p("s_add_u32 s68, s68, s76")
    p(f"buffer_load_dwordx4 {vr(Q[0],4)}, v3, s[12:15], s68 offen sc1")
    p("v_mov_b32 v6, 0xff800000")
    p("s_mov_b32 s73, s76")
    p("s_mov_b32 s72, 64")
    p.label("L_slow1")
    gK()
    p("s_add_u32 s73, s73, 1024")
    p("s_sub_u32 s72, s72, 1")
    p("s_waitcnt vmcnt(0)")
    p(f"v_mfma_f32_32x32x16_bf16 {vr(S[0],16)}, {vr(K[0],4)}, {vr(Q[0],4)}, 0")
    for i in range(8): p(f"v_max3_f32 v6, v6, v{S[0]+2*i}, v{S[0]+2*i+1}")
    p("s_cmp_lg_u32 s72, 0")
    p("s_cbranch_scc1 L_slow1")
    p("v_mov_b32 v4, v6")
    p("v_permlane32_swap_b32 v4, v6")
    p("v_max_f32 v6, v4, v6")
    for i in range(16): p(f"v_sub_f32 v{S[1]+i}, 0, v6")
    for i in range(16): p(f"v_mov_b32 v{R+i}, 0")
    p("s_mov_b32 s73, s76")
    p("s_mov_b32 s72, 64")
    p.label("L_slow2")
    gK(); gV()
    p("s_add_u32 s73, s73, 1024")
    p("s_sub_u32 s72, s72, 1")
    p("s_waitcnt vmcnt(0)")
    p(f"v_mfma_f32_32x32x16_bf16 {vr(S[0],16)}, {vr(K[0],4)}, {vr(Q[0],4)}, {vr(S[1],16)}")
    for i in range(16): p(f"v_exp_f32 v{S[0]+i}, v{S[0]+i}")
    p(f"v_smfmac_f32_32x32x32_bf16 {vr(R,16)}, {vr(V[0],4)}, {vr(S[0],8)}, v{IDX}")
    p(f"v_smfmac_f32_32x32x32_bf16 {vr(R,16)}, {vr(V[0]+4,4)}, {vr(S[0]+8,8)}, v{IDX}")
    p("s_cmp_lg_u32 s72, 0")
    p("s_cbranch_scc1 L_slow2")
    p("s_nop 11")
    p("s_branch L_fin")
    p.label("L_codeend")
    return p

if __name__ == "__main__":
    p = build()
    p.fix_hazards(verbose="-v" in sys.argv)
    for lab in (None, "L_G1", "L_slow"):
        for e in p.check_waits(lab): print(f"  [wait:{lab}] {e}")
    NAME = "gated_mix__ssm_conv_s5__softmax_full_mha__prompt_kernel"
    b, d = kernel_text(NAME, p, None)
    out = HEADER + f"; @launch grid=(256,1,1) block=(512,1,1) lds={LDS_BYTES}\n" + '.amdgcn_target "amdgcn-amd-amdhsa--gfx950"\n.text\n' + b + '.section .rodata,"a"\n' + d
    dst = [a for a in sys.argv[1:] if not a.startswith("-")]
    fn = dst[0] if dst else "gated_mix__ssm_conv_s5__softmax_full_mha__prompt.s"
    open(fn, "w").write(out)
    import subprocess
    sys.path.insert(0, "cdna_kernels")
    from cdna_launch import with_harness_metadata, address_register_problem
    open("h.s", "w").write(with_harness_metadata(out, NAME, 16, launch_lists=True))
    r = subprocess.run(["clang", "-x", "assembler", "-target", "amdgcn-amd-amdhsa", "-mcpu=gfx950", "h.s", "-o", "h.co"], capture_output=True, text=True)
    if r.returncode: print("ASSEMBLY FAILED", r.stderr[:3000])
    else:
        pr = address_register_problem("h.co", NAME, None)
        if pr: print("CHECK:", pr)
```

```python
import sys, os, math, struct
from common import *
from k_ssm import cmul, lam_compute
def f2u(x): return struct.unpack("<I", struct.pack("<f", x))[0]
QSCALE = 0.25 * math.log2(math.e)

FL1 = 0xDA0000
FLE = 0xDB0000
EPO = 0xDB8000
FLH = 0xDC0000
FL2 = 0xDD0000

WR = 49152
BR = 86016
SCR = 65536
EXC = SCR + 9216
P2 = 151552
LF = 161792
LDS_BYTES = 162048
SPIN = 400000

OPT = dict(fallback=False, rot=1, adp=1, psleep=2, pfirst=16, outsc='sc1', oearly=-2, osc='sc1', fsc='sc1',
           ev={0: "E3a", 1: "E3b KV2", 2: "KVa E4 KV3 PL:0", 3: "KVb E4b", 4: "KVc PS:0", 5: "PSb:0", 6: "W5a E5a:0", 7: "KVd W5b E5b:0 E5a:1", 8: "E5b:1"}, t0=9, w0=7)
OPT.update(eval(os.environ.get("OPT", "{}")))

def publish(p, soff, v=4):
    p(f"v_mov_b32 v{v}, s32"); p(f"v_mov_b32 v{v+1}, s33")
    p("s_mov_b64 exec, 1")
    p(f"buffer_store_dwordx2 v[{v}:{v+1}], off, s[12:15], s{soff} sc1")
    p("s_mov_b64 exec, -1")

_pc = [0]
def uid():
    _pc[0] += 1; return _pc[0]
def poll(p, vaddr, soff, dontcare=None, first=0, fr=4):
    n = uid()
    p(f"s_mov_b32 s81, {SPIN}")
    if first: p(f"s_sleep {first}")
    p.label(f"Lpoll{n}")
    p(f"buffer_load_dwordx2 v[{fr}:{fr+1}], v{vaddr}, s[12:15], s{soff} offen {OPT['fsc']}")
    p("s_sub_u32 s81, s81, 1")
    p(f"s_cbranch_scc1 Lpollx{n}")
    p("s_waitcnt vmcnt(0)")
    p(f"v_cmp_eq_u32 s[78:79], s32, v{fr}")
    p(f"v_cmp_eq_u32 vcc, s33, v{fr+1}")
    p("s_and_b64 s[78:79], s[78:79], vcc")
    if dontcare is not None: p(f"s_or_b64 s[78:79], s[78:79], s[{dontcare}:{dontcare+1}]")
    p("s_cmp_eq_u64 s[78:79], -1")
    p(f"s_cbranch_scc1 Lpollx{n}")
    p(f"s_sleep {OPT['psleep']}")
    p(f"s_branch Lpoll{n}")
    p.label(f"Lpollx{n}")
    p("s_waitcnt vmcnt(0)")

def lds_spin(p, vaddr, want, t=6):
    n = uid()
    p(f"s_mov_b32 s81, {SPIN*8}")
    p.label(f"Lspin{n}")
    p(f"ds_read_b32 v{t}, v{vaddr}")
    p("s_sub_u32 s81, s81, 1")
    p(f"s_cbranch_scc1 Lspinx{n}")
    p("s_waitcnt lgkmcnt(0)")
    p(f"v_cmp_ne_u32 s[78:79], {want}, v{t}")
    p("s_cmp_eq_u64 s[78:79], 0")
    p(f"s_cbranch_scc1 Lspinx{n}")
    p("s_sleep 1")
    p(f"s_branch Lspin{n}")
    p.label(f"Lspinx{n}")
    p("s_waitcnt lgkmcnt(0)")

def build():
    p = Prog()
    st_ = Stamps(p, 0)
    MK = OPT.get("marks", ["pro", "t1", "pub", "att", "loop", "pre"])
    TRACE = OPT.get("trace")
    sites = {}
    def tr(name):
        if not TRACE: return
        i = sites.setdefault(name, len(sites) + 1)
        p("s_memtime s[100:101]"); p("s_waitcnt lgkmcnt(0)")
        p("s_mov_b64 exec, s[96:97]"); p("v_mov_b32 v254, s100"); p(f"v_mov_b32 v255, {i}"); p("s_mov_b64 exec, -1")
        p("s_lshl_b64 s[96:97], s[96:97], 1")
    def mk(name, st=None):
        if name in MK: (st or st_).mark()
        tr(name)
    p("s_cmp_ge_u32 s2, 256")
    p("s_cbranch_scc1 L_end")
    st_.start()
    if TRACE:
        p("s_mov_b64 s[96:97], 1"); p("v_mov_b32 v254, 0"); p("v_mov_b32 v255, 0"); tr("start")
    p("s_load_dwordx16 s[40:55], s[0:1], 0")
    p(f"s_load_dwordx16 s[56:71], s[0:1], {A_DSKIP}")
    p("v_lshrrev_b32 v1, 6, v0")
    p("v_and_b32 v0, 63, v0")
    p("s_and_b32 s72, s2, 7")
    p("v_readfirstlane_b32 s3, v1")
    p("s_lshr_b32 s73, s2, 3")
    p("s_lshr_b32 s74, s72, 1")
    p("s_lshl_b32 s74, s74, 2")
    p("s_and_b32 s75, s73, 3")
    p("s_add_u32 s34, s74, s75")
    p("s_and_b32 s74, s72, 1")
    p("s_lshl_b32 s74, s74, 3")
    p("s_lshr_b32 s39, s73, 2")
    p("s_add_u32 s35, s74, s39")
    p("s_lshl_b32 s74, s72, 2")
    p("s_add_u32 s38, s74, s75")
    p("s_lshr_b32 s75, s73, 3")
    p("s_add_u32 s36, s74, s75")
    p("s_and_b32 s37, s73, 7")
    p("s_and_b32 s4, s3, 3")
    p("s_lshr_b32 s5, s3, 2")
    p("v_lshrrev_b32 v1, 5, v0")
    p("v_and_b32 v2, 31, v0")
    p("v_lshlrev_b32 v3, 4, v0")
    p("s_mul_i32 s6, s4, 12288")
    p("s_lshl_b32 s7, s34, 2")
    p("s_add_u32 s7, s7, s4")
    p("s_cmp_eq_u32 s5, 0")
    p("s_cbranch_scc0 L_G1")

    S = [8, 24]; O = [40, 56]; Q = [72, 76]; K = [80, 84]; V = [88, 96]; IDX = 7; VA = 2; KA_ = 250
    WOR = 104; ACA = [168, 184]; TB = [200, 212]; G16 = 224; X_ = 240; D_ = 248; OG = 249
    RE = 168; IM = 184; L = 200; CAR = 208; EB = 210
    def att_setup():
        p("s_lshl_b32 s69, s37, 3")
        p("s_lshl_b32 s68, s4, 1")
        p("s_add_u32 s69, s69, s68")
        p("s_add_u32 s46, s69, s5")
        p("s_lshl_b32 s76, s36, 16")
        p("s_lshl_b32 s77, s69, 10")
        p("s_add_u32 s77, s77, s76")
        p(f"s_mul_i32 s72, s5, {BR}")
        p("v_lshrrev_b32 v4, 5, v0")
        p("v_and_b32 v5, 15, v0")
        p("v_lshlrev_b32 v5, 4, v5")
        p("v_lshl_add_u32 v5, v4, 8, v5")
        p(f"v_add_u32 v{VA}, s72, v5")
        p(f"v_add_u32 v{KA_}, s72, v3")
        p("s_lshl_b32 s68, s4, 4")
        p("s_lshl_b32 s69, s5, 2")
        p("s_add_u32 s68, s68, s69")
        p(f"s_add_u32 s68, s68, {LF + 128}")
        p("v_mov_b32 v1, s68")
        p("s_mov_b32 s74, 0")
        p("v_and_b32 v4, 27, v0")
        p("v_mov_b32 v5, 0x3f803f80")
        p("v_cmp_eq_u32 vcc, 16, v4")
        p("s_mov_b32 s44, 0xffff"); p("s_mov_b32 s45, 0xffff")
        p("v_cndmask_b32 v4, 0, v5, vcc")
        for i in range(16): p(f"v_mov_b32 v{V[0]+i}, v4")
        p(f"v_mov_b32 v{IDX}, 0xdddddddd")
        for i in range(32): p(f"v_mov_b32 v{O[0]+i}, 0")
        for i in range(8, 16): p(f"v_mov_b32 v{S[1]+i}, 0")
        p("s_lshl_b32 s49, s38, 1")
        p("s_add_u32 s49, s49, s5")
    def fl1_addr():
        p("s_lshl_b32 s69, s37, 3")
        p("s_lshl_b32 s68, s5, 5")
        p("v_add_u32 v6, s68, v0")
        p("v_and_b32 v4, 7, v0")
        p("v_add_u32 v4, s69, v4")
        p("v_cmp_lt_u32 vcc, 31, v0")
        p("s_lshr_b32 s68, s36, 1")
        p("s_lshl_b32 s68, s68, 6")
        p("v_cndmask_b32 v6, v6, v4, vcc")
        p("v_add_u32 v6, s68, v6")
        p(f"s_mov_b32 s48, {FL1}")
        p("v_lshlrev_b32 v6, 6, v6")
    def group_poll(first):
        n = uid()
        p("s_lshl_b32 s68, s5, 2")
        p(f"s_add_u32 s68, s68, {LF + 52}")
        p("s_cmp_eq_u32 s4, 0")
        p(f"s_cbranch_scc0 Lgp{n}")
        poll(p, 6, 48, first=first)
        lds_count(None)
        p(f"s_branch Lgpx{n}")
        p.label(f"Lgp{n}")
        p("v_mov_b32 v5, s68")
        lds_spin(p, 5, 1)
        p.label(f"Lgpx{n}")
    def rdK(b, blk): p(f"ds_read_b128 {vr(K[b],4)}, v{KA_} offset:{blk*2048}")
    def rdV(b, blk):
        p("s_mov_b64 exec, s[44:45]")
        for f in range(2): p(f"ds_read_b128 {vr(V[b]+4*f,4)}, v{VA} offset:{blk*2048 + 1024 + 512*f}")
        p("s_mov_b64 exec, -1")
    def lds_count(word):
        p(f"v_mov_b32 v6, s68" if word is None else f"v_mov_b32 v6, {word}")
        p("s_mov_b64 exec, 1")
        p(f"ds_inc_u32 v6, v{IDX}")
        p("s_mov_b64 exec, -1")
    NC0 = OPT.get("nc0", 1)
    def kv_dma(chunks):
        for c in chunks:
            for u in range(2):
                p(f"s_add_u32 s70, s62, {8*c + u}")
                p("s_and_b32 s70, s70, 31")
                p("s_lshl_b32 s70, s70, 10")
                p("s_add_u32 s70, s70, s73")
                p(f"s_add_u32 m0, s63, {(8*c + u)*2048}")
                p(f"s_add_u32 s71, s70, {VF - KF - 1024}")
                p("buffer_load_dwordx4 v3, s[12:15], s70 offen sc1 lds")
                p("buffer_load_dwordx4 v3, s[12:15], s71 offen offset:1024 sc1 lds")
    def att_start(st):
        for c in range(2):
            p(f"buffer_load_dwordx4 {vr(Q[c],4)}, v3, s[12:15], s77 offen offset:{c*1024} sc1")
        p("s_lshl_b32 s73, s5, 15")
        p("s_add_u32 s73, s73, s76")
        p(f"s_add_u32 s73, s73, {KF}")
        p("s_lshl_b32 s68, s37, 2")
        p("s_lshl_b32 s69, s4, 1")
        p("s_add_u32 s68, s68, s69")
        p("s_lshl_b32 s69, s4, 12")
        p("s_add_u32 s69, s69, s72")
        p("s_mov_b32 s62, s68"); p("s_mov_b32 s63, s69")
        kv_dma(range(NC0))
        p("s_lshl_b32 s68, s5, 3")
        p(f"s_add_u32 s68, s68, {LF + 16}")
        tr("iss")
        p(f"s_waitcnt vmcnt({4 * (NC0 - 1)})")
        tr("lnd")
        lds_count(None)
        p("v_mov_b32 v5, s68")
        lds_spin(p, 5, 4)
        tr("syn")
        rdK(0, 0); rdV(0, 0); rdK(1, 1)
        p("s_waitcnt lgkmcnt(0)")
        p(f"v_mfma_f32_32x32x16_bf16 {vr(S[0],16)}, {vr(K[0],4)}, {vr(Q[0],4)}, 0")
        mk("att", st)
        kv_dma(range(NC0, 2))
        tr("c1")
        p("s_nop 7")

    vm = VM(p)
    XA = 8; WA = 12
    p("s_lshl_b32 s72, s34, 7")
    p("s_and_b32 s73, s35, 7")
    p("s_lshl_b32 s73, s73, 4")
    p("s_add_u32 s72, s72, s73")
    p("s_and_b32 s73, s35, 8")
    p("s_add_u32 s72, s72, s73")
    p("s_lshl_b32 s73, s4, 1")
    p("s_add_u32 s72, s72, s73")
    p("v_add_u32 v200, s72, v1")
    p("v_lshlrev_b32 v201, 5, v2")
    p("v_lshl_add_u32 v202, v200, 10, v201")
    p("v_lshlrev_b32 v228, 10, v2")
    p("v_lshl_add_u32 v228, v1, 4, v228")
    p("v_lshlrev_b32 v229, 1, v2")
    p("v_lshl_add_u32 v229, v1, 12, v229")
    p("v_add_u32 v230, 8192, v229")
    p("s_lshl_b32 s72, s35, 15")
    p("s_lshl_b32 s73, s7, 5")
    p("s_and_b32 s73, s73, 1023")
    p("s_add_u32 s72, s72, s73")
    p("s_lshr_b32 s73, s7, 1")
    p("s_lshl_b32 s73, s73, 14")
    p("s_lshl_b32 s74, s35, 6")
    p("s_add_u32 s73, s73, s74")
    p("s_waitcnt lgkmcnt(0)")
    srd(p, 8, 40, 2048*1024)
    srd(p, 12, 70, WS_USED)
    srd(p, 24, 64, 1024)
    p("s_cmp_lt_u32 s34, 8")
    p("s_cselect_b32 s20, s50, s52")
    p("s_cselect_b32 s21, s51, s53")
    p(f"s_mov_b32 s22, {512*1024}")
    p("s_mov_b32 s23, 0x00020000")
    srd(p, 16, 62, 512*1024)
    if OPT.get("gdelay"): p(f"s_sleep {OPT['gdelay']}")
    p(f"s_mov_b32 s68, {EPO}")
    vm.issue("buffer_load_dword v203, off, s[12:15], s68", "g")
    vm.issue("buffer_load_dwordx4 v[204:207], v202, s[8:11], 0 offen", "g")
    vm.issue("buffer_load_dwordx4 v[208:211], v202, s[8:11], 0 offen offset:16", "g")
    vm.issue("buffer_load_dwordx4 v[212:215], v201, s[24:27], 0 offen", "g")
    vm.issue("buffer_load_dwordx4 v[216:219], v201, s[24:27], 0 offen offset:16", "g")
    p("s_mov_b32 s64, s72"); p("s_mov_b32 s65, s73")
    if OPT.get("cpf", 1):
        p("s_getpc_b64 s[68:69]")
        p.label("L_pc")
        p("s_lshr_b32 s72, s2, 3")
        p("s_lshl_b32 s72, s72, 2")
        p("s_add_u32 s72, s72, s4")
        p("s_lshl_b32 s72, s72, 8")
        p(f"s_min_u32 s72, s72, L_codeend-L_pc-256")
        p("s_add_u32 s68, s68, s72")
        p("s_addc_u32 s69, s69, 0")
        p("v_lshlrev_b32 v231, 2, v0")
        vm.issue("global_load_dword v231, v231, s[68:69]", "g")
    p("s_cmp_eq_u32 s4, 1")
    p("s_cselect_b32 s28, s44, s42"); p("s_cselect_b32 s29, s45, s43")
    p("s_cmp_eq_u32 s4, 2")
    p("s_cselect_b32 s28, s54, s28"); p("s_cselect_b32 s29, s55, s29")
    p("s_movk_i32 s30, 1024")
    p("s_mov_b32 s31, 0x00020000")
    p("s_lshl_b32 s68, s35, 6")
    vm.issue("buffer_load_ushort v231, off, s[28:31], s68", "g")
    if OPT.get("bwarm", 0):
        p("s_cmp_lt_u32 s4, 2")
        p("s_cselect_b32 s28, s46, s48")
        p("s_cselect_b32 s29, s47, s49")
        p(f"s_mov_b32 s30, {512*1024}")
        p("s_mov_b32 s31, 0x00020000")
        p("s_lshl_b32 s68, s35, 3")
        p("s_and_b32 s69, s34, 3")
        p("s_lshl_b32 s69, s69, 1")
        p("s_add_u32 s68, s68, s69")
        p("s_and_b32 s69, s4, 1")
        p("s_add_u32 s68, s68, s69")
        p("s_lshl_b32 s68, s68, 12")
        if OPT.get("bdelay"): p(f"s_sleep {OPT['bdelay']}")
        for q in range(4):
            vm.issue(f"buffer_load_dwordx4 v[232:235], v3, s[28:31], s68 offen offset:{q*1024}", "g")
    p("v_lshrrev_b32 v18, 1, v2")
    p("v_and_b32 v18, 7, v18")
    p("v_lshl_add_u32 v19, v2, 7, s6")
    for ks in range(4):
        p(f"v_add_u32 v20, {2*ks}, v1")
        p("v_xor_b32 v20, v20, v18")
        p(f"v_lshl_add_u32 v{XA+ks}, v20, 4, v19")
    p("v_bfe_u32 v18, v0, 2, 2")
    p("v_lshl_add_u32 v18, v1, 3, v18")
    p("v_mul_u32_u24 v18, 192, v18")
    p("v_bfe_u32 v19, v0, 4, 1")
    p("v_lshl_add_u32 v18, v19, 5, v18")
    p("v_and_b32 v19, 3, v0")
    p("v_lshl_add_u32 v18, v19, 3, v18")
    p(f"v_add_u32 v{WA}, {WR}, v18")
    p("v_and_b32 v13, 0x33, v0")
    p("v_bfe_u32 v19, v0, 2, 1")
    p("v_lshl_or_b32 v13, v19, 3, v13")
    p("v_bfe_u32 v19, v0, 3, 1")
    p("v_lshl_or_b32 v13, v19, 2, v13")
    p("v_lshlrev_b32 v13, 4, v13")
    p(f"v_add_u32 v13, {KF}, v13")
    p("v_bfe_u32 v14, v0, 4, 1")
    p("v_lshlrev_b32 v14, 16, v14")
    p("v_lshl_add_u32 v14, v1, 8, v14")
    p("v_and_b32 v20, 15, v0")
    p("v_lshl_add_u32 v14, v20, 4, v14")
    p(f"v_add_u32 v14, {VF}, v14")
    p("s_lshl_b32 s42, s7, 10")
    p("s_lshl_b32 s43, s35, 17")
    p("s_add_u32 s42, s42, s43")
    p("s_add_u32 s43, s42, 0x10000")
    p("s_lshl_b32 s41, s35, 6")
    p("s_add_u32 s41, s41, s7")
    att_setup()
    ACC = [104, 120, 136]; FR = [152, 168, 184]
    def rd0(kk):
        b = FR[kk % 3]; st = kk >> 2; ks = kk & 3; sl = st % 3
        p(f"ds_read_b128 {vr(b,4)}, v{XA+ks} offset:{sl * 4096}")
        for T in range(3):
            for e in range(2):
                p(f"ds_read_b64_tr_b16 {vr(b+4+4*T+2*e,2)}, v{WA} offset:{sl*12288 + ks*3072 + e*768 + T*64}")
    def mm0(kk):
        b = FR[kk % 3]
        c = [vr(a, 16) if kk else "0" for a in ACC]
        p(f"v_mfma_f32_32x32x16_bf16 {vr(ACC[0],16)}, {vr(b+4,4)}, {vr(b,4)}, {c[0]}")
        p(f"v_mfma_f32_32x32x16_bf16 {vr(ACC[1],16)}, {vr(b+8,4)}, {vr(b,4)}, {c[1]}")
        p(f"v_mfma_f32_32x32x16_bf16 {vr(ACC[2],16)}, {vr(b,4)}, {vr(b+12,4)}, {c[2]}")
    def side_jobs():
        vm.drain()
        p("v_readfirstlane_b32 s32, v203")
        p("v_mov_b32 v220, 0")
        for i in range(8):
            p(f"v_dot2_f32_bf16 v220, v{204+i}, v{212+i}, v220")
        p("s_mul_i32 s32, s32, 0x9E3779B1")
        p("s_add_u32 s32, s32, 0x7F4A7C15")
        p("s_xor_b32 s33, s32, 0x5BD1E995")
        for i in range(4): p(f"v_mov_b32 v{224+i}, -1")
        p("s_lshl_b32 s68, s46, 15")
        p("s_lshl_b32 s69, s36, 10")
        p("s_add_u32 s68, s68, s69")
        p(f"s_add_u32 s68, s68, {OF}")
        p("s_add_u32 s69, s68, 0x8000")
        p("buffer_store_dwordx4 v[224:227], v3, s[12:15], s68 offen sc1")
        p("buffer_store_dwordx4 v[224:227], v3, s[12:15], s69 offen sc1")
        for sh in (8, 4, 2, 1):
            p(f"v_add_f32_dpp v220, v220, v220 row_ror:{sh} row_mask:0xf bank_mask:0xf")
        p("v_mov_b32 v221, v220")
        p("v_permlane16_swap_b32 v221, v220")
        p("v_add_f32 v220, v220, v221")
        p("v_cvt_pk_bf16_f32 v220, v220, v220")
        p("v_and_b32 v220, 0xffff0000, v220")
        p(f"v_mul_f32 v220, {f2u(-math.log2(math.e)):#x}, v220")
        p("v_exp_f32 v220, v220")
        p("v_add_f32 v220, 1.0, v220")
        p("v_rcp_f32 v220, v220")
        p("v_cvt_pk_bf16_f32 v220, v220, v220")
        p("v_and_b32 v220, 0xffff0000, v220")
        p("v_lshrrev_b32 v221, 3, v200")
        p("v_and_b32 v200, 7, v200")
        p("v_lshlrev_b32 v200, 2, v200")
        p("v_lshl_add_u32 v200, v221, 7, v200")
        p(f"s_mov_b32 s68, {GG}")
        p("buffer_store_dword v220, v200, s[12:15], s68 offen sc1")
    if OPT.get("side_st", 1) < 0: side_jobs()
    mk("pro")
    p("s_barrier")
    rd0(0); rd0(1)
    for st in range(8):
        k = 4 * st
        p("s_waitcnt lgkmcnt(7)"); mm0(k); rd0(k + 2)
        p("s_waitcnt lgkmcnt(7)"); mm0(k + 1); rd0(k + 3)
        p("s_waitcnt lgkmcnt(7)"); mm0(k + 2)
        p("s_waitcnt lgkmcnt(0)")
        p("s_barrier")
        tr("b")
        if st < 7: rd0(k + 4)
        mm0(k + 3)
        if st < 7: rd0(k + 5)
        if st == OPT.get("side_st", 1): side_jobs()
    mk("t1")
    p(f"s_mov_b32 s71, {f2u(QSCALE):#x}")
    T = 152
    for hd in range(2):
        a = ACC[hd]
        for i in range(4):
            p(f"v_cvt_pk_bf16_f32 v{T+4+i}, v{a+8+2*i}, v{a+8+2*i+1}")
        p(f"buffer_store_dwordx4 {vr(T+4,4)}, v13, s[12:15], s{42+hd} offen sc1")
        T += 8
    a = ACC[2]
    for i in range(8):
        p(f"v_cvt_pk_bf16_f32 v{T+i}, v{a+2*i}, v{a+2*i+1}")
    p(f"buffer_store_dwordx4 {vr(T,4)}, v14, s[12:15], s42 offen sc1")
    p(f"buffer_store_dwordx4 {vr(T+4,4)}, v14, s[12:15], s42 offen offset:512 sc1")
    T = 152
    for hd in range(2):
        a = ACC[hd]
        for i in range(4):
            p(f"v_cvt_pk_bf16_f32 v{T+i}, v{a+2*i}, v{a+2*i+1}")
        for i in range(4):
            p(f"v_lshlrev_b32 v{a+2*i}, 16, v{T+i}")
            p(f"v_and_b32 v{a+2*i+1}, 0xffff0000, v{T+i}")
        for i in range(8):
            p(f"v_mul_f32 v{a+i}, s71, v{a+i}")
        for i in range(4):
            p(f"v_cvt_pk_bf16_f32 v{T+i}, v{a+2*i}, v{a+2*i+1}")
        p(f"buffer_store_dwordx4 {vr(T,4)}, v3, s[12:15], s{42+hd} offen sc1")
        T += 8
    p("s_lshl_b32 s40, s41, 6")
    p(f"s_add_u32 s40, s40, {FL1}")
    fl1_addr()
    p("s_waitcnt vmcnt(0)")
    publish(p, 40)
    if OPT.get("b0", 6) == 7:
        p(f"v_mov_b32 v5, {LF + 8}")
        p("s_mov_b64 exec, 1")
        p(f"ds_inc_u32 v5, v{IDX}")
        p("s_mov_b64 exec, -1")
    mk("pub")
    group_poll(OPT["pfirst"])
    tr("p1")
    att_start(st_)
    p("s_branch L_SCHED")

    p.label("L_G1")
    st1 = Stamps(p, 0); st1.n = 1
    vm = VM(p)
    XO = 240; WO = 244; BO = 247; XA1 = 224; BA = 228
    XF = 8; BF = [136, 144, 152]; LT = 210
    p("s_lshl_b32 s72, s7, 15")
    p("v_lshrrev_b32 v22, 3, v0")
    p("v_and_b32 v23, 7, v0")
    p("v_bfe_u32 v24, v22, 2, 1")
    p("v_and_b32 v25, 3, v22")
    p("v_lshl_add_u32 v24, v24, 4, v25")
    for j in range(4):
        p(f"v_add_u32 v18, {8*j}, v22")
        p("v_bfe_u32 v19, v18, 1, 3")
        p("v_xor_b32 v19, v19, v23")
        p(f"v_lshlrev_b32 v{30+j}, 4, v19")
        p(f"v_lshl_add_u32 v20, v24, 10, v{30+j}")
        p(f"v_add_u32 v20, {j*4096 - j*1024}, v20")
        p(f"v_add_u32 v{XO+j}, s72, v20")
    if OPT["rot"]:
        p("s_and_b32 s80, s34, 3")
        p("s_lshl_b32 s80, s80, 1")
        p("s_add_u32 s80, s80, s35")
    else:
        p("s_mov_b32 s80, 0")
    p("s_mul_i32 s73, s4, 3072")
    p(f"s_add_u32 s73, s73, {WR}")
    def dma(st, mid=None):
        p(f"s_add_u32 s74, s80, {st}")
        p("s_and_b32 s74, s74, 7")
        p(f"s_add_u32 m0, s6, {(st % 3) * 4096}")
        p("s_lshl_b32 s72, s74, 7")
        for j in range(4):
            vm.issue(f"buffer_load_dwordx4 v{XO+j}, s[8:11], s72 offen offset:{j*1024} lds", ("S", st))
        if mid: mid()
        p(f"s_add_u32 m0, s73, {(st % 3) * 12288}")
        p(f"s_mul_i32 s72, s74, {64*3072}")
        for j in range(3):
            vm.issue(f"buffer_load_dwordx4 v{WO+j}, s[16:19], s72 offen offset:{j*1024} lds", ("S", st))
    def dma_b(q):
        p(f"s_add_u32 s74, s75, {2*q}")
        p("s_and_b32 s74, s74, 7")
        p(f"s_add_u32 m0, s77, {q * 8192}")
        p("s_lshl_b32 s72, s74, 7")
        for j in range(4):
            vm.issue(f"buffer_load_dwordx4 v{BO+j}, s[20:23], s72 offen offset:{j*1024} lds", ("B", q))
    p("s_waitcnt lgkmcnt(0)")
    srd(p, 8, 40, 2048*1024)
    def wcalc():
        p("s_lshl_b32 s76, s35, 6")
        p("s_mul_i32 s77, s4, 16*3072")
        p("s_add_u32 s76, s76, s77")
        p("s_movk_i32 s77, 3072")
        for j in range(3):
            p(f"v_add_u32 v18, {64*j}, v0")
            p("v_mul_u32_u24 v19, 43691, v18")
            p("v_lshrrev_b32 v19, 19, v19")
            p("v_mul_u32_u24 v20, 12, v19")
            p("v_sub_u32 v20, v18, v20")
            p("v_cmp_gt_u32 vcc, 8, v20")
            p("v_bfe_u32 v21, v20, 1, 1")
            p("v_lshlrev_b32 v21, 10, v21")
            p("v_lshrrev_b32 v26, 2, v20")
            p("v_lshl_add_u32 v21, v26, 5, v21")
            p("v_and_b32 v26, 1, v20")
            p("v_lshl_add_u32 v21, v26, 4, v21")
            p("v_lshlrev_b32 v26, 4, v20")
            p(f"v_add_u32 v26, {2048-128}, v26")
            p("v_cndmask_b32 v21, v26, v21, vcc")
            p("v_mad_u32_u24 v21, v19, s77, v21")
            if j: p(f"v_subrev_u32 v21, {j*1024}, v21")
            p(f"v_add_u32 v{WO+j}, s76, v21")
        srd(p, 16, 60, 512*3072)
    dma(0, wcalc); dma(1)
    srd(p, 12, 70, WS_USED)
    p("s_cmp_lt_u32 s4, 2")
    p("s_cselect_b32 s20, s46, s48")
    p("s_cselect_b32 s21, s47, s49")
    p(f"s_mov_b32 s22, {512*1024}")
    p("s_mov_b32 s23, 0x00020000")
    p("s_and_b32 s75, s4, 1")
    p("s_lshl_b32 s77, s75, 12")
    p("s_add_u32 s75, s75, s80")
    p("s_lshr_b32 s76, s4, 1")
    p("s_lshl_b32 s76, s76, 15")
    p("s_add_u32 s77, s77, s76")
    p(f"s_add_u32 s77, s77, {BR}")
    p("s_lshl_b32 s69, s35, 15")
    for j in range(4):
        p(f"v_lshl_add_u32 v20, v22, 10, v{30+j}")
        p(f"v_add_u32 v20, {j*8192 - j*1024}, v20")
        p(f"v_add_u32 v{BO+j}, s69, v20")
    p("v_lshlrev_b32 v18, 2, v0")
    p(f"v_add_u32 v18, {LF}, v18")
    p("v_mov_b32 v19, 0")
    p("ds_write_b32 v18, v19")
    p("v_bfe_u32 v165, v2, 1, 3")
    p("v_lshlrev_b32 v166, 7, v2")
    p("v_add_u32 v167, s6, v166")
    p(f"v_add_u32 v166, {BR}, v166")
    for ks in range(4):
        p(f"v_add_u32 v160, {2*ks}, v1")
        p("v_xor_b32 v160, v160, v165")
        p(f"v_lshl_add_u32 v{XA1+ks}, v160, 4, v167")
        p(f"v_lshl_add_u32 v{BA+ks}, v160, 4, v166")
    def small_loads():
        p(f"s_mov_b32 s68, {EPO}")
        vm.issue("buffer_load_dword v163, off, s[12:15], s68", "lam")
        p("s_lshl_b32 s68, s35, 6")
        p("v_lshl_add_u32 v164, v2, 1, s68")
        srd(p, 24, 42, 1024)
        vm.issue(f"buffer_load_ushort v{LT}, v164, s[24:27], 0 offen", "lam")
        srd(p, 28, 44, 1024)
        vm.issue(f"buffer_load_ushort v{LT+1}, v164, s[28:31], 0 offen", "lam")
        p("s_mov_b32 s24, s54"); p("s_mov_b32 s25, s55")
        vm.issue(f"buffer_load_ushort v{LT+2}, v164, s[24:27], 0 offen", "lam")
    mk("pro", st1)
    B0 = OPT.get("b0", 6)
    for st in range(8):
        vm.wait([("S", st)] + ([("B", 3)] if st == 7 and B0 < 5 else []), "lgkmcnt(0)")
        p("s_barrier")
        for ks in range(4):
            p(f"ds_read_b128 {vr(XF + 16*st + 4*ks, 4)}, v{XA1+ks} offset:{(st % 3) * 4096}")
        if st + 2 < 8: dma(st + 2)
        if st == 2: small_loads()
        if B0 <= st < B0 + 4 and B0 < 5: dma_b(st - B0)

        if B0 == 6 and st == 6: dma_b(0)
        if st == 5:
            vm.wait("lam")
            p("v_readfirstlane_b32 s32, v163")
            lam_compute(p, L, LT)
            p("s_mul_i32 s32, s32, 0x9E3779B1")
            p("s_add_u32 s32, s32, 0x7F4A7C15")
            p("s_xor_b32 s33, s32, 0x5BD1E995")
    def rd1(kk):
        b = BF[kk % 3]; s = kk >> 2; ks = kk & 3
        p(f"ds_read_b128 {vr(b,4)}, v{BA+ks} offset:{s*4096}")
        p(f"ds_read_b128 {vr(b+4,4)}, v{BA+ks} offset:{s*4096 + 32768}")
    p("s_waitcnt lgkmcnt(0)")
    if B0 < 5: rd1(0); rd1(1)
    p("s_barrier")
    mk("t1", st1)
    p("s_setprio 1")
    if B0 == 7:
        p(f"v_mov_b32 v160, {LF + 8}")
        lds_spin(p, 160, 4)
    if B0 >= 5:
        for q in range(1 if B0 == 6 else 0, 4): dma_b(q)
        p(f"v_mov_b32 v160, {LF + 4}")
        p("v_mov_b32 v161, -1")
        vm.drain()
        p("s_mov_b64 exec, 1")
        p("ds_inc_u32 v160, v161")
        p("s_mov_b64 exec, -1")
        lds_spin(p, 160, 4)
        tr("bok")
        rd1(0); rd1(1)
    for kk in range(32):
        b = BF[kk % 3]
        if kk + 2 < 32:
            rd1(kk + 2); p("s_waitcnt lgkmcnt(4)")
        elif kk + 2 == 32: p("s_waitcnt lgkmcnt(2)")
        else: p("s_waitcnt lgkmcnt(0)")
        p(f"v_mfma_f32_32x32x16_bf16 {vr(RE,16)}, {vr(XF+4*kk,4)}, {vr(b,4)}, {vr(RE,16) if kk else 0}")
        p(f"v_mfma_f32_32x32x16_bf16 {vr(IM,16)}, {vr(XF+4*kk,4)}, {vr(b+4,4)}, {vr(IM,16) if kk else 0}")
    a0, a1 = 210, 212
    p("s_lshl_b32 s68, s4, 9")
    p(f"s_add_u32 s68, s68, {EXC}")
    p("v_lshl_add_u32 v18, v0, 3, s68")
    p(f"v_lshlrev_b32 v19, 3, v2")
    p(f"v_add_u32 v19, {EXC}, v19")
    p("s_lshl_b32 s68, s4, 1")
    p("v_add_u32 v20, s68, v1")
    p(f"v_mov_b32 v21, {LF}")
    p("v_mov_b32 v22, -1")
    p(f"v_add_f32 v{L+2}, v{L+2}, v{L+2}")
    p(f"v_add_f32 v{L+3}, v{L+3}, v{L+3}")
    hr, hi = RE, IM
    for r in range(16):
        p(f"v_mul_f32 v214, v{L+3}, v{IM+r}")
        p(f"v_mul_f32 v215, v{L+3}, v{RE+r}")
        p(f"v_fma_f32 v{RE+r}, v{L+2}, v{RE+r}, -v214")
        p(f"v_fma_f32 v{IM+r}, v{L+2}, v{IM+r}, v215")
        if r == 0: continue
        d = a0 if r & 1 else a1
        p(f"v_fma_f32 v{d}, v{L}, v{hr}, v{RE+r}")
        p(f"v_fma_f32 v{d+1}, v{L}, v{hi}, v{IM+r}")
        p(f"v_fma_f32 v{d}, -v{L+1}, v{hi}, v{d}")
        p(f"v_fmac_f32 v{d+1}, v{L+1}, v{hr}")
        hr, hi = d, d + 1
    p(f"ds_write_b64 v18, {vr(hr,2)}")
    p("s_waitcnt lgkmcnt(0)")
    p("s_mov_b64 exec, 1")
    p("ds_inc_u32 v21, v22")
    p("s_mov_b64 exec, -1")
    lds_spin(p, 21, 4)
    SUB = 136
    for j in range(8):
        p(f"ds_read_b64 {vr(SUB+2*j,2)}, v19 offset:{j*256}")
    PW = 214
    p(f"v_mov_b32 v{CAR}, 0"); p(f"v_mov_b32 v{CAR+1}, 0")
    p(f"v_mov_b32 v{PW}, 1.0"); p(f"v_mov_b32 v{PW+1}, 0")
    p("s_waitcnt lgkmcnt(0)")
    cr, ci = SUB, SUB + 1
    pr, pi = L + 4, L + 5
    for j in range(1, 8):
        p(f"v_cmp_eq_u32 vcc, {j}, v20")
        d = a0 if j & 1 else a1
        p(f"v_fma_f32 v{d}, v{L+4}, v{cr}, v{SUB+2*j}")
        p(f"v_fma_f32 v{d+1}, v{L+4}, v{ci}, v{SUB+2*j+1}")
        p(f"v_cndmask_b32 v{CAR}, v{CAR}, v{cr}, vcc")
        p(f"v_cndmask_b32 v{CAR+1}, v{CAR+1}, v{ci}, vcc")
        p(f"v_cndmask_b32 v{PW}, v{PW}, v{pr}, vcc")
        p(f"v_cndmask_b32 v{PW+1}, v{PW+1}, v{pi}, vcc")
        p(f"v_fma_f32 v{d}, -v{L+5}, v{ci}, v{d}")
        p(f"v_fmac_f32 v{d+1}, v{L+5}, v{cr}")
        cr, ci = d, d + 1
        if j < 7:
            q = 216 if j & 1 else 218
            cmul(p, q, q + 1, pr, pi, L + 4, L + 5)
            pr, pi = q, q + 1
    p("s_lshl_b32 s68, s35, 8")
    p("v_lshl_add_u32 v18, v2, 3, s68")
    p("s_lshl_b32 s68, s34, 12")
    p(f"s_add_u32 s68, s68, {EE}")
    p("s_cmp_eq_u32 s4, 0")
    p("s_cbranch_scc0 L_noE")
    p(f"buffer_store_dwordx2 {vr(cr,2)}, v18, s[12:15], s68 offen sc1")
    p.label("L_noE")
    p(f"v_mov_b32 v{L+4}, v{PW}"); p(f"v_mov_b32 v{L+5}, v{PW+1}")
    p("s_mul_i32 s68, s4, 2560")
    p(f"s_add_u32 s68, s68, {P2}")
    p("v_mul_u32_u24 v4, 80, v2")
    p("v_lshl_add_u32 v4, v1, 5, v4")
    p(f"v_add_u32 v{L+2}, s68, v4")
    p("v_bfe_u32 v4, v0, 2, 2")
    p("v_lshl_add_u32 v4, v1, 3, v4")
    p("v_mul_u32_u24 v4, 80, v4")
    p("v_and_b32 v5, 1, v0")
    p("v_lshl_add_u32 v4, v5, 5, v4")
    p("v_bfe_u32 v5, v0, 4, 1")
    p("v_lshl_add_u32 v4, v5, 4, v4")
    p("v_bfe_u32 v5, v0, 1, 1")
    p("v_lshl_add_u32 v4, v5, 3, v4")
    p(f"v_add_u32 v{L+3}, s68, v4")
    att_setup()
    fl1_addr()
    p("s_cmp_eq_u32 s4, 0")
    p("s_cbranch_scc0 L_noEf")
    p("s_lshl_b32 s69, s35, 10")
    p("s_lshl_b32 s70, s34, 6")
    p("s_add_u32 s69, s69, s70")
    p(f"s_add_u32 s69, s69, {FLE}")
    p("s_waitcnt vmcnt(0)")
    publish(p, 69)
    p.label("L_noEf")
    mk("pub", st1)
    group_poll(0)
    tr("p1")
    att_start(st1)

    p.label("L_SCHED")
    assert st_.n == st1.n or not STAMP
    ADP = OPT["adp"]; T0 = OPT["t0"]
    def ldT(t):
        b = TB[t & 1]; o = (t & 3) * 1024
        p(f"buffer_load_dwordx4 {vr(b,4)}, v3, s[12:15], s47 offen offset:{o} sc1")
        p(f"buffer_load_dwordx4 {vr(b+4,4)}, v3, s[12:15], s64 offen offset:{o} sc1")
        p(f"buffer_load_dwordx4 {vr(b+8,4)}, v3, s[12:15], s65 offen offset:{o} sc1")
        if (t & 3) == 3:
            p("s_add_u32 s47, s47, 4096"); p("s_add_u32 s64, s64, 4096"); p("s_add_u32 s65, s65, 4096")
    W0 = OPT["w0"]
    def ldW(n):
        jn, hh = n >> 3, n & 7
        p(f"buffer_load_dwordx4 {vr(WOR + 8*hh + 4*jn, 4)}, v3, s[12:15], s62 offen offset:{(hh & 3)*1024} sc1")
        if (n & 3) == 3: p(f"s_add_u32 s62, s62, {4096 if n != 7 else 32768 - 4096}")
    def trip(q):
        for it in range(2):
            i = 2 * q + it; b = it; nb = 1 - it
            t = i - 2 * T0 if q >= T0 else None
            for c in range(2):
                s = S[c]; sn = S[1 - c]
                e = lambda k: p(f"v_exp_f32 v{s+k}, v{s+k}")
                e(0); e(1)
                pv = V[b] if c else V[nb]
                p(f"v_smfmac_f32_32x32x32_bf16 {vr(O[1-c],16)}, {vr(pv+4,4)}, {vr(sn+8,8)}, v{IDX}")
                if c == 0:
                    if i + 1 < 32: rdV(nb, i + 1)
                else: p("s_waitcnt lgkmcnt(0)")
                e(2); e(3); e(4)
                kk = K[b] if c == 0 else K[nb]
                if not (i == 31 and c == 1):
                    p(f"v_mfma_f32_32x32x16_bf16 {vr(sn,16)}, {vr(kk,4)}, {vr(Q[1-c],4)}, 0")
                if c == 0 and i + 2 < 32: rdK(b, i + 2)
                if ADP and q < 15 and c == 1:
                    if it == 0:
                        p("s_mov_b64 exec, 1")
                        p(f"ds_inc_u32 v1, v{IDX}")
                        p(f"ds_inc_u32 v1, v{IDX} offset:8")
                        p("s_mov_b64 exec, -1")
                    else: p("v_readfirstlane_b32 s75, v6")
                e(5); e(6); e(7); e(8); e(9)
                p(f"v_smfmac_f32_32x32x32_bf16 {vr(O[c],16)}, {vr(V[b],4)}, {vr(s,8)}, v{IDX}")
                if t is not None and c == 0: p(f"s_waitcnt vmcnt({3 if t < 15 else 0})")
                if W0 <= q < W0 + 2:
                    n0 = (q - W0) * 8 + it * 4 + c * 2
                    for n in range(n0, n0 + 2): ldW(n)
                if ADP and q < 15 and c == 1:
                    if it == 0: p("ds_read_b32 v6, v1 offset:4")
                    else:
                        n_ = uid()
                        p(f"s_cmp_lt_u32 s75, {q + 1}")
                        p("s_setprio 0")
                        p(f"s_cbranch_scc1 Lpr{n_}")
                        p("s_setprio 1")
                        p.label(f"Lpr{n_}")
                e(10); e(11); e(12)
                if t is not None:
                    p(f"v_mfma_f32_32x32x16_bf16 {vr(ACA[c],16)}, {vr(TB[t & 1],4)}, {vr(TB[t & 1]+4+4*c,4)}, {vr(ACA[c],16) if t else 0}")
                    if c == 1 and t + 2 < 16: ldT(t + 2)
                e(13); e(14); e(15)
    def check_or_poll(soff, fr, dontcare=None, redo=None):
        n = uid()
        p("s_waitcnt vmcnt(0)")
        p(f"v_cmp_eq_u32 s[78:79], s32, v{fr}")
        p(f"v_cmp_eq_u32 vcc, s33, v{fr+1}")
        p("s_and_b64 s[78:79], s[78:79], vcc")
        if dontcare is not None: p(f"s_or_b64 s[78:79], s[78:79], s[{dontcare}:{dontcare+1}]")
        p("s_cmp_eq_u64 s[78:79], -1")
        p(f"s_cbranch_scc1 Lchk{n}")
        redo()
        poll(p, 6, soff, dontcare, fr=fr)
        p.label(f"Lchk{n}")
    def KVa():
        p("s_lshl_b32 s68, s5, 3")
        p(f"s_add_u32 s68, s68, {LF + 20}")
        p(f"s_waitcnt vmcnt({OPT.get('kva_n', 4)})")
        lds_count(None)
    def KVb():
        p("s_lshl_b32 s68, s5, 3")
        p(f"s_add_u32 s68, s68, {LF + 20}")
        p("v_mov_b32 v251, s68")
        lds_spin(p, 251, 4)
    def PL():
        p("buffer_load_dwordx4 v[232:235], v228, s[20:23], s64 offen")
        p("s_bitcmp1_b32 s4, 0")
        p("s_cbranch_scc1 L_nowo1")
        for j in range(8):
            p(f"buffer_load_ushort v{236+j}, v{229 + (j >> 2)}, s[16:19], s65 offen offset:{(j & 3)*1024}")
        p.label("L_nowo1")
    def PS():
        p("s_waitcnt vmcnt(0)")
        p("s_lshl_b32 s68, s41, 10")
        p(f"s_add_u32 s68, s68, {CF}")
        p("buffer_store_dwordx4 v[232:235], v3, s[12:15], s68 offen sc1")
        p("s_bitcmp1_b32 s4, 0")
        p("s_cbranch_scc1 L_nowo2")
        for i in range(4): p(f"v_lshl_or_b32 v{244+i}, v{237+2*i}, 16, v{236+2*i}")
        p("s_lshl_b32 s68, s41, 9")
        p(f"s_add_u32 s68, s68, {WOF}")
        p("buffer_store_dwordx4 v[244:247], v3, s[12:15], s68 offen sc1")
        p.label("L_nowo2")
    def PSb():
        p(f"s_add_u32 s40, s40, {FL2 - FL1}")
        p("s_waitcnt vmcnt(0)")
        publish(p, 40)
    def KVc():
        p("s_lshl_b32 s68, s5, 3")
        p(f"s_add_u32 s68, s68, {LF + 36}")
        p("s_waitcnt vmcnt(0)")
        lds_count(None)
    def KVd():
        p("s_lshl_b32 s68, s5, 3")
        p(f"s_add_u32 s68, s68, {LF + 36}")
        p("v_mov_b32 v251, s68")
        lds_spin(p, 251, 4)
    def W5a():
        p("v_and_b32 v6, 15, v0")
        p("v_bfe_u32 v252, v0, 4, 1")
        p("v_lshl_add_u32 v6, v252, 6, v6")
        p("v_lshlrev_b32 v6, 6, v6")
        p("s_lshl_b32 s41, s39, 13")
        p("s_lshl_b32 s68, s4, 10")
        p("s_add_u32 s41, s41, s68")
        p(f"s_add_u32 s41, s41, {FL2}")
        p("buffer_load_dwordx2 v[252:253], v6, s[12:15], s41 offen sc1")
    def W5b():
        check_or_poll(41, 252, redo=W5a)
        p("s_lshl_b32 s62, s39, 16")
        p("s_lshl_b32 s69, s4, 13")
        p("s_add_u32 s62, s62, s69")
        p(f"s_add_u32 s62, s62, {WOF}")
    def E3a():
        p("v_min_u32 v6, 15, v0")
        p("v_cmp_le_u32 s[42:43], s34, v6")
        p("v_lshlrev_b32 v6, 6, v6")
        p("s_lshl_b32 s48, s35, 10")
        p(f"s_add_u32 s48, s48, {FLE}")
        p("buffer_load_dwordx2 v[4:5], v6, s[12:15], s48 offen sc1")
    def E3b():
        check_or_poll(48, 4, 42, redo=E3a)
        p("v_and_b32 v6, 31, v0")
        p("s_lshl_b32 s68, s35, 8")
        p("v_lshl_add_u32 v6, v6, 3, s68")
        p(f"s_mov_b32 s68, {EE}")
        for c in range(15):
            p(f"s_cmp_le_u32 s34, {c}")
            p("s_cbranch_scc1 L_E3bx")
            p(f"buffer_load_dwordx2 {vr(EB+2*c,2)}, v6, s[12:15], s68 offen sc1")
            p("s_add_u32 s68, s68, 4096")
        p.label("L_E3bx")
    def E4():
        p("s_waitcnt vmcnt(0)")
        p("v_mov_b32 v240, 0"); p("v_mov_b32 v241, 0")
        for c in range(15):
            p(f"s_cmp_le_u32 s34, {c}")
            p("s_cbranch_scc1 L_hin")
            p(f"v_fmac_f32 v{EB+2*c}, v{L+6}, v240")
            p(f"v_fmac_f32 v{EB+2*c+1}, v{L+6}, v241")
            p(f"v_fma_f32 v242, -v{L+7}, v241, v{EB+2*c}")
            p(f"v_fma_f32 v241, v{L+7}, v240, v{EB+2*c+1}")
            p("v_mov_b32 v240, v242")
        p.label("L_hin")
        p(f"v_fmac_f32 v{CAR}, v{L+4}, v240")
        p(f"v_fmac_f32 v{CAR+1}, v{L+4}, v241")
        p(f"v_fma_f32 v{CAR}, -v{L+5}, v241, v{CAR}")
        p(f"v_fmac_f32 v{CAR+1}, v{L+5}, v240")
        pr, pi = CAR, CAR + 1
        PK = 234
        for r in range(16):
            p(f"v_fmac_f32 v{RE+r}, v{L}, v{pr}")
            p(f"v_fmac_f32 v{IM+r}, v{L}, v{pi}")
            p(f"v_fma_f32 v{RE+r}, -v{L+1}, v{pi}, v{RE+r}")
            p(f"v_fmac_f32 v{IM+r}, v{L+1}, v{pr}")
            pr, pi = RE + r, IM + r
            if r & 1:
                p(f"v_cvt_pk_bf16_f32 v{PK + (r >> 1)}, v{RE+r-1}, v{RE+r}")
                p(f"v_cvt_pk_bf16_f32 v{PK + 8 + (r >> 1)}, -v{IM+r-1}, -v{IM+r}")
        p("s_lshl_b32 s68, s7, 16")
        p("s_lshl_b32 s69, s35, 11")
        p("s_add_u32 s68, s68, s69")
        p(f"s_add_u32 s68, s68, {HF}")
        p("s_add_u32 s69, s68, 0x8000")
        for pl in range(2):
            for q in range(2):
                p(f"ds_write_b128 v{L+2}, {vr(PK + 8*pl + 4*q, 4)} offset:{q*16}")
            for kl in range(2):
                for e_ in range(2):
                    p(f"ds_read_b64_tr_b16 {vr(210 + 8*pl + 4*kl + 2*e_, 2)}, v{L+3} offset:{(16*kl + 4*e_)*80}")
        for pl in range(2):
            p(f"s_waitcnt lgkmcnt({6 if pl == 0 else 0})")
            for kl in range(2):
                p(f"buffer_store_dwordx4 {vr(210 + 8*pl + 4*kl, 4)}, v3, s[12:15], s{68+pl} offen offset:{kl*1024} sc1")
    def E4b():
        p("s_lshl_b32 s68, s7, 10")
        p("s_lshl_b32 s69, s35, 6")
        p("s_add_u32 s68, s68, s69")
        p(f"s_add_u32 s68, s68, {FLH}")
        p("s_waitcnt vmcnt(0)")
        publish(p, 68)
    def E5a():
        p("v_and_b32 v4, 7, v0")
        p("v_and_b32 v5, 4, v4")
        p("v_and_b32 v4, 3, v4")
        p("v_lshl_add_u32 v4, v5, 1, v4")
        p("v_and_b32 v5, 3, v0")
        p("v_add_u32 v4, v4, v5")
        p("s_lshr_b32 s68, s49, 5")
        p("v_add_u32 v4, s68, v4")
        p("s_lshl_b32 s68, s4, 4")
        p("s_bfe_u32 s69, s49, 0x20003")
        p("s_lshl_b32 s69, s69, 2")
        p("s_add_u32 s68, s68, s69")
        p("s_bfe_u32 s69, s49, 0x20001")
        p("s_add_u32 s68, s68, s69")
        p("v_lshl_add_u32 v4, v4, 6, s68")
        p("s_lshl_b32 s68, s49, 4")
        p(f"s_add_u32 s68, s68, {(FLH - FL1) // 64}")
        p("v_cmp_gt_u32 vcc, 16, v0")
        p("v_add_u32 v5, s68, v0")
        p(f"s_mov_b32 s48, {FL1}")
        p("v_cndmask_b32 v6, v4, v5, vcc")
        p("v_bfe_u32 v5, v0, 2, 2")
        p("v_mul_u32_u24 v5, 5, v5")
        p("v_and_b32 v5, 9, v5")
        p("s_and_b32 s68, s46, 3")
        p("s_lshl_b32 s68, s68, 1")
        p("v_add_u32 v5, s68, v5")
        p("v_and_b32 v4, 3, v0")
        p("s_and_b32 s68, s46, 0x3c")
        p("v_add_u32 v4, s68, v4")
        p("v_cmp_lt_u32 vcc, 31, v0")
        p("v_lshl_add_u32 v4, v5, 6, v4")
        p("v_cndmask_b32 v6, v6, v4, vcc")
        p("v_lshlrev_b32 v6, 6, v6")
        p("buffer_load_dwordx2 v[4:5], v6, s[12:15], s48 offen sc1")
    def E5b():
        check_or_poll(48, 4, redo=E5a)
        p("s_lshl_b32 s69, s4, 14")
        p("s_lshl_b32 s47, s49, 16")
        p("s_add_u32 s47, s47, s69")
        p(f"s_add_u32 s47, s47, {HF}")
        p("s_lshl_b32 s64, s39, 17")
        p("s_add_u32 s64, s64, s69")
        p(f"s_add_u32 s64, s64, {CF}")
        p("s_add_u32 s65, s64, 0x10000")
        p("s_and_b32 s68, s4, 1")
        p("s_lshl_b32 s68, s68, 3")
        p("s_lshl_b32 s40, s49, 5")
        p("s_add_u32 s40, s40, s68")
        p("s_lshr_b32 s68, s4, 1")
        p("s_lshl_b32 s68, s68, 5")
        p("s_lshl_b32 s41, s39, 6")
        p("s_add_u32 s41, s41, s68")
        p("v_lshrrev_b32 v4, 5, v0")
        p("v_and_b32 v5, 31, v0")
        p("s_lshl_b32 s68, s49, 9")
        p(f"s_add_u32 s68, s68, {GG}")
        p("v_lshlrev_b32 v6, 8, v4")
        for q in range(4):
            p(f"buffer_load_dwordx4 {vr(G16+4*q,4)}, v6, s[12:15], s68 offen offset:{(q & 1)*16 + (q >> 1)*128} sc1")
        srd(p, 24, 56, 1024)
        p("v_lshlrev_b32 v6, 1, v5")
        p("s_lshl_b32 s68, s41, 1")
        p(f"buffer_load_ushort v{D_}, v6, s[24:27], s68 offen")
        p("v_lshl_add_u32 v6, v4, 14, v6")
        p("s_lshl_b32 s69, s40, 10")
        p("s_add_u32 s68, s68, s69")
        for r in range(8):
            if r == 4: p("s_add_u32 s68, s68, 4096")
            p(f"buffer_load_ushort v{X_+r}, v6, s[8:11], s68 offen offset:{(r & 3)*1024}")
        p("v_bfe_u32 v4, v5, 2, 1")
        p("v_lshlrev_b32 v4, 4, v4")
        p("v_and_or_b32 v4, v5, 3, v4")
        p("v_lshrrev_b32 v5, 3, v5")
        p("v_lshl_add_u32 v4, v5, 2, v4")
        p("v_lshrrev_b32 v5, 3, v4")
        p("v_and_b32 v4, 7, v4")
        p("v_lshlrev_b32 v4, 2, v4")
        p("v_lshl_add_u32 v4, v5, 7, v4")
        p("s_lshl_b32 s68, s46, 9")
        p(f"s_add_u32 s68, s68, {GG}")
        p(f"buffer_load_dword v{OG}, v4, s[12:15], s68 offen sc1")
        ldT(0); ldT(1)
    fns = dict(KV2=lambda: kv_dma([2]), KV3=lambda: kv_dma([3]), KVc=KVc, KVd=KVd, PL=PL, PS=PS, PSb=PSb, KVa=KVa, KVb=KVb, W5a=W5a, W5b=W5b, E3a=E3a, E3b=E3b, E4=E4, E4b=E4b, E5a=E5a, E5b=E5b)
    for q in range(16):
        for ev in OPT["ev"].get(q, "").split():
            name, _, grp = ev.partition(":")
            if name in ("E3a", "E3b", "E4", "E4b"): grp = "1"
            if OPT.get("trev"): tr(name)
            if grp == "": fns[name]()
            else:
                lab = f"L_no{name}{grp}"
                p(f"s_cmp_eq_u32 s5, {grp}")
                p(f"s_cbranch_scc0 {lab}")
                fns[name]()
                p.label(lab)
            if OPT.get("trev"): tr(name + "x")
        trip(q); tr("trip")
    p(f"v_smfmac_f32_32x32x32_bf16 {vr(O[1],16)}, {vr(V[1]+4,4)}, {vr(S[1]+8,8)}, v{IDX}")
    mk("loop")
    AV = X_; OA = 8; ACB = [40, 56]; R = O[0]
    p("s_mul_i32 s68, s3, 2304")
    p(f"s_add_u32 s68, s68, {SCR}")
    p("v_add_u32 v4, s68, v3")
    p("v_lshl_add_u32 v5, v0, 2, s68")
    p("s_xor_b32 s68, s3, 4")
    p("s_mul_i32 s68, s68, 2304")
    p(f"s_add_u32 s68, s68, {SCR}")
    p("v_add_u32 v96, s68, v3")
    p("v_lshl_add_u32 v97, v0, 2, s68")
    p(f"v_sub_f32 v{OG}, 1.0, v{OG}")
    p("s_cmp_eq_u32 s5, 0")
    p("s_cbranch_scc0 L_red1")
    p(f"ds_write_b128 v4, {vr(O[1],4)}")
    p(f"ds_write_b128 v4, {vr(O[1]+4,4)} offset:1024")
    p(f"ds_write_b32 v5, v{O[1]+8} offset:2048")
    p("s_branch L_red2")
    p.label("L_red1")
    p(f"ds_write_b128 v4, {vr(O[0],4)}")
    p(f"ds_write_b128 v4, {vr(O[0]+4,4)} offset:1024")
    p(f"ds_write_b32 v5, v{O[0]+8} offset:2048")
    p("s_waitcnt lgkmcnt(0)")
    for i in range(9): p(f"v_mov_b32 v{O[0]+i}, v{O[1]+i}")
    p.label("L_red2")
    p(f"v_cvt_pk_bf16_f32 v{OG}, v{OG}, v{OG}")
    p("s_lshl_b32 s70, s46, 15")
    p("s_lshl_b32 s71, s36, 10")
    p("s_add_u32 s70, s70, s71")
    p(f"s_add_u32 s70, s70, {OF}")
    p(f"v_and_b32 v{OG}, 0xffff0000, v{OG}")
    p(f"s_mov_b32 s68, {f2u(2.0**-40):#x}")
    p(f"s_mov_b32 s69, {f2u(2.0**40):#x}")
    p(f"s_mov_b32 s42, {f2u(2.0**120):#x}")
    p("s_waitcnt lgkmcnt(0)")
    p("s_barrier")
    tr("bar")
    p(f"ds_read_b128 v[12:15], v96")
    p(f"ds_read_b128 v[16:19], v96 offset:1024")
    p(f"ds_read_b32 v20, v97 offset:2048")
    p("s_waitcnt lgkmcnt(0)")
    for i in range(9): p(f"v_add_f32 v{R+i}, v{R+i}, v{12+i}")
    p(f"v_max3_f32 v6, |v{R}|, |v{R+1}|, |v{R+2}|")
    p(f"v_max3_f32 v6, v6, |v{R+3}|, |v{R+4}|")
    p(f"v_max3_f32 v6, v6, |v{R+5}|, |v{R+6}|")
    p(f"v_max_f32 v6, v6, |v{R+7}|")
    p(f"v_cmp_le_f32 s[78:79], s68, v{R+8}")
    p(f"v_cmp_ge_f32 s[80:81], s69, v{R+8}")
    p(f"v_cmp_ge_f32 vcc, s42, v6")
    p("s_and_b64 s[78:79], s[78:79], s[80:81]")
    p("s_and_b64 s[78:79], s[78:79], vcc")
    p("s_cmp_eq_u64 s[78:79], -1" if not OPT["fallback"] else "s_cmp_eq_u64 s[78:79], 1")
    p("s_cbranch_scc0 L_slow")
    p.label("L_fin")
    p(f"v_rcp_f32 v6, v{R+8}")
    p(f"v_mul_f32 v6, v{OG}, v6")
    for i in range(8): p(f"v_mul_f32 v{R+i}, v6, v{R+i}")
    for i in range(4): p(f"v_cvt_pk_bf16_f32 v{88+i}, v{R+2*i}, v{R+2*i+1}")
    for i in range(4): p(f"v_min_u32 v{88+i}, -2, v{88+i}")
    p(f"buffer_store_dwordx4 {vr(88,4)}, v3, s[12:15], s70 offen sc1")
    tr("ost")
    def loadO():
        for hh in range(8):
            p(f"buffer_load_dwordx4 {vr(OA+4*hh,4)}, v3, s[12:15], s{47 + (hh >> 2)} offen offset:{(hh & 3)*1024} {OPT['osc']}")
    assert T0 in (8, 9)
    p("s_lshl_b32 s47, s49, 15")
    p("s_lshl_b32 s74, s4, 13")
    p("s_add_u32 s47, s47, s74")
    p(f"s_add_u32 s47, s47, {OF}")
    p("s_add_u32 s48, s47, 4096")
    EARLY = OPT.get("oearly", 0)
    if EARLY > 0: loadO()
    for t in range(32 - 2 * T0, 16):
        p(f"s_waitcnt vmcnt({(4 if t == 14 else 1) + 8 * max(EARLY, 0)})")
        for c in range(2):
            p(f"v_mfma_f32_32x32x16_bf16 {vr(ACA[c],16)}, {vr(TB[t & 1],4)}, {vr(TB[t & 1]+4+4*c,4)}, {vr(ACA[c],16)}")
    p(f"v_lshlrev_b32 v{D_}, 16, v{D_}")
    for i in range(8):
        p(f"v_lshlrev_b32 v{X_+i}, 16, v{X_+i}")
        p(f"v_mul_f32 v{X_+i}, v{D_}, v{X_+i}")
    for i in range(4): p(f"v_cvt_pk_bf16_f32 v{40+i}, v{X_+2*i}, v{X_+2*i+1}")
    p("s_bitcmp1_b32 s4, 0")
    p("s_cselect_b64 vcc, -1, 0")
    for i in range(4):
        p(f"v_lshlrev_b32 v{X_+2*i}, 16, v{40+i}")
        p(f"v_and_b32 v{X_+2*i+1}, 0xffff0000, v{40+i}")
    for i in range(8): p(f"v_cndmask_b32 v{44+i}, v{G16+i}, v{G16+8+i}, vcc")
    for i in range(8): p(f"v_mul_f32 v{AV+i}, v{44+i}, v{X_+i}")
    if EARLY == 0: loadO()
    for jn in range(2):
        for r in range(16):
            p(f"v_mul_f32 v{ACA[jn]+r}, v{G16+r}, v{ACA[jn]+r}")
    p("s_lshl_b32 s68, s3, 13")
    p("v_add_u32 v232, s68, v3")
    p("s_lshl_b32 s68, s5, 15")
    p("s_lshl_b32 s74, s4, 11")
    p("s_add_u32 s68, s68, s74")
    p("v_add_u32 v233, s68, v3")
    p("v_lshrrev_b32 v4, 5, v0")
    p("v_and_b32 v5, 31, v0")
    p("v_lshlrev_b32 v5, 2, v5")
    p("v_lshl_add_u32 v234, v4, 15, v5")
    p("v_add_u32 v235, 4096, v234")
    p("s_lshl_b32 s40, s40, 11")
    p("s_lshl_b32 s41, s41, 2")
    p("s_add_u32 s40, s40, s41")
    p("s_add_u32 s41, s40, 8192")
    srd(p, 28, 66, 2048*2048)
    if EARLY < 0:
        if EARLY < -1: p("s_waitcnt vmcnt(0)")
        loadO()
    mk("pre")
    p(f"s_mov_b32 s81, {SPIN}")
    p.label("L_opoll")
    for hh in range(8):
        p(f"s_waitcnt vmcnt({7-hh})")
        for jn in range(2):
            p(f"v_mfma_f32_32x32x16_bf16 {vr(ACB[jn],16)}, {vr(OA+4*hh,4)}, {vr(WOR+8*hh+4*jn,4)}, {vr(ACB[jn],16) if hh else vr(ACA[jn],16)}")
        if hh == 0:
            p(f"v_max3_u32 v4, v{OA}, v{OA+1}, v{OA+2}")
            p(f"v_max_u32 v4, v4, v{OA+3}")
        else:
            p(f"v_max3_u32 v4, v4, v{OA+4*hh}, v{OA+4*hh+1}")
            p(f"v_max3_u32 v4, v4, v{OA+4*hh+2}, v{OA+4*hh+3}")
    p("v_cmp_eq_u32 s[78:79], -1, v4")
    p("s_sub_u32 s81, s81, 1")
    p("s_cbranch_scc1 L_opollx")
    p("s_cmp_eq_u64 s[78:79], 0")
    p("s_cbranch_scc1 L_opollx")
    p(f"s_sleep {OPT.get('osleep', 1)}")
    loadO()
    p("s_branch L_opoll")
    p.label("L_opollx")
    tr("ook")
    for q in range(8):
        p(f"ds_write_b128 v232, {vr(40+4*q,4)} offset:{q*1024}")
    p("s_waitcnt lgkmcnt(0)")
    p("s_barrier")
    for k in range(4):
        p(f"ds_read_b128 {vr(72+8*k,4)}, v233 offset:{k*8192}")
        p(f"ds_read_b128 {vr(76+8*k,4)}, v233 offset:{k*8192+1024}")
    p("s_waitcnt lgkmcnt(4)")
    for i in range(8):
        p(f"v_add_f32 v{72+i}, v{72+i}, v{80+i}")
        p(f"v_add_f32 v{72+i}, v{72+i}, v{AV+i}")
    p("s_waitcnt lgkmcnt(0)")
    for i in range(8):
        p(f"v_add_f32 v{88+i}, v{88+i}, v{96+i}")
        p(f"v_add_f32 v{88+i}, v{72+i}, v{88+i}")
        p(f"buffer_store_dword v{88+i}, v{234 + ((i >> 1) & 1)}, s[28:31], s{40 if i < 4 else 41} offen offset:{(i & 1)*2048} {OPT.get('outsc', '')}")
    p("s_or_b32 s68, s2, s3")
    p("s_cmp_eq_u32 s68, 0")
    p("s_cbranch_scc0 L_noep")
    p(f"s_mov_b32 s68, {EPO}")
    p("v_mov_b32 v4, s32")
    p("s_mov_b64 exec, 1")
    p("buffer_store_dword v4, off, s[12:15], s68 sc1")
    p("s_mov_b64 exec, -1")
    p.label("L_noep")
    st_.end(12, 3, 8, 4)
    if TRACE:
        p("s_waitcnt vmcnt(0)"); tr("end")
        p("s_lshl_b32 s82, s2, 3"); p("s_add_u32 s82, s82, s3"); p("s_lshl_b32 s82, s82, 9"); p(f"s_add_u32 s82, s82, {STAMP_OFF}")
        p("v_lshlrev_b32 v4, 2, v0")
        p("buffer_store_dword v254, v4, s[12:15], s82 offen"); p("buffer_store_dword v255, v4, s[12:15], s82 offen offset:256")
        open("sites.txt", "w").write(repr({v: k for k, v in sites.items()}))
    p.label("L_end")
    p("s_endpgm")
    p.label("L_slow")
    p("v_lshrrev_b32 v4, 5, v0")
    p("v_and_b32 v5, 15, v0")
    p("v_lshlrev_b32 v5, 4, v5")
    p("v_lshl_add_u32 v5, v4, 8, v5")
    p(f"v_add_u32 v2, {VF}, v5")
    p(f"v_add_u32 v1, {KF}, v3")
    def gK(): p(f"buffer_load_dwordx4 {vr(K[0],4)}, v1, s[12:15], s73 offen sc1")
    def gV():
        p("s_mov_b64 exec, s[44:45]")
        for f in range(2): p(f"buffer_load_dwordx4 {vr(V[0]+4*f,4)}, v2, s[12:15], s73 offen offset:{512*f} sc1")
        p("s_mov_b64 exec, -1")
    p("s_lshl_b32 s68, s46, 10")
    p("s_add_u32 s68, s68, s76")
    p(f"buffer_load_dwordx4 {vr(Q[0],4)}, v3, s[12:15], s68 offen sc1")
    p("v_mov_b32 v6, 0xff800000")
    p("s_mov_b32 s73, s76")
    p("s_mov_b32 s72, 64")
    p.label("L_slow1")
    gK()
    p("s_add_u32 s73, s73, 1024")
    p("s_sub_u32 s72, s72, 1")
    p("s_waitcnt vmcnt(0)")
    p(f"v_mfma_f32_32x32x16_bf16 {vr(S[0],16)}, {vr(K[0],4)}, {vr(Q[0],4)}, 0")
    for i in range(8): p(f"v_max3_f32 v6, v6, v{S[0]+2*i}, v{S[0]+2*i+1}")
    p("s_cmp_lg_u32 s72, 0")
    p("s_cbranch_scc1 L_slow1")
    p("v_mov_b32 v4, v6")
    p("v_permlane32_swap_b32 v4, v6")
    p("v_max_f32 v6, v4, v6")
    for i in range(16): p(f"v_sub_f32 v{S[1]+i}, 0, v6")
    for i in range(16): p(f"v_mov_b32 v{R+i}, 0")
    p("s_mov_b32 s73, s76")
    p("s_mov_b32 s72, 64")
    p.label("L_slow2")
    gK(); gV()
    p("s_add_u32 s73, s73, 1024")
    p("s_sub_u32 s72, s72, 1")
    p("s_waitcnt vmcnt(0)")
    p(f"v_mfma_f32_32x32x16_bf16 {vr(S[0],16)}, {vr(K[0],4)}, {vr(Q[0],4)}, {vr(S[1],16)}")
    for i in range(16): p(f"v_exp_f32 v{S[0]+i}, v{S[0]+i}")
    p(f"v_smfmac_f32_32x32x32_bf16 {vr(R,16)}, {vr(V[0],4)}, {vr(S[0],8)}, v{IDX}")
    p(f"v_smfmac_f32_32x32x32_bf16 {vr(R,16)}, {vr(V[0]+4,4)}, {vr(S[0]+8,8)}, v{IDX}")
    p("s_cmp_lg_u32 s72, 0")
    p("s_cbranch_scc1 L_slow2")
    p("s_nop 11")
    p("s_branch L_fin")
    p.label("L_codeend")
    return p

if __name__ == "__main__":
    p = build()
    p.fix_hazards(verbose="-v" in sys.argv)
    for lab in (None, "L_G1", "L_slow"):
        for e in p.check_waits(lab): print(f"  [wait:{lab}] {e}")
    NAME = "gated_mix__ssm_conv_s5__softmax_full_mha__prompt_kernel"
    b, d = kernel_text(NAME, p, None)
    out = HEADER + f"; @launch grid=(256,1,1) block=(512,1,1) lds={LDS_BYTES}\n" + '.amdgcn_target "amdgcn-amd-amdhsa--gfx950"\n.text\n' + b + '.section .rodata,"a"\n' + d
    dst = [a for a in sys.argv[1:] if not a.startswith("-")]
    fn = dst[0] if dst else "gated_mix__ssm_conv_s5__softmax_full_mha__prompt.s"
    open(fn, "w").write(out)
    import subprocess
    sys.path.insert(0, "cdna_kernels")
    from cdna_launch import with_harness_metadata, address_register_problem
    open("h.s", "w").write(with_harness_metadata(out, NAME, 16, launch_lists=True))
    r = subprocess.run(["clang", "-x", "assembler", "-target", "amdgcn-amd-amdhsa", "-mcpu=gfx950", "h.s", "-o", "h.co"], capture_output=True, text=True)
    if r.returncode: print("ASSEMBLY FAILED", r.stderr[:3000])
    else:
        pr = address_register_problem("h.co", NAME, None)
        if pr: print("CHECK:", pr)
```
